```python
import torch

def _softmax(x, axis=-1):
    return torch.softmax(x, dim=axis)
def _gelu(x):
    return torch.nn.functional.gelu(x, approximate="tanh")
def _silu(x):
    return torch.nn.functional.silu(x)
def _sigmoid(x):
    return torch.sigmoid(x)
def _layernorm(x, axis=-1, eps=1e-5):
    m = x.mean(dim=axis, keepdim=True)
    v = x.var(dim=axis, keepdim=True, unbiased=False)
    return (x - m) / torch.sqrt(v + eps)
def _scatter_add(tgt, idx, src, axis=0):
    return tgt.clone().index_add_(axis, idx, src)
def _segment_sum(src, seg, n):
    out = torch.zeros((n,) + src.shape[1:], dtype=src.dtype)
    return out.index_add_(0, seg, src)
def _pad(x, pw):
    flat = tuple(v for pair in reversed(pw) for v in pair)
    return torch.nn.functional.pad(x, flat)

kernel_name = 'sequential_preLN__mha_block_cached__mixer_channel_mlp__decode'

def setup_inputs():

    _w = (lambda a: (lambda t: t.to(torch.bfloat16) if t.is_floating_point() else t)(torch.as_tensor(a)))
    def _A_setup():
        B, Sq, D = 8, 1, 448
        H, Sk, Dh = 16, 4096, 256
        return {
            "x": _w((lambda *s: torch.randn(*s, dtype=torch.bfloat16) * 0.05)(B, Sq, D)),
            "k_cache": _w((lambda *s: torch.randn(*s, dtype=torch.bfloat16) * 3.2)(B, H, Sk, Dh)),
            "v_cache": _w((lambda *s: torch.randn(*s, dtype=torch.bfloat16) * 0.4)(B, H, Sk, Dh)),
            "wq": _w((lambda *s: torch.randn(*s, dtype=torch.bfloat16) * 3.2)(D, H * Dh) * (D ** -0.5)),
            "wo": _w((lambda *s: torch.randn(*s, dtype=torch.bfloat16) * 0.4)(H * Dh, D) * ((H * Dh) ** -0.5)),
        }
    _A_in = _A_setup()

    def _B_setup():
        B, S, D, F = 8, 1, 448, 1792
        return {
            "x": _w((lambda *s: torch.randn(*s, dtype=torch.bfloat16) * 0.05)(B, S, D)),
            "w1": _w((lambda *s: torch.randn(*s, dtype=torch.bfloat16) * 3.2)(D, F) * (D ** -0.5)),
            "b1": _w((lambda *s: torch.randn(*s, dtype=torch.bfloat16) * 1.6)(F)),
            "w2": _w((lambda *s: torch.randn(*s, dtype=torch.bfloat16) * 0.8)(F, D) * (F ** -0.5)),
            "b2": _w((lambda *s: torch.randn(*s, dtype=torch.bfloat16) * 1.6)(D)),
        }
    _B_in = _B_setup()

    return {
        "A_x": _A_in["x"],
        "A_k_cache": _A_in["k_cache"],
        "A_v_cache": _A_in["v_cache"],
        "A_wq": _A_in["wq"],
        "A_wo": _A_in["wo"],
        "B_x": _B_in["x"],
        "B_w1": _B_in["w1"],
        "B_b1": _B_in["b1"],
        "B_w2": _B_in["w2"],
        "B_b2": _B_in["b2"],
    }

def reference(A_x, A_k_cache, A_v_cache, A_wq, A_wo, B_x, B_w1, B_b1, B_w2, B_b2):
    def _A_ref(x, k_cache, v_cache, wq, wo):
        B, Sq, D = x.shape
        H, Dh = 16, 256
        q = (lambda x, *d: x.permute(*d))((x @ wq).reshape(B, Sq, H, Dh), 0, 2, 1, 3)
        scores = torch.einsum("bhqd,bhkd->bhqk", q, k_cache) * (Dh ** -0.5)
        p = _softmax(scores, axis=-1)
        o = torch.einsum("bhqk,bhkd->bhqd", p, v_cache)
        return (lambda x, *d: x.permute(*d))(o, 0, 2, 1, 3).reshape(B, Sq, H * Dh) @ wo

    def _B_ref(x, w1, b1, w2, b2):
        y = _layernorm(x, axis=-1)
        h = _gelu(torch.einsum("bsd,df->bsf", y, w1) + b1)
        return torch.einsum("bsf,fd->bsd", h, w2) + b2

    x = A_x
    h = x + _A_ref(_layernorm(x, axis=-1), A_k_cache, A_v_cache, A_wq, A_wo)
    h2 = h + _B_ref(_layernorm(h, axis=-1), B_w1, B_b1, B_w2, B_b2)
    return h2
```

```python
import sys, struct, math
NAME = "sequential_preLN__mha_block_cached__mixer_channel_mlp__decode"

def f2u(x): return struct.unpack("<I", struct.pack("<f", x))[0]

class G:
    def __init__(s):
        s.o = []; s.q = []; s.lab = 0
    def a(s, x): s.o.append(x)
    def __call__(s, *xs):
        for x in xs: s.o.append(x)
    def vm(s, text, tag=None):
        s.o.append(text); s.q.append(tag)
    def wait(s, tag, extra=""):
        if tag not in s.q:
            s.o.append("s_nop 0"); return
        idx = max(i for i, t in enumerate(s.q) if t == tag)
        n = len(s.q) - 1 - idx
        assert n <= 63, (tag, n)
        s.o.append(f"s_waitcnt vmcnt({n}){extra}")
        s.q = s.q[idx+1:]
    def label(s, p="L"):
        s.lab += 1; return f"{p}_{s.lab}"

def gen(NST=32, DQ=6, ROT=64, ROTMODE=0, stamps=0, WPOL="nt", QPOL="nt", SPOL="nt", VPOL="nt", XPOL="nt", PPOL="nt", HPOL="sc1", GPOL="sc1", SLEEP=4, CODEPF=2, WSOFF=0, RING=8, lo=1):
    g = G(); a = g
    XOFF = 0x10000
    FOFF = 0x100000
    ROFF = 0x0
    STOFF = 0x20000000
    NSTAMP = 10
    vL, vKV = 0, 1
    T = list(range(2, 10))
    MK = 10; Q = 14; PH = 22; PL = 30; ACC = 38; D0 = 54; D1 = 58; AB = 62
    X8 = 70
    XA0, XA1 = 74, 75
    B1V = 76; B2V = 78
    VSP = 77
    RG = 80; W1R = 144; W2R = 200; WQR = 144
    assert RING == 8
    sK, sV, sWQ, sWO, sW1, sW2, sX, sWS = 4, 8, 12, 16, 20, 24, 28, 32
    sW, sI, sH, sB, sJ, sF = 62, 63, 64, 65, 66, 67
    sOff, sRot, sCnt, sTmp, sTmp2 = 68, 69, 70, 71, 72
    sR, sTag32 = 73, 74
    sC = 75
    sHI = 76
    sTM = 77
    sWt = 80
    sSt = 88
    sSpin = 90
    sPC = 92
    kpol = (" " + SPOL) if SPOL else ""
    wpol = (" " + WPOL) if WPOL else ""
    vpol = (" " + VPOL) if VPOL else ""
    qpol = (" " + QPOL) if QPOL else ""
    xpol = (" " + XPOL) if XPOL else ""
    ppol = (" " + PPOL) if PPOL else ""

    a(f"; @launch grid=(256,1,1) block=(256,1,1) lds=40960")
    a('.amdgcn_target "amdgcn-amd-amdhsa--gfx950"')
    a(".text", f".globl {NAME}_kernel", ".p2align 8", f".type {NAME}_kernel,@function", f"{NAME}_kernel:")
    a("s_cmp_ge_u32 s2, 256", "s_cbranch_scc1 L_end")
    stn = [0]
    def stamp(k):
        if not stamps: return
        L = g.label("L_st")
        a(f"s_cmp_lg_u32 s{sW}, 0", f"s_cbranch_scc1 {L}")
        a(f"s_memrealtime s[{sSt}:{sSt+1}]", "s_waitcnt lgkmcnt(0)")
        a(f"v_writelane_b32 v{VSP}, s{sSt}, {2*k}", f"v_writelane_b32 v{VSP}, s{sSt+1}, {2*k+1}")
        a(f"{L}:")
    if stamps: a("s_memrealtime s[94:95]")
    a("s_load_dwordx16 s[36:51], s[0:1], 0", "s_load_dwordx8 s[52:59], s[0:1], 64", "s_load_dwordx2 s[60:61], s[0:1], 96")
    a(f"v_lshrrev_b32 v{T[0]}, 6, v0", f"v_and_b32 v{vL}, 63, v0")
    a(f"v_readfirstlane_b32 s{sW}, v{T[0]}")
    a(f"s_and_b32 s{sI}, s2, 7", f"s_lshl_b32 s{sI}, s{sI}, 5", f"s_lshr_b32 s{sTmp}, s2, 3", f"s_add_u32 s{sI}, s{sI}, s{sTmp}")
    a(f"s_lshr_b32 s{sH}, s{sI}, 4", f"s_bfe_u32 s{sB}, s{sI}, 0x30001", f"s_and_b32 s{sTmp}, s{sI}, 1")
    a(f"s_lshl_b32 s{sJ}, s{sH}, 1", f"s_add_u32 s{sJ}, s{sJ}, s{sTmp}", f"s_min_u32 s{sF}, s{sJ}, 27")
    a(f"v_lshrrev_b32 v{T[0]}, 4, v{vL}", f"v_and_b32 v{T[1]}, 15, v{vL}")
    a(f"v_lshlrev_b32 v{T[2]}, 4, v{T[1]}", f"v_lshl_add_u32 v{vKV}, v{T[0]}, 9, v{T[2]}", f"s_lshl_b32 s{sTmp}, s{sW}, 11", f"v_add_u32 v{vKV}, s{sTmp}, v{vKV}")
    a(f"s_mul_i32 s{sTmp}, s{sW}, {112*8192}", f"v_lshl_add_u32 v{T[3]}, v{T[0]}, 13, v{T[2]}", f"v_add_u32 v{T[3]}, s{sTmp}, v{T[3]}")
    a(f"v_lshlrev_b32 v{T[4]}, 4, v{vL}", f"v_lshl_add_u32 v{T[5]}, v{T[1]}, 2, v{T[0]}", f"s_mul_i32 s{sTmp}, s{sW}, 112", f"v_add_u32 v{T[5]}, s{sTmp}, v{T[5]}", f"v_lshlrev_b32 v{T[5]}, 1, v{T[5]}")
    a(f"s_lshl_b32 s{sTmp2}, s{sB}, 5", f"s_add_u32 s{sTmp2}, s{sTmp2}, s{sJ}")
    if ROTMODE == 0: a(f"s_mul_i32 s{sRot}, s{sI}, {ROT*1024}")
    elif ROTMODE == 1: a(f"s_mul_i32 s{sRot}, s{sTmp2}, {ROT*1024}")
    else: a(f"s_mul_i32 s{sRot}, s2, {ROT*1024}")
    a(f"s_and_b32 s{sRot}, s{sRot}, 0xfe000", f"s_lshl_b32 s{sTmp2}, s{sTmp2}, 20")
    a("s_waitcnt lgkmcnt(0)")
    def srd(s, lo, hi, off, nrec):
        if off is None:
            a(f"s_mov_b32 s{s}, s{lo}", f"s_and_b32 s{s+1}, s{hi}, 0xffff")
        else:
            a(f"s_add_u32 s{s}, s{lo}, {off}", f"s_addc_u32 s{s+1}, s{hi}, 0", f"s_and_b32 s{s+1}, s{s+1}, 0xffff")
        a(f"s_mov_b32 s{s+2}, {nrec}", f"s_mov_b32 s{s+3}, 0x20000")
    a(f"s_mul_i32 s{sTmp}, s{sB}, 896")
    srd(sX, 36, 37, f"s{sTmp}", 896)
    g.vm(f"buffer_load_dwordx4 v[{X8}:{X8+3}], v{T[4]}, s[{sX}:{sX+3}], 0 offen{xpol}", "x")
    g.vm(f"buffer_load_ushort v{PH}, v{T[5]}, s[{sX}:{sX+3}], 0 offen{xpol}", "x")
    g.vm(f"buffer_load_ushort v{PH+1}, v{T[5]}, s[{sX}:{sX+3}], 0 offen offset:128{xpol}", "x")
    srd(sK, 38, 39, f"s{sTmp2}", 1 << 20)
    a(f"s_lshl_b32 s{sTmp}, s{sH}, 9")
    srd(sWQ, 42, 43, f"s{sTmp}", 0)
    a(f"s_sub_u32 s{sWQ+2}, {448*8192}, s{sTmp}")
    a(f"s_mov_b32 s{sOff}, s{sRot}")
    def kload(srdn, dst, tag, acc=False):
        r = "a" if acc else "v"
        spol = vpol if srdn == sV else kpol
        g.vm(f"buffer_load_dwordx4 {r}[{dst}:{dst+3}], v{vKV}, s[{srdn}:{srdn+3}], s{sOff} offen{spol}", tag + "a")
        g.vm(f"buffer_load_dwordx4 {r}[{dst+4}:{dst+7}], v{vKV}, s[{srdn}:{srdn+3}], s{sOff} offen offset:256{spol}", tag + "b")
        a(f"s_add_u32 s{sOff}, s{sOff}, 0x2000", f"s_and_b32 s{sOff}, s{sOff}, 0xfffff")
    def qload(j):
        dst = WQR + 8*(j % DQ)
        a(f"s_mov_b32 s{sTmp}, {j*32768}")
        g.vm(f"buffer_load_dwordx4 v[{dst}:{dst+3}], v{T[3]}, s[{sWQ}:{sWQ+3}], s{sTmp} offen{qpol}", f"q{j}a")
        g.vm(f"buffer_load_dwordx4 v[{dst+4}:{dst+7}], v{T[3]}, s[{sWQ}:{sWQ+3}], s{sTmp} offen offset:256{qpol}", f"q{j}b")
    kiss = [0]
    def kstage_upto(n):
        while kiss[0] < n:
            kload(sK, 8*kiss[0], f"k{kiss[0]}", acc=True); kiss[0] += 1
    def quota(j): return min(NST, math.ceil((j+1)*NST/28))
    for j in range(DQ):
        qload(j); kstage_upto(quota(j))
        if j == 1:
            srd(sV, 40, 41, f"s{sTmp2}", 1 << 20)
            a(f"s_lshl_b32 s{sTmp}, s{sB}, 7", f"s_add_u32 s{sTmp}, s{sTmp}, {ROFF+WSOFF}")
            a(f"s_load_dword s{sR}, s[60:61], s{sTmp}")
            if CODEPF:
                a(f"s_getpc_b64 s[{sPC}:{sPC+1}]", "L_pc:")
                a(f"s_lshl_b32 s{sTmp}, s{sW}, 12", f"v_lshlrev_b32 v{T[6]}, 6, v{vL}", f"v_add_u32 v{T[6]}, s{sTmp}, v{T[6]}")
                for k in range(CODEPF):
                    g.vm(f"global_load_dword v{T[7]}, v{T[6]}, s[{sPC}:{sPC+1}]{ppol}", "pf")
                    a(f"v_add_u32 v{T[6]}, 0x4000, v{T[6]}")
    a(f"s_mov_b32 s{sHI}, 0xffff0000", f"s_mov_b32 s{sTM}, 0xffffff00", f"s_mov_b32 s{sC}, {hex(f2u(math.log2(math.e)/16))}")
    a(f"v_and_b32 v{T[6]}, 1, v{vL}", f"v_lshlrev_b32 v{T[6]}, 4, v{T[6]}", f"v_mov_b32 v{T[2]}, 0xffff", f"v_lshlrev_b32 v{T[2]}, v{T[6]}, v{T[2]}")
    a(f"v_bfe_u32 v{T[6]}, v{vL}, 1, 2")
    for t in range(4):
        a(f"v_cmp_eq_u32 vcc, {t}, v{T[6]}", "s_nop 1", f"v_cndmask_b32 v{MK+t}, 0, v{T[2]}, vcc")

    def allred(op, regs, tmp):
        for rot in (8, 4, 2, 1):
            if len(regs) < 3: a(f"s_nop {2-len(regs)}" if len(regs) < 2 else "s_nop 0")
            for r in regs: a(f"{op}_dpp v{r}, v{r}, v{r} row_ror:{rot} row_mask:0xf bank_mask:0xf")
        for sw in ("v_permlane16_swap_b32", "v_permlane32_swap_b32"):
            for r, t in zip(regs, tmp): a(f"v_mov_b32 v{t}, v{r}")
            a("s_nop 1")
            for r, t in zip(regs, tmp): a(f"{sw} v{t}, v{r}")
            a("s_nop 1")
            for r, t in zip(regs, tmp): a(f"{op} v{r}, v{r}, v{t}")
    def bfr(dst, src):
        a(f"v_cvt_pk_bf16_f32 v{dst}, v{src}, v{src}", f"v_and_b32 v{dst}, s{sHI}, v{dst}")
    def unpack(dst, src, n):
        for k in range(n):
            a(f"v_lshlrev_b32 v{dst+2*k}, 16, v{src+k}", f"v_and_b32 v{dst+2*k+1}, s{sHI}, v{src+k}")
    def ln_stats(E, mu, rs, t0, t1, t2, piv):
        a(f"v_readlane_b32 s{sTmp}, v{E[0]}, 0", f"v_mov_b32 v{mu}, 0", f"v_mov_b32 v{rs}, 0")
        a(f"s_mov_b64 exec, 0x00ffffffffffffff") if False else a("s_mov_b32 exec_hi, 0x00ffffff")
        for k in range(8):
            a(f"v_subrev_f32 v{t0}, s{sTmp}, v{E[k]}", f"v_add_f32 v{mu}, v{mu}, v{t0}", f"v_fmac_f32 v{rs}, v{t0}, v{t0}")
        a("s_mov_b32 exec_hi, -1")
        allred("v_add_f32", [mu, rs], [t0, t1])
        inv = hex(f2u(1.0/448))
        a(f"v_mul_f32 v{mu}, {inv}, v{mu}", f"v_mul_f32 v{rs}, {inv}, v{rs}")
        a(f"v_fma_f32 v{rs}, -v{mu}, v{mu}, v{rs}", f"v_add_f32 v{mu}, s{sTmp}, v{mu}", f"v_max_f32 v{rs}, 0, v{rs}")
        bfr(mu, mu); bfr(rs, rs)
        a(f"v_add_f32 v{rs}, {hex(f2u(1e-5))}, v{rs}"); bfr(rs, rs)
        a(f"v_sqrt_f32 v{rs}, v{rs}", "s_nop 0"); bfr(rs, rs)
        a(f"v_rcp_f32 v{rs}, v{rs}", "s_nop 0")
    def ln_apply(r, mu, rs):
        a(f"v_sub_f32 v{r}, v{r}, v{mu}"); bfr(r, r); a(f"v_mul_f32 v{r}, v{r}, v{rs}")
    def abuild(dst, src, lane, src2=None, lane2=None):
        for t in range(4):
            if src2 is None:
                a(f"v_and_b32_dpp v{dst+t}, v{src}, v{MK+t} row_newbcast:{lane} row_mask:0xf bank_mask:0xf")
            else:
                a(f"v_and_b32_dpp v{dst+t}, v{src}, v{MK+t} row_newbcast:{lane} row_mask:0xf bank_mask:0x3")
        if src2 is not None:
            for t in range(4):
                a(f"v_and_b32_dpp v{dst+t}, v{src2}, v{MK+t} row_newbcast:{lane2} row_mask:0xf bank_mask:0xc")
    def mfma(d, A, B, c=None, br="v"):
        cc = f"v[{d}:{d+3}]" if c is None else c
        a(f"v_mfma_f32_16x16x32_bf16 v[{d}:{d+3}], v[{A}:{A+3}], {br}[{B}:{B+3}], {cc}")

    g.wait("x")
    E = list(range(ACC, ACC+8))
    unpack(ACC, X8, 4)
    a(f"v_lshlrev_b32 v{PH}, 16, v{PH}", f"v_lshlrev_b32 v{PH+1}, 16, v{PH+1}")
    ln_stats(E, ACC+8, ACC+9, ACC+10, ACC+11, ACC+12, None)
    for r in (PH, PH+1):
        ln_apply(r, ACC+8, ACC+9); a(f"v_cvt_pk_bf16_f32 v{r}, v{r}, v{r}")
    a("s_nop 1")
    for j in range(28):
        A = AB + 4*(j & 1)
        abuild(A, PH + (j >> 4), j & 15)
        a("s_nop 0")
        g.wait(f"q{j}a")
        dst = WQR + 8*(j % DQ)
        mfma(D0, A, dst, "0" if j == 0 else None)
        g.wait(f"q{j}b")
        mfma(D1, A, dst+4, "0" if j == 0 else None)
        if j + DQ < 28:
            qload(j+DQ); kstage_upto(quota(j+DQ))
    kstage_upto(NST)
    for t in range(NST, NST+RING):
        kload(sK, RG + 8*(t % RING), f"k{t}")
    a(f"v_and_b32 v{T[0]}, 15, v{vL}", f"v_lshlrev_b32 v{T[0]}, 5, v{T[0]}", f"v_and_b32 v{T[1]}, 16, v{vL}", f"v_add_u32 v{T[1]}, v{T[0]}, v{T[1]}")
    a(f"s_lshl_b32 s{sTmp}, s{sW}, 10", f"v_add_u32 v{T[1]}, s{sTmp}, v{T[1]}", "s_nop 2")
    a(f"ds_write_b128 v{T[1]}, v[{D0}:{D0+3}]", f"ds_write_b128 v{T[1]}, v[{D1}:{D1+3}] offset:512")
    a("s_waitcnt lgkmcnt(0)", "s_barrier")
    QT = WQR
    for hf in range(2):
        for w in range(4):
            for u in range(2):
                r = QT + ((hf*4 + w)*2 + u)*4
                a(f"ds_read_b128 v[{r}:{r+3}], v{T[0]} offset:{w*1024 + hf*512 + u*16}")
    a(f"s_mul_i32 s{sTmp}, s{sH}, {256*896}")
    srd(sWO, 44, 45, f"s{sTmp}", 256*896)
    a(f"s_lshl_b32 s{sTmp}, s{sF}, 7")
    srd(sW1, 48, 49, f"s{sTmp}", 0)
    a(f"s_sub_u32 s{sW1+2}, {448*3584}, s{sTmp}")
    a(f"s_mul_i32 s{sTmp}, s{sF}, {64*896}")
    srd(sW2, 52, 53, f"s{sTmp}", 64*896)
    a(f"s_cmp_ge_u32 s{sJ}, 28", f"s_cselect_b32 s{sW1+2}, 0, s{sW1+2}", f"s_cselect_b32 s{sW2+2}, 0, s{sW2+2}")
    srd(sWS, 60, 61, (hex(WSOFF) if WSOFF else None), 0x200000)
    for hf in range(2):
        a(f"s_waitcnt lgkmcnt({8*(1-hf)})")
        b0 = QT + hf*32
        for e in range(8):
            a(f"v_add_f32 v{b0+e}, v{b0+e}, v{b0+8+e}", f"v_add_f32 v{b0+16+e}, v{b0+16+e}, v{b0+24+e}")
        for e in range(8):
            a(f"v_add_f32 v{b0+e}, v{b0+e}, v{b0+16+e}")
        for e in range(4):
            a(f"v_cvt_pk_bf16_f32 v{Q+hf*4+e}, v{b0+2*e}, v{b0+2*e+1}")
    stamp(1)
    a(f"s_add_u32 s{sTag32}, s{sR}, 1")
    a(f"v_lshrrev_b32 v{T[0]}, 4, v{vL}", f"v_and_b32 v{T[1]}, 15, v{vL}", f"v_lshlrev_b32 v{T[5]}, 4, v{T[1]}")
    a(f"s_movk_i32 s{sTmp}, 1792", f"v_mad_u32_u24 v{T[5]}, v{T[0]}, s{sTmp}, v{T[5]}")
    a(f"s_mul_i32 s{sTmp}, s{sW}, {64*896}", f"v_add_u32 v{T[2]}, s{sTmp}, v{T[5]}")
    a(f"s_mul_i32 s{sTmp}, s{sW}, {16*896}", f"v_add_u32 v{T[4]}, s{sTmp}, v{T[5]}")
    a(f"v_lshrrev_b32 v{T[5]}, 3, v{T[1]}", f"v_lshl_add_u32 v{T[5]}, v{T[0]}, 1, v{T[5]}", f"s_mul_i32 s{sTmp}, s{sW}, 112", f"v_add_u32 v{T[6]}, s{sTmp}, v{T[5]}")
    a(f"v_and_b32 v{T[7]}, 7, v{T[1]}", f"v_lshlrev_b32 v{T[3]}, 4, v{T[7]}", f"s_movk_i32 s{sTmp}, 3584", f"v_mad_u32_u24 v{T[3]}, v{T[6]}, s{sTmp}, v{T[3]}")
    a(f"v_lshl_add_u32 v{T[6]}, v{T[7]}, 3, v{T[6]}", f"v_lshlrev_b32 v{T[6]}, 1, v{T[6]}")
    extra = []
    extra.append((f"buffer_load_ushort v{XA0}, v{T[6]}, s[{sX}:{sX+3}], 0 offen{xpol}", "sm"))
    extra.append((f"buffer_load_ushort v{XA1}, v{T[6]}, s[{sX}:{sX+3}], 0 offen offset:128{xpol}", "sm"))
    for x, t in extra: g.vm(x, t)
    a(f"v_and_b32 v{T[7]}, 1, v{vL}", f"v_lshl_add_u32 v{T[5]}, v{T[7]}, 3, v{T[5]}")
    a(f"s_lshl_b32 s{sTmp}, s{sF}, 2", f"s_add_u32 s{sTmp}, s{sTmp}, s{sW}", f"s_lshl_b32 s{sTmp}, s{sTmp}, 4", f"v_add_u32 v{T[5]}, s{sTmp}, v{T[5]}", f"v_lshlrev_b32 v{T[5]}, 1, v{T[5]}")
    g.vm(f"global_load_ushort v{B1V}, v{T[5]}, s[50:51]{xpol}", "sm")
    a(f"v_and_b32 v{T[7]}, 3, v{vL}", f"v_lshlrev_b32 v{T[7]}, 3, v{T[7]}", f"s_lshl_b32 s{sTmp}, s{sF}, 5", f"v_add_u32 v{T[7]}, s{sTmp}, v{T[7]}")
    g.vm(f"global_load_dwordx2 v[{B2V}:{B2V+1}], v{T[7]}, s[54:55]{xpol}", "sm")

    perm = [None]
    def kdot(j, src):
        acc = ACC + j
        for e in range(8):
            c = "0" if e == 0 else f"v{acc}"
            a(f"v_dot2_f32_bf16 v{acc}, v{src+e}, v{Q+e}, {c}")
    def kreduce(n):
        regs = [(ACC+j, [j]*16) for j in range(16)]
        a("s_nop 2")
        def lvl(regs, ctrl, m0, m1, sel):
            out = []
            for k in range(0, len(regs), 2):
                (r0, l0), (r1, l1) = regs[k], regs[k+1]
                a(f"v_add_f32_dpp v{r0}, v{r0}, v{r0} {ctrl} row_mask:0xf bank_mask:{m0}")
                out.append((r0, [l0[i] if sel(i) == 0 else l1[i] for i in range(16)]))
            for k in range(0, len(regs), 2):
                (r0, l0), (r1, l1) = regs[k], regs[k+1]
                a(f"v_add_f32_dpp v{r0}, v{r1}, v{r1} {ctrl} row_mask:0xf bank_mask:{m1}")
            return out
        regs = lvl(regs, "row_mirror", "0x3", "0xc", lambda i: i >> 3)
        regs = lvl(regs, "row_half_mirror", "0x5", "0xa", lambda i: (i >> 2) & 1)
        for qp in ("[1,0,3,2]", "[2,3,0,1]"):
            for r, _ in regs: a(f"v_add_f32_dpp v{r}, v{r}, v{r} quad_perm:{qp} row_mask:0xf bank_mask:0xf")
        a("s_mov_b32 vcc_lo, 0xaaaaaaaa", "s_mov_b32 vcc_hi, 0xaaaaaaaa")
        a(f"v_cndmask_b32 v{regs[0][0]}, v{regs[0][0]}, v{regs[1][0]}, vcc", f"v_cndmask_b32 v{regs[2][0]}, v{regs[2][0]}, v{regs[3][0]}, vcc")
        a("s_mov_b32 vcc_lo, 0xcccccccc", "s_mov_b32 vcc_hi, 0xcccccccc")
        a(f"v_cndmask_b32 v{PH+n}, v{regs[0][0]}, v{regs[2][0]}, vcc")
        m = [regs[i & 3][1][i] for i in range(16)]
        perm[0] = m
    g.wait(f"k{NST-1}b")
    for t in range(NST):
        for e in range(8): a(f"v_accvgpr_read_b32 v{D0+e}, a{8*t+e}")
        kdot(t % 16, D0)
        if t % 16 == 15: kreduce(t // 16)
    wl = []
    for j in range(8):
        for n in range(7):
            r = (j*7+n)*4
            wl.append((f"s_movk_i32 s{sTmp}, {7168*j}" if 7168*j < 32768 else f"s_mov_b32 s{sTmp}, {7168*j}", f"buffer_load_dwordx4 a[{r}:{r+3}], v{T[2]}, s[{sWO}:{sWO+3}], s{sTmp} offen offset:{256*n}{wpol}"))
    for j in range(14):
        r = W1R + 4*j
        wl.append((f"s_mov_b32 s{sTmp}, {28672*j}", f"buffer_load_dwordx4 v[{r}:{r+3}], v{T[3]}, s[{sW1}:{sW1+3}], s{sTmp} offen{wpol}"))
    for j in range(2):
        for n in range(7):
            r = W2R + (j*7+n)*4
            wl.append((f"s_movk_i32 s{sTmp}, {7168*j}", f"buffer_load_dwordx4 v[{r}:{r+3}], v{T[4]}, s[{sW2}:{sW2+3}], s{sTmp} offen offset:{256*n}{wpol}"))
    for t in range(NST, 128):
        src = RG + 8*(t % RING)
        g.wait(f"k{t}b")
        kdot(t % 16, src)
        if t + RING < 128: kload(sK, src, f"k{t+RING}")
        else:
            if t + RING == 128: assert True
            kload(sV, src, f"v{t+RING-128}")
        if wl and t + RING < 128:
            s0, ld = wl.pop(0); a(s0); g.vm(ld, "w")
        if t % 16 == 15: kreduce(t // 16)
    assert not wl
    inv = [perm[0].index(j) for j in range(16)]
    stamp(2)
    MC, LS = ACC, ACC+1
    for n in range(8): bfr(PH+n, PH+n)
    a(f"v_max3_f32 v{MC}, v{PH}, v{PH+1}, v{PH+2}", f"v_max3_f32 v{MC}, v{MC}, v{PH+3}, v{PH+4}", f"v_max3_f32 v{MC}, v{MC}, v{PH+5}, v{PH+6}", f"v_max_f32 v{MC}, v{MC}, v{PH+7}")
    allred("v_max_f32", [MC], [T[0]])
    a(f"v_mul_f32 v{MC}, s{sC}, v{MC}")
    for n in range(8): a(f"v_fma_f32 v{PH+n}, v{PH+n}, s{sC}, -v{MC}")
    for n in range(8): a(f"v_exp_f32 v{PH+n}, v{PH+n}")
    a(f"v_add_f32 v{LS}, v{PH}, v{PH+1}")
    for n in range(2, 8): a(f"v_add_f32 v{LS}, v{LS}, v{PH+n}")
    for n in range(8):
        a(f"v_cvt_pk_bf16_f32 v{T[0]}, v{PH+n}, v{PH+n}", f"v_and_b32 v{T[1]}, s{sHI}, v{T[0]}", f"v_sub_f32 v{T[1]}, v{PH+n}, v{T[1]}")
        a(f"v_cvt_pk_bf16_f32 v{PL+n}, v{T[1]}, v{T[1]}", f"v_mov_b32 v{PH+n}, v{T[0]}")
    allred("v_add_f32", [LS], [T[0]])
    for e in range(8): a(f"v_mov_b32 v{D0+e}, 0")
    def vstep(j, last):
        A = AB + 4*(j & 1)
        src = RG + 8*(j % RING)
        if lo: abuild(A, PH, inv[j], PL, inv[j])
        else: abuild(A, PH, inv[j])
        a("s_nop 0")
        rem = (15 - j) if last else 99
        n2 = 2*min(RING-1, rem)
        a(f"s_waitcnt vmcnt({n2+1})")
        mfma(D0, A, src)
        a(f"s_waitcnt vmcnt({n2})")
        mfma(D1, A, src+4)
        if not (last and j + RING >= 16):
            a(f"buffer_load_dwordx4 v[{src}:{src+3}], v{vKV}, s[{sV}:{sV+3}], s{sOff} offen{vpol}")
            a(f"buffer_load_dwordx4 v[{src+4}:{src+7}], v{vKV}, s[{sV}:{sV+3}], s{sOff} offen offset:256{vpol}")
            a(f"s_add_u32 s{sOff}, s{sOff}, 0x2000", f"s_and_b32 s{sOff}, s{sOff}, 0xfffff")
    assert all(t.startswith("v") for t in g.q[-2*RING:]), g.q
    a(f"s_mov_b32 s{sCnt}, 7", "L_vloop:")
    for j in range(16): vstep(j, False)
    for n in range(7): a(f"v_mov_b32 v{PH+n}, v{PH+n+1}", f"v_mov_b32 v{PL+n}, v{PL+n+1}")
    a(f"s_sub_u32 s{sCnt}, s{sCnt}, 1", f"s_cmp_lg_u32 s{sCnt}, 0", "s_cbranch_scc1 L_vloop")
    OPo, MLo, YPo, GPo, HBo, APo, Y2o = 0, 4096, 4608, 18944, 26112, 27904, 4608
    aOW, aOR, aYW, aYR, aSL = ACC+2, ACC+3, ACC+4, ACC+5, ACC+6
    TAGV = ACC+7
    a(f"v_and_b32 v{T[0]}, 15, v{vL}", f"v_lshlrev_b32 v{T[1]}, 5, v{T[0]}", f"v_and_b32 v{T[2]}, 16, v{vL}", f"v_add_u32 v{T[1]}, v{T[1]}, v{T[2]}")
    a(f"s_mul_i32 s{sTmp}, s{sW}, 3584", f"v_add_u32 v{aYW}, s{sTmp}, v{T[1]}")
    a(f"v_and_b32 v{T[2]}, 32, v{vL}", f"v_lshl_add_u32 v{aOW}, v{T[2]}, 4, v{T[1]}", f"s_lshl_b32 s{sTmp}, s{sW}, 10", f"v_add_u32 v{aOW}, s{sTmp}, v{aOW}")
    a(f"v_and_b32 v{T[2]}, 7, v{vL}", f"v_lshlrev_b32 v{T[2]}, 3, v{T[2]}", f"v_lshrrev_b32 v{T[3]}, 4, v{vL}", f"v_lshl_add_u32 v{T[2]}, v{T[3]}, 1, v{T[2]}", f"v_bfe_u32 v{T[3]}, v{vL}, 3, 1", f"v_add_u32 v{T[2]}, v{T[2]}, v{T[3]}")
    a(f"s_lshl_b32 s{sTmp}, s{sW}, 6", f"v_add_u32 v{aOR}, s{sTmp}, v{T[2]}", f"v_lshlrev_b32 v{aOR}, 2, v{aOR}")
    aZA = ACC+8
    a(f"s_mul_i32 s{sTmp}, s{sW}, 112", f"v_add_u32 v{aZA}, s{sTmp}, v{T[2]}", f"v_lshlrev_b32 v{aZA}, 2, v{aZA}")
    a(f"s_lshl_b32 s{sTmp}, s{sW}, 6", f"v_add_u32 v{T[3]}, s{sTmp}, v{vL}", f"v_lshlrev_b32 v{aYR}, 4, v{T[3]}")
    a(f"s_and_b32 s{sTmp}, s{sTag32}, 0xff", f"v_mov_b32 v{TAGV}, s{sTmp}")
    if CODEPF:
        a(f"s_getpc_b64 s[{sPC}:{sPC+1}]")
        a(f"v_lshlrev_b32 v{T[6]}, 6, v{vL}", f"s_lshl_b32 s{sTmp}, s{sW}, 12", f"v_add_u32 v{T[6]}, s{sTmp}, v{T[6]}")
        a(f"global_load_dword v{T[7]}, v{T[6]}, s[{sPC}:{sPC+1}]{ppol}")
    for j in range(16):
        vstep(j, True)
    g.q = []
    stamp(3)
    a("s_nop 7")
    for t in range(4): a(f"v_permlane32_swap_b32 v{D0+t}, v{D1+t}")
    a("s_nop 1")
    if lo:
        for t in range(4): a(f"v_add_f32 v{D0+t}, v{D0+t}, v{D1+t}")
    a(f"s_lshl_b32 s{sTmp}, s{sW}, 3", f"v_mov_b32 v{T[0]}, s{sTmp}")
    a(f"ds_write_b128 v{aOW}, v[{D0}:{D0+3}] offset:{OPo}", f"ds_write_b64 v{T[0]}, v[{MC}:{MC+1}] offset:{MLo}")
    a("s_waitcnt lgkmcnt(0)", "s_barrier")
    ML = D0
    a(f"v_mov_b32 v{T[0]}, 0")
    a(f"ds_read_b128 v[{ML}:{ML+3}], v{T[0]} offset:{MLo}", f"ds_read_b128 v[{ML+4}:{ML+7}], v{T[0]} offset:{MLo+16}")
    for w in range(4): a(f"ds_read_b32 v{T[2+w]}, v{aOR} offset:{OPo + w*1024}")
    a("s_waitcnt lgkmcnt(4)")
    a(f"v_max3_f32 v{MC}, v{ML}, v{ML+2}, v{ML+4}", f"v_max_f32 v{MC}, v{MC}, v{ML+6}", f"v_and_b32 v{MC}, s{sTM}, v{MC}")
    for w in range(4): a(f"v_sub_f32 v{ML+2*w}, v{ML+2*w}, v{MC}")
    for w in range(4): a(f"v_exp_f32 v{ML+2*w}, v{ML+2*w}")
    a("s_waitcnt lgkmcnt(0)")
    a(f"v_mul_f32 v{T[0]}, v{ML}, v{T[2]}", f"v_mul_f32 v{LS}, v{ML}, v{ML+1}")
    for w in range(1, 4): a(f"v_fmac_f32 v{T[0]}, v{ML+2*w}, v{T[2+w]}", f"v_fmac_f32 v{LS}, v{ML+2*w}, v{ML+2*w+1}")
    a(f"v_cvt_pk_bf16_f32 v{T[0]}, v{T[0]}, v{T[0]}", "s_nop 1")
    Y = RG
    def proj(src, nj, breg, br):
        abuild(AB, src, 0, src, 8)
        a("s_nop 1")
        for j in range(nj):
            A = AB + 4*(j & 1)
            for n in range(7):
                mfma(Y+4*n, A, breg + (j*7+n)*4, "0" if j == 0 else None, br)
                if n == 0 and j + 1 < nj: abuild(AB + 4*((j+1) & 1), src, j+1, src, 9+j)
    def ywrite(off):
        a("s_mov_b32 exec_hi, 0")
        for n in range(3): a(f"ds_write_b128 v{aYW}, v[{Y+4*n}:{Y+4*n+3}] offset:{off + 512*n}")
        a("s_mov_b32 exec_lo, 0x00ff00ff", "s_mov_b32 exec_hi, 0xff00ff00")
        a(f"ds_write_b128 v{aYW}, v[{Y+12}:{Y+15}] offset:{off + 512*3}")
        a("s_mov_b32 exec_lo, 0", "s_mov_b32 exec_hi, -1")
        for n in range(4, 7): a(f"ds_write_b128 v{aYW}, v[{Y+4*n}:{Y+4*n+3}] offset:{off + 512*n}")
        a("s_mov_b32 exec_lo, -1")
    def yreduce(off, dst):
        for k in range(8): a(f"ds_read_b128 v[{dst+4*k}:{dst+4*k+3}], v{aYR} offset:{off + 1792*k}")
        for half in range(2):
            a(f"s_waitcnt lgkmcnt({4*(1-half)})")
            b = dst + 16*half
            for e in range(4): a(f"v_add_f32 v{b+e}, v{b+e}, v{b+4+e}", f"v_add_f32 v{b+8+e}, v{b+8+e}, v{b+12+e}")
            for e in range(4): a(f"v_add_f32 v{b+e}, v{b+e}, v{b+8+e}")
        for e in range(4): a(f"v_add_f32 v{dst+e}, v{dst+e}, v{dst+16+e}")
        for e in range(4): a(f"v_bfi_b32 v{dst+e}, s{sTM}, v{dst+e}, v{TAGV}")
    proj(T[0], 8, 0, "a")
    a("s_nop 4")
    ywrite(YPo)
    a("s_waitcnt lgkmcnt(0)", "s_barrier")
    Lp = g.label("L_nopub")
    a(f"s_cmp_ge_u32 s{sW}, 2", f"s_cbranch_scc1 {Lp}")
    yreduce(YPo, RG)
    a(f"s_lshl_b32 s{sTmp}, s{sB}, 5", f"s_add_u32 s{sTmp}, s{sTmp}, s{sJ}", f"s_lshl_b32 s{sTmp}, s{sTmp}, 11", f"s_add_u32 s{sTmp}, s{sTmp}, {XOFF}")
    Lw = g.label("L_w0")
    a(f"s_cmp_eq_u32 s{sW}, 0", f"s_cbranch_scc1 {Lw}")
    a("s_mov_b32 exec_lo, 0", "s_mov_b32 exec_hi, 0x10000")
    a(f"v_bfi_b32 v{RG}, s{sTM}, v{MC}, v{TAGV}", f"v_bfi_b32 v{RG+1}, s{sTM}, v{LS}, v{TAGV}", f"v_mov_b32 v{RG+2}, s{sTag32}", f"v_mov_b32 v{RG+3}, s{sTag32}")
    a("s_mov_b32 exec_lo, -1", "s_mov_b32 exec_hi, 0x1ffff")
    a(f"{Lw}:")
    a(f"buffer_store_dwordx4 v[{RG}:{RG+3}], v{aYR}, s[{sWS}:{sWS+3}], s{sTmp} offen {HPOL}")
    a("s_mov_b64 exec, -1")
    a(f"{Lp}:")
    stamp(4)
    a(f"s_cmp_ge_u32 s{sJ}, 28", "s_cbranch_scc1 L_fin")
    HD = D0
    a(f"s_lshl_b32 s{sTmp2}, s{sB}, 5", f"s_lshl_b32 s{sTmp}, s{sW}, 3", f"s_add_u32 s{sTmp2}, s{sTmp2}, s{sTmp}", f"s_lshl_b32 s{sTmp2}, s{sTmp2}, 11", f"s_add_u32 s{sTmp2}, s{sTmp2}, {XOFF}")
    a(f"v_and_b32 v{T[0]}, 7, v{vL}", f"v_lshlrev_b32 v{T[0]}, 11, v{T[0]}", f"v_add_u32 v{T[0]}, 1792, v{T[0]}")
    a(f"v_lshlrev_b32 v{T[1]}, 4, v{vL}", f"v_min_u32 v{T[2]}, 47, v{vL}", f"v_lshlrev_b32 v{T[2]}, 4, v{T[2]}")
    a(f"s_mov_b32 s{sSpin}, 0")
    a("L_hpoll:")
    a(f"buffer_load_dwordx4 v[{HD}:{HD+3}], v{T[0]}, s[{sWS}:{sWS+3}], s{sTmp2} offen {GPOL}")
    a(f"s_add_u32 s{sSpin}, s{sSpin}, 1", f"s_cmp_ge_u32 s{sSpin}, 0x20000", "s_cbranch_scc1 L_hdone")
    a("s_waitcnt vmcnt(0)")
    a(f"v_cmp_ne_u32 vcc, s{sTag32}, v{HD+2}", "s_cbranch_vccz L_hdone")
    if SLEEP: a(f"s_sleep {SLEEP}")
    a("s_branch L_hpoll")
    a("L_hdone:")
    a("L_dpoll:")
    a(f"buffer_load_dwordx4 v[{HD}:{HD+3}], v{T[0]}, s[{sWS}:{sWS+3}], s{sTmp2} offen {GPOL}")
    a(f"s_mov_b32 s{sTmp}, s{sTmp2}")
    for p in range(8):
        a(f"buffer_load_dwordx4 v[{RG+8*p}:{RG+8*p+3}], v{T[1]}, s[{sWS}:{sWS+3}], s{sTmp} offen {GPOL}")
        a(f"buffer_load_dwordx4 v[{RG+8*p+4}:{RG+8*p+7}], v{T[2]}, s[{sWS}:{sWS+3}], s{sTmp} offen offset:1024 {GPOL}")
        a(f"s_add_u32 s{sTmp}, s{sTmp}, 2048")
    a("s_waitcnt vmcnt(16)")
    CK = T[3]
    a(f"v_xor_b32 v{CK}, v{HD}, v{TAGV}", f"v_bitop3_b32 v{CK}, v{CK}, v{HD+1}, v{TAGV} bitop3:0xf6", f"v_and_b32 v{CK}, 0xff, v{CK}")
    a(f"v_xor_b32 v{T[4]}, s{sTag32}, v{HD+2}", f"v_xor_b32 v{T[5]}, s{sTag32}, v{HD+3}", f"v_or3_b32 v{T[7]}, v{CK}, v{T[4]}, v{T[5]}")
    a(f"v_and_b32 v{HD}, s{sTM}, v{HD}", "s_nop 1")
    a(f"v_max_f32_dpp v{T[4]}, v{HD}, v{HD} quad_perm:[1,0,3,2] row_mask:0xf bank_mask:0xf")
    a(f"v_sub_f32 v{T[4]}, v{HD}, v{T[4]}", f"v_exp_f32 v{T[4]}, v{T[4]}", "s_nop 0", f"v_mul_f32 v{T[5]}, v{T[4]}, v{HD+1}", "s_nop 1")
    a(f"v_add_f32_dpp v{T[5]}, v{T[5]}, v{T[5]} quad_perm:[1,0,3,2] row_mask:0xf bank_mask:0xf")
    a(f"v_rcp_f32 v{T[5]}, v{T[5]}", "s_nop 0", f"v_mul_f32 v{T[4]}, v{T[4]}, v{T[5]}", "s_nop 0")
    for p in range(8): a(f"v_readlane_b32 s{sWt+p}, v{T[4]}, {p}")
    GA = D0
    a(f"v_mov_b32 v{CK}, 0")
    for p in range(8):
        a(f"s_waitcnt vmcnt({14-2*p})")
        for e in range(8):
            r = RG + 8*p + e
            a(f"v_bitop3_b32 v{CK}, v{CK}, v{r}, v{TAGV} bitop3:0xf6")
            if p == 0: a(f"v_mul_f32 v{GA+e}, s{sWt}, v{r}")
            else: a(f"v_fmac_f32 v{GA+e}, s{sWt+p}, v{r}")
    a(f"v_and_b32 v{CK}, 0xff, v{CK}", f"v_or_b32 v{CK}, v{CK}, v{T[7]}", f"v_cmp_ne_u32 vcc, 0, v{CK}")
    a(f"s_add_u32 s{sSpin}, s{sSpin}, 1", f"s_cmp_ge_u32 s{sSpin}, 0x20000", "s_cbranch_scc1 L_ddone")
    a("s_cbranch_vccnz L_dpoll")
    a("L_ddone:")
    a(f"s_mul_i32 s{sTmp}, s{sW}, 1792", f"v_add_u32 v{T[1]}, s{sTmp}, v{T[1]}", f"v_add_u32 v{T[2]}, s{sTmp}, v{T[2]}")
    a(f"ds_write_b128 v{T[1]}, v[{GA}:{GA+3}] offset:{GPo}", f"ds_write_b128 v{T[2]}, v[{GA+4}:{GA+7}] offset:{GPo+1024}")
    a("s_waitcnt lgkmcnt(0)", "s_barrier")
    stamp(5)
    Lr = g.label("L_nor")
    a(f"s_cmp_lg_u32 s{sJ}, 0", f"s_cbranch_scc1 {Lr}", f"s_cmp_lg_u32 s{sW}, 3", f"s_cbranch_scc1 {Lr}")
    a(f"s_lshl_b32 s{sTmp}, s{sB}, 7", f"s_add_u32 s{sTmp}, s{sTmp}, {ROFF}", f"v_mov_b32 v{T[4]}, s{sTag32}", f"v_mov_b32 v{T[5]}, 0", "s_mov_b64 exec, 1")
    a(f"buffer_store_dword v{T[4]}, v{T[5]}, s[{sWS}:{sWS+3}], s{sTmp} offen", "s_mov_b64 exec, -1")
    a(f"{Lr}:")
    a(f"v_min_u32 v{T[0]}, 55, v{vL}", f"v_lshlrev_b32 v{T[0]}, 5, v{T[0]}")
    R0 = RG
    for w in range(4):
        a(f"ds_read_b128 v[{R0+8*w}:{R0+8*w+3}], v{T[0]} offset:{GPo + 1792*w}", f"ds_read_b128 v[{R0+8*w+4}:{R0+8*w+7}], v{T[0]} offset:{GPo + 1792*w + 16}")
    R1 = RG + 32
    for w in range(4):
        a(f"ds_read_b32 v{R1+2*w}, v{aZA} offset:{GPo + 1792*w}", f"ds_read_b32 v{R1+2*w+1}, v{aZA} offset:{GPo + 1792*w + 256}")
    XF = RG + 40
    unpack(XF, X8, 4)
    a(f"v_lshlrev_b32 v{XF+8}, 16, v{XA0}", f"v_lshlrev_b32 v{XF+9}, 16, v{XA1}")
    a("s_waitcnt lgkmcnt(8)")
    H = RG + 50
    for e in range(8): a(f"v_add_f32 v{R0+e}, v{R0+e}, v{R0+8+e}", f"v_add_f32 v{R0+16+e}, v{R0+16+e}, v{R0+24+e}")
    for e in range(8): a(f"v_add_f32 v{H+e}, v{R0+e}, v{R0+16+e}")
    a("s_waitcnt lgkmcnt(0)")
    for e in range(2): a(f"v_add_f32 v{R1+e}, v{R1+e}, v{R1+2+e}", f"v_add_f32 v{R1+4+e}, v{R1+4+e}, v{R1+6+e}")
    for e in range(2): a(f"v_add_f32 v{H+8+e}, v{R1+e}, v{R1+4+e}")
    def round_pairs(base, n):
        for k in range(0, n, 2): a(f"v_cvt_pk_bf16_f32 v{base+k}, v{base+k}, v{base+k+1}")
        for k in range(0, n, 2): a(f"v_and_b32 v{base+k+1}, s{sHI}, v{base+k}", f"v_lshlrev_b32 v{base+k}, 16, v{base+k}")
    round_pairs(H, 10)
    for e in range(10): a(f"v_add_f32 v{H+e}, v{H+e}, v{XF+e}")
    round_pairs(H, 10)
    a("s_mov_b32 exec_hi, 0x00ffffff")
    a(f"ds_write_b128 v{T[0]}, v[{H}:{H+3}] offset:{HBo}", f"ds_write_b128 v{T[0]}, v[{H+4}:{H+7}] offset:{HBo+16}")
    a("s_mov_b32 exec_hi, -1")
    MU, RS = T[4], T[5]
    for rep in range(2):
        ln_stats(list(range(H, H+8)), MU, RS, T[6], T[7], None, None)
        rng = range(10) if rep == 0 else range(8, 10)
        for e in rng: a(f"v_sub_f32 v{H+e}, v{H+e}, v{MU}")
        if rep == 0: round_pairs(H, 10)
        else: round_pairs(H+8, 2)
        for e in rng: a(f"v_mul_f32 v{H+e}, v{H+e}, v{RS}")
        if rep == 0: round_pairs(H, 10)
    a(f"v_cvt_pk_bf16_f32 v{H+8}, v{H+8}, v{H+8}", f"v_cvt_pk_bf16_f32 v{H+9}, v{H+9}, v{H+9}", "s_nop 1")
    abuild(AB, H+8, 0, H+8, 8)
    for j in range(14):
        A = AB + 4*(j & 1)
        if j + 1 < 14:
            nA = AB + 4*((j+1) & 1); s_ = H + 8 + ((j+1) >> 3); ln_ = (j+1) & 7
        if j == 0: a("s_nop 1")
        mfma(D0, A, W1R + 4*j, "0" if j == 0 else None)
        if j + 1 < 14: abuild(nA, s_, ln_, s_, 8 + ln_); a("s_nop 1")
    a(f"s_mul_i32 s{sTmp}, s{sW}, {512-3584}", f"v_add_u32 v{T[1]}, s{sTmp}, v{aYW}")
    a(f"v_and_b32 v{T[2]}, 1, v{vL}", f"v_lshlrev_b32 v{T[2]}, 3, v{T[2]}", f"v_lshrrev_b32 v{T[3]}, 4, v{vL}", f"v_lshl_add_u32 v{T[2]}, v{T[3]}, 1, v{T[2]}", f"v_bfe_u32 v{T[3]}, v{vL}, 3, 1", f"v_add_u32 v{T[2]}, v{T[2]}, v{T[3]}")
    a(f"s_lshl_b32 s{sTmp}, s{sW}, 4", f"v_add_u32 v{T[2]}, s{sTmp}, v{T[2]}", f"v_lshlrev_b32 v{T[2]}, 2, v{T[2]}")
    a("s_mov_b32 exec_lo, 0x00ff00ff", "s_mov_b32 exec_hi, 0xff00ff00")
    a(f"ds_write_b128 v{T[1]}, v[{D0}:{D0+3}] offset:{APo}")
    a("s_mov_b64 exec, -1", "s_waitcnt lgkmcnt(0)", "s_barrier")
    for k in range(8): a(f"ds_read_b32 v{RG+k}, v{T[2]} offset:{APo + 256*k}")
    a(f"v_lshlrev_b32 v{B1V}, 16, v{B1V}")
    a("s_waitcnt lgkmcnt(0)")
    for k in range(4): a(f"v_add_f32 v{RG+k}, v{RG+k}, v{RG+4+k}")
    a(f"v_add_f32 v{RG}, v{RG}, v{RG+1}", f"v_add_f32 v{RG+2}, v{RG+2}, v{RG+3}", f"v_add_f32 v{T[0]}, v{RG}, v{RG+2}")
    bfr(T[0], T[0]); a(f"v_add_f32 v{T[0]}, v{T[0]}, v{B1V}"); bfr(T[0], T[0])
    beta = 0.7978845608028654; kap = 0.044715
    a(f"v_mul_f32 v{T[1]}, v{T[0]}, v{T[0]}", f"v_mul_f32 v{T[1]}, {hex(f2u(kap))}, v{T[1]}", f"v_fma_f32 v{T[1]}, v{T[1]}, v{T[0]}, v{T[0]}")
    a(f"v_mul_f32 v{T[1]}, {hex(f2u(-2*beta*math.log2(math.e)))}, v{T[1]}", f"v_exp_f32 v{T[1]}, v{T[1]}", "s_nop 0", f"v_add_f32 v{T[1]}, 1.0, v{T[1]}", f"v_rcp_f32 v{T[1]}, v{T[1]}", "s_nop 0")
    a(f"v_mul_f32 v{T[0]}, v{T[0]}, v{T[1]}", f"v_cvt_pk_bf16_f32 v{T[0]}, v{T[0]}, v{T[0]}", "s_nop 1")
    proj(T[0], 2, W2R, "v")
    a("s_nop 4")
    ywrite(Y2o)
    a("s_waitcnt lgkmcnt(0)", "s_barrier")
    a(f"s_cmp_ge_u32 s{sW}, 2", "s_cbranch_scc1 L_final")
    yreduce(Y2o, RG)
    a(f"s_lshl_b32 s{sTmp}, s{sB}, 5", f"s_add_u32 s{sTmp}, s{sTmp}, s{sJ}", f"s_lshl_b32 s{sTmp}, s{sTmp}, 11", f"s_add_u32 s{sTmp}, s{sTmp}, {FOFF}")
    a(f"s_cmp_eq_u32 s{sW}, 0", f"s_cselect_b32 exec_hi, -1, 0xffff")
    a(f"buffer_store_dwordx4 v[{RG}:{RG+3}], v{aYR}, s[{sWS}:{sWS+3}], s{sTmp} offen {HPOL}")
    a("s_mov_b64 exec, -1")
    stamp(6)
    a("s_branch L_fin")
    a("L_final:")
    a(f"s_cmp_lg_u32 s{sW}, 2", "s_cbranch_scc1 L_fin")
    a(f"s_lshl_b32 s{sTmp2}, s{sB}, 16", f"s_lshl_b32 s{sTmp}, s{sJ}, 6", f"s_add_u32 s{sTmp2}, s{sTmp2}, s{sTmp}", f"s_add_u32 s{sTmp2}, s{sTmp2}, {FOFF}")
    a(f"v_lshrrev_b32 v{T[0]}, 2, v{vL}", f"v_and_b32 v{T[1]}, 3, v{vL}", f"v_lshlrev_b32 v{T[1]}, 4, v{T[1]}", f"v_add_u32 v{T[2]}, 16, v{T[0]}", f"v_min_u32 v{T[2]}, 27, v{T[2]}")
    a(f"v_lshl_add_u32 v{T[0]}, v{T[0]}, 11, v{T[1]}", f"v_lshl_add_u32 v{T[2]}, v{T[2]}, 11, v{T[1]}")
    a(f"s_lshl_b32 s{sTmp}, s{sJ}, 6", f"v_add_u32 v{T[3]}, s{sTmp}, v{T[1]}", f"ds_read_b128 v[{D1}:{D1+3}], v{T[3]} offset:{HBo}")
    unpack(RG+8, B2V, 2)
    a(f"s_mov_b32 s{sSpin}, 0")
    a("L_fpoll:")
    a(f"buffer_load_dwordx4 v[{RG}:{RG+3}], v{T[0]}, s[{sWS}:{sWS+3}], s{sTmp2} offen {GPOL}")
    a(f"buffer_load_dwordx4 v[{RG+4}:{RG+7}], v{T[2]}, s[{sWS}:{sWS+3}], s{sTmp2} offen {GPOL}")
    a(f"s_add_u32 s{sSpin}, s{sSpin}, 1", f"s_cmp_ge_u32 s{sSpin}, 0x20000", "s_cbranch_scc1 L_fdone")
    a(f"v_mov_b32 v{T[4]}, 0", "s_waitcnt vmcnt(0)")
    for e in range(8): a(f"v_bitop3_b32 v{T[4]}, v{T[4]}, v{RG+e}, v{TAGV} bitop3:0xf6")
    a(f"v_and_b32 v{T[4]}, 0xff, v{T[4]}", f"v_cmp_ne_u32 vcc, 0, v{T[4]}", "s_cbranch_vccnz L_fpoll")
    a("L_fdone:")
    a("s_waitcnt vmcnt(0) lgkmcnt(0)")
    a("s_mov_b32 exec_hi, 0xffff")
    for e in range(4): a(f"v_add_f32 v{RG+e}, v{RG+e}, v{RG+4+e}")
    a("s_mov_b32 exec_hi, -1", "s_nop 0")
    for rot in (4, 8):
        for e in range(4): a(f"v_add_f32_dpp v{RG+e}, v{RG+e}, v{RG+e} row_ror:{rot} row_mask:0xf bank_mask:0xf")
    for sw in ("v_permlane16_swap_b32", "v_permlane32_swap_b32"):
        for e in range(4): a(f"v_mov_b32 v{RG+4+e}, v{RG+e}")
        a("s_nop 0")
        for e in range(4): a(f"{sw} v{RG+4+e}, v{RG+e}")
        a("s_nop 0")
        for e in range(4): a(f"v_add_f32 v{RG+e}, v{RG+e}, v{RG+4+e}")
    round_pairs(RG, 4)
    for e in range(4): a(f"v_add_f32 v{RG+e}, v{RG+e}, v{RG+8+e}")
    round_pairs(RG, 4)
    for e in range(4): a(f"v_add_f32 v{RG+e}, v{RG+e}, v{D1+e}")
    a(f"v_cvt_pk_bf16_f32 v{RG}, v{RG}, v{RG+1}", f"v_cvt_pk_bf16_f32 v{RG+1}, v{RG+2}, v{RG+3}")
    srd(sX, 56, 57, None, 3584*2)
    a(f"s_mul_i32 s{sTmp}, s{sB}, 896", f"s_lshl_b32 s{sTmp2}, s{sJ}, 5", f"s_add_u32 s{sTmp}, s{sTmp}, s{sTmp2}", f"v_lshrrev_b32 v{T[1]}, 1, v{T[1]}")
    a("s_mov_b64 exec, 15")
    a(f"buffer_store_dwordx2 v[{RG}:{RG+1}], v{T[1]}, s[{sX}:{sX+3}], s{sTmp} offen")
    a("s_mov_b64 exec, -1")
    if stamps:
        a(f"s_memrealtime s[{sSt}:{sSt+1}]", f"s_mul_i32 s{sTmp}, s2, {NSTAMP*8}", f"s_add_u32 s{sTmp}, s{sTmp}, {8*8}")
        a(f"s_add_u32 s60, s60, {STOFF}", "s_addc_u32 s61, s61, 0", "s_waitcnt lgkmcnt(0)")
        a(f"v_mov_b32 v{T[0]}, s{sTmp}", f"v_mov_b32 v{T[2]}, s{sSt}", f"v_mov_b32 v{T[3]}, s{sSt+1}", "s_mov_b64 exec, 1")
        a(f"global_store_dwordx2 v{T[0]}, v[{T[2]}:{T[3]}], s[60:61]")
        a("s_endpgm")
    a("L_fin:")
    if stamps:
        stamp(7)
        a(f"s_cmp_lg_u32 s{sW}, 0", "s_cbranch_scc1 L_end")
        a(f"v_writelane_b32 v{VSP}, s94, 0", f"v_writelane_b32 v{VSP}, s95, 1")
        a("s_getreg_b32 s33, hwreg(HW_REG_XCC_ID, 0, 4)", "s_mul_i32 s33, s33, 100", f"v_writelane_b32 v{VSP}, s33, 18", f"v_writelane_b32 v{VSP}, 0, 19")
        a(f"s_add_u32 s60, s60, {STOFF}", "s_addc_u32 s61, s61, 0", f"s_mul_i32 s{sTmp}, s2, {NSTAMP*8}")
        a(f"v_lshlrev_b32 v{T[0]}, 2, v{vL}", f"v_add_u32 v{T[0]}, s{sTmp}, v{T[0]}")
        a(f"s_cmp_ge_u32 s{sJ}, 28", "s_mov_b32 s33, 0xcffff", "s_cselect_b32 exec_lo, 0xfffff, s33", "s_mov_b32 exec_hi, 0")
        a(f"global_store_dword v{T[0]}, v{VSP}, s[60:61]")
    a("L_end:", "s_endpgm")
    if CODEPF:
        a(".fill 4096, 4, 0xbf810000")
    a('.section .rodata,"a"', ".p2align 6", f".amdhsa_kernel {NAME}_kernel")
    a("  .amdhsa_next_free_vgpr 512", "  .amdhsa_next_free_sgpr 102", "  .amdhsa_accum_offset 256")
    a("  .amdhsa_group_segment_fixed_size 0", "  .amdhsa_kernarg_size 104", "  .amdhsa_user_sgpr_count 2", "  .amdhsa_user_sgpr_kernarg_segment_ptr 1", "  .amdhsa_system_sgpr_workgroup_id_x 1")
    a("  .amdhsa_float_denorm_mode_32 3")
    a(".end_amdhsa_kernel")
    return "\n".join(g.o) + "\n"

if __name__ == "__main__":
    for spec in sys.argv[1:]:
        name, kv = spec.split(":", 1) if ":" in spec else (spec, "")
        kw = {}
        for t in kv.split(","):
            if not t: continue
            k, v = t.split("=")
            kw[k] = int(v) if v.lstrip("-").isdigit() else v.replace("+", " ")
        open(name, "w").write(gen(**kw))
```

```python
import sys, struct, math
NAME = "sequential_preLN__mha_block_cached__mixer_channel_mlp__decode"

def f2u(x): return struct.unpack("<I", struct.pack("<f", x))[0]

class G:
    def __init__(s):
        s.o = []; s.q = []; s.lab = 0
    def a(s, x): s.o.append(x)
    def __call__(s, *xs):
        for x in xs: s.o.append(x)
    def vm(s, text, tag=None):
        s.o.append(text); s.q.append(tag)
    def wait(s, tag, extra="", nop=True):
        if tag not in s.q:
            if nop: s.o.append("s_nop 0")
            return
        idx = max(i for i, t in enumerate(s.q) if t == tag)
        n = len(s.q) - 1 - idx
        assert n <= 63, (tag, n)
        s.o.append(f"s_waitcnt vmcnt({n}){extra}")
        s.q = s.q[idx+1:]
    def label(s, p="L"):
        s.lab += 1; return f"{p}_{s.lab}"

def gen(NST=32, DQ=3, ROT=64, ROTMODE=0, stamps=0, WPOL="", QPOL="", SPOL="nt", VPOL="nt", XPOL="nt", PPOL="", HPOL="sc1", GPOL="sc1", SLEEP=0, CODEPF=0, TAILPF=0, WSOFF=0, RING=8, lo=1, PRE=0, NOQ=0, NOW=0, AHEAD=8, BAR=0, DH=6, DV=5, RCU=7, WEV=1.8, QK=1, WSTART=0, NEND=1, DE=15, UMAX=2, FPF=0, FAST1=1, CW=0, DIAG=0, XPF=2, XPP="sc1", NX=20, K0=4, PW="11 13 12 16 10 9 15 18 14 17 19", PHS="14:4 17:1 19:132", PHTAB=0, APUB=0, PW_=0, XT="2 0 4 2 4 3 4 0", XSRC=0, NP_=3, XTAB=0, XPP_="16 56 84", TK=1, RM=0, LEAD=-1, DL=5, GPRE=0, GS="4,4,4", CHK=2, D2=6, GT=90, BIAS=110, NOX=0, DEG=0, TLB0=0, NMAX=4, TLBPF=0, FW=2, OPOL=""):
    opol = (' ' + OPOL) if OPOL else ''
    if DE is None: DE = DV if DV is not None else DH
    if DV is None: DV = DH
    g = G(); a = g
    PW = [int(x) for x in PW.split()]; assert sorted(PW) == list(range(9, 20))
    PHS = {int(x.split(':')[0]): int(x.split(':')[1]) for x in PHS.split()}
    def perm_t(t): return sum(((t >> k) & 1) << PW[4+k] for k in range(7))
    XOFF = 0x10000
    FOFF = 0x100000
    HOFF = 0x8000
    ROFF = 0x0
    STOFF = 0x20000000
    NSTAMP = 22
    vL, vKV = 0, 1
    T = list(range(2, 10))
    MK = 10; Q = 14; PH = 22; PL = 30; ACC = 38; D0 = 54; D1 = 58; AB = 62
    X8 = 62
    VSP = 70
    RG = 72; W1R = 136; W2R = 192; WQR = 136
    assert RING == 8
    sK, sV, sWQ, sWO, sW1, sW2, sX, sWS = 4, 8, 12, 16, 20, 24, 28, 32
    sW, sI, sH, sB, sJ, sF = 62, 63, 64, 65, 66, 67
    sOff, sRot, sCnt, sTmp, sTmp2 = 68, 69, 70, 71, 72
    sR, sTag32 = 73, 74
    sMB, sMF, sTM32, sPF = 46, 47, 58, 59
    sC = 75
    sHI = 76
    sTM = 77
    sWt = 80
    sSt = 88
    sSpin = 90
    sPC = 92
    kpol = (" " + SPOL) if SPOL else ""
    wpol = (" " + WPOL) if WPOL else ""
    vpol = (" " + VPOL) if VPOL else ""
    qpol = (" " + QPOL) if QPOL else ""
    xpol = (" " + XPOL) if XPOL else ""
    ppol = (" " + PPOL) if PPOL else ""

    a(f"; @launch grid=(256,1,1) block=(256,1,1) lds=16384")
    a('.amdgcn_target "amdgcn-amd-amdhsa--gfx950"')
    a(".text", f".globl {NAME}_kernel", ".p2align 8", f".type {NAME}_kernel,@function", f"{NAME}_kernel:")
    a("s_cmp_ge_u32 s2, 256", "s_cbranch_scc1 L_end")
    SP = [94, 96, 98, 4, 6, 8, 10, 12, 14, 16, 18, 20, 22, 24, 26, 36, 38, 40, 42, 44]
    snames = ["start"]
    def stamp(name):
        if not stamps: return
        a(f"{'s_memtime' if name.startswith('c_') else 's_memrealtime'} s[{SP[len(snames)]}:{SP[len(snames)]+1}]")
        snames.append(name)
    if stamps: a("s_memrealtime s[94:95]")
    a("s_load_dwordx16 s[36:51], s[0:1], 0", "s_load_dwordx8 s[52:59], s[0:1], 64", "s_load_dwordx2 s[60:61], s[0:1], 96")
    a(f"v_lshrrev_b32 v{T[0]}, 6, v0", f"v_and_b32 v{vL}, 63, v0")
    a(f"v_readfirstlane_b32 s{sW}, v{T[0]}")
    a(f"s_and_b32 s{sI}, s2, 7", f"s_lshl_b32 s{sI}, s{sI}, 5", f"s_lshr_b32 s{sTmp}, s2, 3", f"s_add_u32 s{sI}, s{sI}, s{sTmp}")
    a(f"s_lshr_b32 s{sH}, s{sI}, 4", f"s_bfe_u32 s{sB}, s{sI}, 0x30001", f"s_and_b32 s{sTmp}, s{sI}, 1")
    a(f"s_lshl_b32 s{sJ}, s{sH}, 1", f"s_add_u32 s{sJ}, s{sJ}, s{sTmp}", )
    a(f"v_lshrrev_b32 v{T[0]}, 4, v{vL}", f"v_and_b32 v{T[1]}, 15, v{vL}")
    a(f"v_lshlrev_b32 v{T[2]}, 4, v{T[1]}")
    if PW[1] == PW[0] + 1: a(f"v_lshl_add_u32 v{vKV}, v{T[0]}, {PW[0]}, v{T[2]}")
    else: a(f"v_and_b32 v{T[3]}, 1, v{T[0]}", f"v_lshl_add_u32 v{vKV}, v{T[3]}, {PW[0]}, v{T[2]}", f"v_lshrrev_b32 v{T[3]}, 1, v{T[0]}", f"v_lshl_add_u32 v{vKV}, v{T[3]}, {PW[1]}, v{vKV}")
    if PW[3] == PW[2] + 1: a(f"s_lshl_b32 s{sTmp}, s{sW}, {PW[2]}")
    else: a(f"s_and_b32 s{sTmp}, s{sW}, 1", f"s_lshl_b32 s{sTmp}, s{sTmp}, {PW[2]}", f"s_lshr_b32 s{sTmp2}, s{sW}, 1", f"s_lshl_b32 s{sTmp2}, s{sTmp2}, {PW[3]}", f"s_or_b32 s{sTmp}, s{sTmp}, s{sTmp2}")
    a(f"v_add_u32 v{vKV}, s{sTmp}, v{vKV}")
    a(f"s_mul_i32 s{sTmp}, s{sW}, {112*8192}", f"v_lshl_add_u32 v{T[3]}, v{T[0]}, 13, v{T[2]}", f"v_add_u32 v{T[3]}, s{sTmp}, v{T[3]}")
    a(f"v_lshlrev_b32 v{T[4]}, 4, v{vL}", f"v_lshl_add_u32 v{T[5]}, v{T[1]}, 2, v{T[0]}", f"s_mul_i32 s{sTmp}, s{sW}, 112", f"v_add_u32 v{T[5]}, s{sTmp}, v{T[5]}", f"v_lshlrev_b32 v{T[5]}, 1, v{T[5]}")
    a(f"s_lshl_b32 s{sTmp2}, s{sB}, 5", f"s_add_u32 s{sTmp2}, s{sTmp2}, s{sJ}")
    a(f"s_lshl_b32 s{sTmp2}, s{sTmp2}, 20", f"s_mov_b32 s{sRot}, 0")
    for k, m in PHS.items():
        assert k in PW[4:]
        if m & (m-1) == 0: a(f"s_bitcmp1_b32 s{sI}, {m.bit_length()-1}")
        else: a(f"s_and_b32 s{sTmp}, s{sI}, {m}", f"s_bcnt1_i32_b32 s{sTmp}, s{sTmp}", f"s_bitcmp1_b32 s{sTmp}, 0")
        a(f"s_cselect_b32 s{sTmp}, {1 << k}, 0", f"s_xor_b32 s{sRot}, s{sRot}, s{sTmp}")
    a(f"s_mov_b32 s{sK+2}, {1 << 20}", f"s_mov_b32 s{sK+3}, 0x20000")
    a("s_waitcnt lgkmcnt(0)")
    if XTAB: a("s_load_dword s3, s[58:59], 0")
    if PHTAB: a(f"s_lshl_b32 s{sTmp}, s{sI}, 2", f"s_load_dword s{sRot}, s[58:59], s{sTmp}", "s_waitcnt lgkmcnt(0)", f"s_and_b32 s{sRot}, s{sRot}, 0xffe00")
    a(f"s_add_u32 s{sK}, s38, s{sTmp2}", f"s_addc_u32 s{sK+1}, s39, 0", f"s_and_b32 s{sK+1}, s{sK+1}, 0xffff")
    iss = [0]
    NS = 2*NST + NX
    assert 256 - 4*NX >= WQR + 8*DQ
    def hdst(u):
        if u < 2*NST: return ("a", 4*u)
        if u < NS: return ("v", 256 - 4*(NS - u))
        return ("v", RG + 4*(u % 16))
    def hissue():
        u = iss[0]; iss[0] += 1
        r, d = hdst(u)
        srdn, pol = (sK, kpol) if u < 256 else (sV, vpol)
        off = " offset:256" if u & 1 else ""
        if not u & 1: a(f"s_xor_b32 s{sOff}, s{sRot}, {hex(perm_t((u >> 1) & 127))}")
        g.vm(f"buffer_load_dwordx4 {r}[{d}:{d+3}], v{vKV}, s[{srdn}:{srdn+3}], s{sOff} offen{off}{pol}", f"u{u}")
    for _ in range(K0): hissue()
    def srd(s, lo, hi, off, nrec):
        if off is None:
            a(f"s_mov_b32 s{s}, s{lo}", f"s_and_b32 s{s+1}, s{hi}, 0xffff")
        else:
            a(f"s_add_u32 s{s}, s{lo}, {off}", f"s_addc_u32 s{s+1}, s{hi}, 0", f"s_and_b32 s{s+1}, s{s+1}, 0xffff")
        a(f"s_mov_b32 s{s+2}, {nrec}", f"s_mov_b32 s{s+3}, 0x20000")
    if RM: a(f"s_lshr_b32 s{sMB}, s{sI}, 5", f"s_and_b32 s{sMF}, s{sI}, 31")
    else: a(f"s_mov_b32 s{sMB}, s{sB}", f"s_mov_b32 s{sMF}, s{sJ}")
    a(f"s_min_u32 s{sF}, s{sMF}, 27")
    a(f"s_mul_i32 s{sTmp}, s{sB}, 896")
    srd(sX, 36, 37, f"s{sTmp}", 896)
    g.vm(f"buffer_load_dwordx4 v[{X8}:{X8+3}], v{T[4]}, s[{sX}:{sX+3}], 0 offen{xpol}", "x")
    g.vm(f"buffer_load_ushort v{PH}, v{T[5]}, s[{sX}:{sX+3}], 0 offen{xpol}", "x")
    g.vm(f"buffer_load_ushort v{PH+1}, v{T[5]}, s[{sX}:{sX+3}], 0 offen offset:128{xpol}", "x")
    a(f"s_lshl_b32 s{sTmp}, s{sH}, 9")
    srd(sWQ, 42, 43, f"s{sTmp}", 0)
    a(f"s_sub_u32 s{sWQ+2}, {448*8192}, s{sTmp}")
    if NOQ: a(f"s_mov_b32 s{sWQ+2}, 0")
    def qload(j):
        dst = WQR + 8*(j % DQ)
        a(f"s_mov_b32 s{sTmp}, {j*32768}")
        g.vm(f"buffer_load_dwordx4 v[{dst}:{dst+3}], v{T[3]}, s[{sWQ}:{sWQ+3}], s{sTmp} offen{qpol}", f"q{j}a")
        g.vm(f"buffer_load_dwordx4 v[{dst+4}:{dst+7}], v{T[3]}, s[{sWQ}:{sWQ+3}], s{sTmp} offen offset:256{qpol}", f"q{j}b")
    def kstage_upto(n):
        while iss[0] < n: hissue()
    def quota(j): return min(NS, K0 + math.ceil((j+1)*(NS-K0)/28))
    for j in range(DQ):
        qload(j); kstage_upto(quota(j))
        if j == 1:
            srd(sV, 40, 41, f"s{sTmp2}", 1 << 20)
            if TLB0:
                a(f"v_mov_b32 v{T[6]}, 0", "s_mov_b64 exec, 1")
                g.vm(f"buffer_load_dword v{T[7]}, v{T[6]}, s[{sV}:{sV+3}], s{sRot} offen nt", "pf")
                if TLB0 > 1:
                    a(f"s_mul_i32 s{sTmp}, s{sH}, {256*896}", f"v_mov_b32 v{T[2]}, s{sTmp}")
                    g.vm(f"global_load_dword v{T[7]}, v{T[2]}, s[44:45] nt", "pf")
                    a(f"v_add_u32 v{T[2]}, {256*896-4}, v{T[2]}")
                    g.vm(f"global_load_dword v{T[7]}, v{T[2]}, s[44:45] nt", "pf")
                    for p in (48, 52, 50, 54, 56, 60): g.vm(f"global_load_dword v{T[7]}, v{T[6]}, s[{p}:{p+1}] nt", "pf")
                a("s_mov_b64 exec, -1")
            a(f"s_lshl_b32 s{sTmp}, s{sB}, 7", f"s_add_u32 s{sTmp}, s{sTmp}, {ROFF+WSOFF}")
            a(f"s_load_dword s{sR}, s[60:61], s{sTmp}")
            a(f"s_lshl_b32 s{sTmp}, s{sMB}, 7", f"s_add_u32 s{sTmp}, s{sTmp}, {ROFF+WSOFF}")
            a(f"s_load_dword s{sTM32}, s[60:61], s{sTmp}")
            if CODEPF:
                a(f"s_getpc_b64 s[{sPC}:{sPC+1}]", "L_pc:")
                a(f"s_lshl_b32 s{sTmp}, s{sW}, 12", f"v_lshlrev_b32 v{T[6]}, 6, v{vL}", f"v_add_u32 v{T[6]}, s{sTmp}, v{T[6]}")
                for k in range(CODEPF):
                    g.vm(f"global_load_dword v{T[7]}, v{T[6]}, s[{sPC}:{sPC+1}]{ppol}", "pf")
                    a(f"v_add_u32 v{T[6]}, 0x4000, v{T[6]}")
    a(f"s_mov_b32 s{sHI}, 0xffff0000", f"s_mov_b32 s{sTM}, 0xffffff00", f"s_mov_b32 s{sC}, {hex(f2u(math.log2(math.e)/16))}")
    a(f"v_and_b32 v{T[6]}, 1, v{vL}", f"v_lshlrev_b32 v{T[6]}, 4, v{T[6]}", f"v_mov_b32 v{T[2]}, 0xffff", f"v_lshlrev_b32 v{T[2]}, v{T[6]}, v{T[2]}")
    a(f"v_bfe_u32 v{T[6]}, v{vL}, 1, 2")
    for t in range(4):
        a(f"v_cmp_eq_u32 vcc, {t}, v{T[6]}", "s_nop 1", f"v_cndmask_b32 v{MK+t}, 0, v{T[2]}, vcc")

    def allred(op, regs, tmp):
        for rot in (8, 4, 2, 1):
            if len(regs) < 3: a(f"s_nop {2-len(regs)}" if len(regs) < 2 else "s_nop 0")
            for r in regs: a(f"{op}_dpp v{r}, v{r}, v{r} row_ror:{rot} row_mask:0xf bank_mask:0xf")
        for sw in ("v_permlane16_swap_b32", "v_permlane32_swap_b32"):
            for r, t in zip(regs, tmp): a(f"v_mov_b32 v{t}, v{r}")
            a("s_nop 1")
            for r, t in zip(regs, tmp): a(f"{sw} v{t}, v{r}")
            a("s_nop 1")
            for r, t in zip(regs, tmp): a(f"{op} v{r}, v{r}, v{t}")
    def bfr(dst, src):
        a(f"v_cvt_pk_bf16_f32 v{dst}, v{src}, v{src}", f"v_and_b32 v{dst}, s{sHI}, v{dst}")
    def unpack(dst, src, n):
        for k in range(n):
            a(f"v_lshlrev_b32 v{dst+2*k}, 16, v{src+k}", f"v_and_b32 v{dst+2*k+1}, s{sHI}, v{src+k}")
    def ln_stats(E, mu, rs, t0, t1, t2, piv):
        a(f"v_readlane_b32 s{sTmp}, v{E[0]}, 0", f"v_mov_b32 v{mu}, 0", f"v_mov_b32 v{rs}, 0")
        a(f"s_mov_b64 exec, 0x00ffffffffffffff") if False else a("s_mov_b32 exec_hi, 0x00ffffff")
        for k in range(8):
            a(f"v_subrev_f32 v{t0}, s{sTmp}, v{E[k]}", f"v_add_f32 v{mu}, v{mu}, v{t0}", f"v_fmac_f32 v{rs}, v{t0}, v{t0}")
        a("s_mov_b32 exec_hi, -1")
        allred("v_add_f32", [mu, rs], [t0, t1])
        inv = hex(f2u(1.0/448))
        a(f"v_mul_f32 v{mu}, {inv}, v{mu}", f"v_mul_f32 v{rs}, {inv}, v{rs}")
        a(f"v_fma_f32 v{rs}, -v{mu}, v{mu}, v{rs}", f"v_add_f32 v{mu}, s{sTmp}, v{mu}", f"v_max_f32 v{rs}, 0, v{rs}")
        bfr(mu, mu); bfr(rs, rs)
        a(f"v_add_f32 v{rs}, {hex(f2u(1e-5))}, v{rs}"); bfr(rs, rs)
        a(f"v_sqrt_f32 v{rs}, v{rs}", "s_nop 0"); bfr(rs, rs)
        a(f"v_rcp_f32 v{rs}, v{rs}", "s_nop 0")
    def ln_apply(r, mu, rs):
        a(f"v_sub_f32 v{r}, v{r}, v{mu}"); bfr(r, r); a(f"v_mul_f32 v{r}, v{r}, v{rs}")
    def abuild(dst, src, lane, src2=None, lane2=None):
        for t in range(4):
            if src2 is None:
                a(f"v_and_b32_dpp v{dst+t}, v{src}, v{MK+t} row_newbcast:{lane} row_mask:0xf bank_mask:0xf")
            else:
                a(f"v_and_b32_dpp v{dst+t}, v{src}, v{MK+t} row_newbcast:{lane} row_mask:0xf bank_mask:0x3")
        if src2 is not None:
            for t in range(4):
                a(f"v_and_b32_dpp v{dst+t}, v{src2}, v{MK+t} row_newbcast:{lane2} row_mask:0xf bank_mask:0xc")
    def mfma(d, A, B, c=None, br="v"):
        cc = f"v[{d}:{d+3}]" if c is None else c
        a(f"v_mfma_f32_16x16x32_bf16 v[{d}:{d+3}], v[{A}:{A+3}], {br}[{B}:{B+3}], {cc}")

    g.wait("x")
    E = list(range(ACC, ACC+8))
    unpack(ACC, X8, 4)
    a(f"v_lshlrev_b32 v{PH}, 16, v{PH}", f"v_lshlrev_b32 v{PH+1}, 16, v{PH+1}")
    ln_stats(E, ACC+8, ACC+9, ACC+10, ACC+11, ACC+12, None)
    for r in (PH, PH+1):
        ln_apply(r, ACC+8, ACC+9); a(f"v_cvt_pk_bf16_f32 v{r}, v{r}, v{r}")
    a("s_nop 1")
    for j in range(28):
        A = AB + 4*(j & 1)
        abuild(A, PH + (j >> 4), j & 15)
        a("s_nop 0")
        g.wait(f"q{j}a")
        dst = WQR + 8*(j % DQ)
        mfma(D0, A, dst, "0" if j == 0 else None)
        g.wait(f"q{j}b")
        mfma(D1, A, dst+4, "0" if j == 0 else None)
        if j + DQ < 28:
            qload(j+DQ); kstage_upto(quota(j+DQ))
    kstage_upto(NS)
    for t in range(DH): hissue()
    a(f"v_and_b32 v{T[0]}, 15, v{vL}", f"v_lshlrev_b32 v{T[0]}, 5, v{T[0]}", f"v_and_b32 v{T[1]}, 16, v{vL}", f"v_add_u32 v{T[1]}, v{T[0]}, v{T[1]}")
    a(f"s_lshl_b32 s{sTmp}, s{sW}, 10", f"v_add_u32 v{T[1]}, s{sTmp}, v{T[1]}", "s_nop 2")
    a(f"ds_write_b128 v{T[1]}, v[{D0}:{D0+3}]", f"ds_write_b128 v{T[1]}, v[{D1}:{D1+3}] offset:512")
    a("s_waitcnt lgkmcnt(0)", "s_barrier")
    busy = {hdst(u)[1] for u in range(2*NST, iss[0])}
    QG = [r for r in list(range(WQR, 256, 4)) + list(range(RG, RG+64, 4)) if r not in busy][:16]
    assert len(QG) == 16
    for hf in range(2):
        for w in range(4):
            for u in range(2):
                r = QG[(hf*4 + w)*2 + u]
                a(f"ds_read_b128 v[{r}:{r+3}], v{T[0]} offset:{w*1024 + hf*512 + u*16}")
    a(f"s_mul_i32 s{sTmp}, s{sH}, {256*896}")
    srd(sWO, 44, 45, f"s{sTmp}", 256*896)
    a(f"s_lshl_b32 s{sTmp}, s{sF}, 7")
    srd(sW1, 48, 49, f"s{sTmp}", 0)
    a(f"s_sub_u32 s{sW1+2}, {448*3584}, s{sTmp}")
    a(f"s_mul_i32 s{sTmp}, s{sF}, {64*896}")
    srd(sW2, 52, 53, f"s{sTmp}", 64*896)
    a(f"s_cmp_ge_u32 s{sMF}, 28", f"s_cselect_b32 s{sW1+2}, 0, s{sW1+2}", f"s_cselect_b32 s{sW2+2}, 0, s{sW2+2}")
    if NOW: a(f"s_mov_b32 s{sWO+2}, 0", f"s_mov_b32 s{sW1+2}, 0", f"s_mov_b32 s{sW2+2}, 0")
    srd(sWS, 60, 61, (hex(WSOFF) if WSOFF else None), 0x200000)
    for hf in range(2):
        a(f"s_waitcnt lgkmcnt({8*(1-hf)})")
        gq_ = lambda w, e: QG[(hf*4 + w)*2 + (e >> 2)] + (e & 3)
        for e in range(0, 8, 2):
            a(f"v_pk_add_f32 v[{gq_(0,e)}:{gq_(0,e)+1}], v[{gq_(0,e)}:{gq_(0,e)+1}], v[{gq_(1,e)}:{gq_(1,e)+1}]", f"v_pk_add_f32 v[{gq_(2,e)}:{gq_(2,e)+1}], v[{gq_(2,e)}:{gq_(2,e)+1}], v[{gq_(3,e)}:{gq_(3,e)+1}]")
        for e in range(0, 8, 2):
            a(f"v_pk_add_f32 v[{gq_(0,e)}:{gq_(0,e)+1}], v[{gq_(0,e)}:{gq_(0,e)+1}], v[{gq_(2,e)}:{gq_(2,e)+1}]")
        for e in range(4):
            a(f"v_cvt_pk_bf16_f32 v{Q+hf*4+e}, v{gq_(0,2*e)}, v{gq_(0,2*e)+1}")
    stamp("qrdy")
    a(f"s_add_u32 s{sTag32}, s{sR}, 1", f"s_add_u32 s{sTM32}, s{sTM32}, 1")
    a(f"v_lshrrev_b32 v{T[0]}, 4, v{vL}", f"v_bfe_u32 v{T[1]}, v{vL}, 3, 1", f"v_lshl_add_u32 v{T[0]}, v{T[0]}, 1, v{T[1]}")
    a(f"v_and_b32 v{T[1]}, 7, v{vL}", f"s_lshl_b32 s{sTmp}, s{sW}, 4", f"v_add_u32 v{T[4]}, s{sTmp}, v{T[1]}", f"v_lshlrev_b32 v{T[4]}, 4, v{T[4]}")
    a(f"s_movk_i32 s{sTmp}, 896", f"v_mad_u32_u24 v{T[2]}, v{T[0]}, s{sTmp}, v{T[4]}")
    a(f"s_cmp_eq_u32 s{sW}, 3", f"s_cselect_b32 s{sTmp}, 0x10000000, 0", f"s_add_u32 s{sTmp}, s{sTmp}, 128", f"v_add_u32 v{T[4]}, s{sTmp}, v{T[2]}")
    a(f"s_mul_i32 s{sTmp}, s{sW}, 112", f"v_add_u32 v{T[0]}, s{sTmp}, v{T[0]}", f"v_lshlrev_b32 v{T[1]}, 4, v{T[1]}", f"s_movk_i32 s{sTmp}, 3584", f"v_mad_u32_u24 v{T[3]}, v{T[0]}, s{sTmp}, v{T[1]}")

    perm = [None]
    def kdot(j, src):
        acc = ACC + j
        for e in range(8):
            c = "0" if e == 0 else f"v{acc}"
            a(f"v_dot2_f32_bf16 v{acc}, v{src+e}, v{Q+e}, {c}")
    def kreduce(n):
        regs = [(ACC+j, [j]*16) for j in range(16)]
        a("s_nop 2")
        def lvl(regs, ctrl, m0, m1, sel):
            out = []
            for k in range(0, len(regs), 2):
                (r0, l0), (r1, l1) = regs[k], regs[k+1]
                a(f"v_add_f32_dpp v{r0}, v{r0}, v{r0} {ctrl} row_mask:0xf bank_mask:{m0}")
                out.append((r0, [l0[i] if sel(i) == 0 else l1[i] for i in range(16)]))
            for k in range(0, len(regs), 2):
                (r0, l0), (r1, l1) = regs[k], regs[k+1]
                a(f"v_add_f32_dpp v{r0}, v{r1}, v{r1} {ctrl} row_mask:0xf bank_mask:{m1}")
            return out
        regs = lvl(regs, "row_mirror", "0x3", "0xc", lambda i: i >> 3)
        if TK: tick()
        regs = lvl(regs, "row_half_mirror", "0x5", "0xa", lambda i: (i >> 2) & 1)
        for qp in ("[1,0,3,2]", "[2,3,0,1]"):
            for r, _ in regs: a(f"v_add_f32_dpp v{r}, v{r}, v{r} quad_perm:{qp} row_mask:0xf bank_mask:0xf")
        a("s_mov_b32 vcc_lo, 0xaaaaaaaa", "s_mov_b32 vcc_hi, 0xaaaaaaaa")
        a(f"v_cndmask_b32 v{regs[0][0]}, v{regs[0][0]}, v{regs[1][0]}, vcc", f"v_cndmask_b32 v{regs[2][0]}, v{regs[2][0]}, v{regs[3][0]}, vcc")
        a("s_mov_b32 vcc_lo, 0xcccccccc", "s_mov_b32 vcc_hi, 0xcccccccc")
        a(f"v_cndmask_b32 v{PH+n}, v{regs[0][0]}, v{regs[2][0]}, vcc")
        m = [regs[i & 3][1][i] for i in range(16)]
        perm[0] = m
    wl = []
    def vneed(r): return max([-1] + [u for u in range(2*NST, NS) if hdst(u)[1] == r])
    def smov(v): return f"s_movk_i32 s{sTmp}, {v}" if v < 32768 else f"s_mov_b32 s{sTmp}, {v}"
    for jj in range(7):
        for L in range(2):
            r = W1R + 8*jj + 4*L
            wl.append((smov(3584*(16*jj + 8*L)), f"buffer_load_dwordx4 v[{r}:{r+3}], v{T[3]}, s[{sW1}:{sW1+3}], s{sTmp} offen{wpol}", vneed(r)))
    for jj in range(4):
        for L in range(2):
            for ps in range(2):
                r = W2R + (jj*2+ps)*8 + 4*L
                wl.append((smov(896*(16*jj + 8*L)), f"buffer_load_dwordx4 v[{r}:{r+3}], v{T[2+2*ps]}, s[{sW2}:{sW2+3}], s{sTmp} offen{wpol}", vneed(r)))
    for jj in range(16):
        for L in range(2):
            for ps in range(2):
                r = (jj*2+ps)*8 + 4*L
                wl.append((smov(896*(16*jj + 8*L)), f"buffer_load_dwordx4 a[{r}:{r+3}], v{T[2+2*ps]}, s[{sWO}:{sWO+3}], s{sTmp} offen{wpol}", (r//4 if r//4 < 2*NST else -1)))
    def kcons(u):
        j = (u >> 1) % 16; acc = ACC + j; hf = u & 1
        g.wait(f"u{u}", nop=False)
        r, d = hdst(u)
        if r == "a":
            tmp = D0 + 4*(u & 1)
            for e in range(4): a(f"v_accvgpr_read_b32 v{tmp+e}, a{d+e}")
            d = tmp
        for e in range(4):
            c = "0" if (e == 0 and hf == 0) else f"v{acc}"
            a(f"v_dot2_f32_bf16 v{acc}, v{d+e}, v{Q+4*hf+e}, {c}")
        if u % 32 == 31:
            kreduce(u // 32)
            if BAR: a("s_barrier")
    st = dict(con=0, nis=0, wc=0.0)
    def tick():
        u = iss[0]
        depth = DH if u < 256 else DV
        if not (u - 16 < st["con"] or u - 16 < NS): return False
        if u - depth >= 0: g.wait(f"u{u-depth}", nop=False)
        hissue(); st["nis"] += 1
        if st["nis"] > WSTART: st["wc"] += 1.0/WEV
        if wl and st["wc"] >= 1:
            k = next((k for k, w in enumerate(wl) if st["con"] > w[2]), None)
            if k is not None:
                s0, ld, need = wl.pop(k); a(s0); g.vm(ld, "w"); st["wc"] -= 1
        return True
    def run(cons, end):
        while st["con"] < end:
            depth = DH if iss[0] < 256 else DV
            can = tick() if iss[0] - st["con"] <= depth or st["con"] < NS + 16 else False
            n = 0
            while st["con"] < end and n < RCU and iss[0] - st["con"] > depth:
                c = st["con"]; st["con"] += 1; cons(c); n += 1
            assert can or n
    run(kcons, 256)
    inv = [perm[0].index(j) for j in range(16)]
    stamp("Kend")
    if stamps == 2: stamp("c_Kend")
    MC, LS = ACC, ACC+1
    for n in range(8):
        if DEG != 1 and not (DEG == 2 and n & 1) and not (DEG == 3 and n == 0): bfr(PH+n, PH+n)
    a(f"v_max3_f32 v{MC}, v{PH}, v{PH+1}, v{PH+2}", f"v_max3_f32 v{MC}, v{MC}, v{PH+3}, v{PH+4}", f"v_max3_f32 v{MC}, v{MC}, v{PH+5}, v{PH+6}", f"v_max_f32 v{MC}, v{MC}, v{PH+7}")
    allred("v_max_f32", [MC], [T[0]])
    if TK: tick()
    a(f"v_mul_f32 v{MC}, s{sC}, v{MC}")
    for n in range(8): a(f"v_fma_f32 v{PH+n}, v{PH+n}, s{sC}, -v{MC}")
    for n in range(8): a(f"v_exp_f32 v{PH+n}, v{PH+n}")
    a(f"v_add_f32 v{LS}, v{PH}, v{PH+1}")
    for n in range(2, 8): a(f"v_add_f32 v{LS}, v{LS}, v{PH+n}")
    for n in range(8):
        a(f"v_cvt_pk_bf16_f32 v{T[0]}, v{PH+n}, v{PH+n}", f"v_and_b32 v{T[1]}, s{sHI}, v{T[0]}", f"v_sub_f32 v{T[1]}, v{PH+n}, v{T[1]}")
        a(f"v_cvt_pk_bf16_f32 v{PL+n}, v{T[1]}, v{T[1]}", f"v_mov_b32 v{PH+n}, v{T[0]}")
    if TK: tick()
    allred("v_add_f32", [LS], [T[0]])
    OPo, MLo, HBo, STo, APo = 0, 5120, 5184, 6144, 6272
    TAGV = ACC+5
    F0, F2 = ACC, ACC+12
    a(f"s_lshl_b32 s{sTmp}, s{sW}, 3", f"v_mov_b32 v{T[0]}, s{sTmp}", f"ds_write_b64 v{T[0]}, v[{MC}:{MC+1}] offset:{MLo}")
    a(f"s_and_b32 s{sTmp}, s{sTag32}, 0xff", f"v_mov_b32 v{TAGV}, s{sTmp}")
    for e in range(8): a(f"v_mov_b32 v{D0+e}, 0")
    MW, LW, HD, SMP = ACC+2, ACC+3, ACC+6, Q
    sTM0, sEnd1 = 86, 85
    def xch_publish():
        ML = T[0]
        if TK: tick()
        a(f"v_mov_b32 v{HD}, 0", "s_waitcnt lgkmcnt(0)", "s_barrier")
        a(f"ds_read_b128 v[{ML}:{ML+3}], v{HD} offset:{MLo}", f"ds_read_b128 v[{ML+4}:{ML+7}], v{HD} offset:{MLo+16}", "s_waitcnt lgkmcnt(0)")
        a(f"v_max3_f32 v{MW}, v{ML}, v{ML+2}, v{ML+4}", f"v_max_f32 v{MW}, v{MW}, v{ML+6}", f"v_and_b32 v{MW}, s{sTM}, v{MW}")
        FR = (F0, F0+1, F2, F2+1)
        for w in range(4): a(f"v_sub_f32 v{FR[w]}, v{ML+2*w}, v{MW}")
        for w in range(4): a(f"v_exp_f32 v{FR[w]}, v{FR[w]}")
        a(f"v_mul_f32 v{LW}, v{FR[0]}, v{ML+1}")
        for w in range(1, 4): a(f"v_fmac_f32 v{LW}, v{FR[w]}, v{ML+2*w+1}")
        a(f"v_and_b32 v{LW}, s{sTM}, v{LW}")
        L = g.label("L_nohdr")
        if NOX: pass
        elif not APUB:
            a(f"s_cmp_lg_u32 s{sW}, {PW_}", f"s_cbranch_scc1 {L}")
            a(f"v_or_b32 v{T[0]}, v{MW}, v{TAGV}", f"v_or_b32 v{T[1]}, v{LW}, v{TAGV}", f"v_mov_b32 v{T[2]}, s{sTag32}", f"v_mov_b32 v{T[3]}, s{sTag32}")
            a(f"s_lshl_b32 s{sTmp}, s{sI}, 7", f"s_add_u32 s{sTmp}, s{sTmp}, {HOFF}", "s_mov_b64 exec, 1")
            a(f"buffer_store_dwordx4 v[{T[0]}:{T[3]}], v{HD}, s[{sWS}:{sWS+3}], s{sTmp} offen {HPOL}", "s_mov_b64 exec, -1")
        else:
            a(f"s_cmp_lg_u32 s{sW}, {PW_}", f"s_cbranch_scc1 {L}")
            a(f"v_readfirstlane_b32 s12, v{MW}", f"v_readfirstlane_b32 s13, v{LW}", f"s_and_b32 s{sTmp2}, s{sTag32}, 0xff", f"s_mov_b32 s14, s{sTag32}", f"s_mov_b32 s15, s{sTag32}")
            a(f"s_or_b32 s12, s12, s{sTmp2}", f"s_or_b32 s13, s13, s{sTmp2}", f"s_lshl_b32 s{sTmp}, s{sI}, 7", f"s_add_u32 s{sTmp}, s{sTmp}, {HOFF+WSOFF}", f"s_add_u32 s{sTmp2}, s{sTmp}, 8")
            a(f"s_atomic_swap_x2 s[12:13], s[60:61], s{sTmp}", f"s_atomic_swap_x2 s[14:15], s[60:61], s{sTmp2}")
        a(f"{L}:")
    def xch_load(track=False):
        a(f"s_xor_b32 s{sTmp}, s{sI}, 1", f"s_lshl_b32 s{sTmp}, s{sTmp}, 7", f"s_add_u32 s{sTmp}, s{sTmp}, {HOFF}", f"v_mov_b32 v{T[0]}, 0")
        x = f"buffer_load_dwordx4 v[{HD}:{HD+3}], v{T[0]}, s[{sWS}:{sWS+3}], s{sTmp} offen {GPOL}"
        if track: g.vm(x, "hd")
        else: a(x)
    def xch_load1():
        if not NOX: xch_load(True)
    SPL = []
    def xch_decide():
        tbl = sum(int(x) << (4*k) for k, x in enumerate(XT.split()))
        if XSRC: a(f"s_getreg_b32 s{sTmp}, hwreg(HW_REG_XCC_ID, 0, 3)")
        else: a(f"s_and_b32 s{sTmp}, s2, 7")
        a(f"s_lshl_b32 s{sTmp}, s{sTmp}, 2", f"s_lshr_b32 s{sTmp}, {'s3' if XTAB else hex(tbl)}, s{sTmp}", f"s_and_b32 s{sTmp}, s{sTmp}, 7", f"s_min_u32 s{sTmp}, s{sTmp}, {NMAX}", f"s_sub_u32 s{sEnd1}, 7, s{sTmp}")
    def xch_finish():
        Lc, Ld = g.label("L_xc"), g.label("L_xd")
        g.wait("hd", nop=False)
        a(f"s_mov_b32 s{sSpin}, 0", f"{Lc}:")
        a(f"v_xor_b32 v{T[1]}, v{HD}, v{TAGV}", f"v_bitop3_b32 v{T[1]}, v{T[1]}, v{HD+1}, v{TAGV} bitop3:0xf6", f"v_and_b32 v{T[1]}, 0xff, v{T[1]}")
        a(f"v_xor_b32 v{T[2]}, s{sTag32}, v{HD+2}", f"v_xor_b32 v{T[3]}, s{sTag32}, v{HD+3}", f"v_or3_b32 v{T[1]}, v{T[1]}, v{T[2]}, v{T[3]}", f"v_cmp_ne_u32 vcc, 0, v{T[1]}", (f"s_branch {Ld}" if NOX else f"s_cbranch_vccz {Ld}"))
        a(f"s_add_u32 s{sSpin}, s{sSpin}, 1", f"s_cmp_ge_u32 s{sSpin}, 0x20000", f"s_cbranch_scc1 {Ld}")
        xch_load()
        a("s_waitcnt vmcnt(0)", f"s_branch {Lc}", f"{Ld}:")
        a(f"v_and_b32 v{HD}, s{sTM}, v{HD}", f"v_and_b32 v{HD+1}, s{sTM}, v{HD+1}", f"v_max_f32 v{T[1]}, v{HD}, v{MW}")
        a(f"v_sub_f32 v{HD}, v{HD}, v{T[1]}", f"v_sub_f32 v{MW}, v{MW}, v{T[1]}", f"v_exp_f32 v{HD}, v{HD}", f"v_exp_f32 v{MW}, v{MW}", "s_nop 0")
        a(f"v_mul_f32 v{HD}, v{HD}, v{HD+1}", f"v_mul_f32 v{LW}, v{MW}, v{LW}", f"v_add_f32 v{LW}, v{LW}, v{HD}", f"v_rcp_f32 v{LW}, v{LW}", "s_nop 0", f"v_mul_f32 v{MW}, v{MW}, v{LW}")
        for r in (F0, F0+1, F2, F2+1): a(f"v_mul_f32 v{r}, v{r}, v{MW}")
        if TK: tick()
        if D2: xch_decide()
    NP = NP_
    sB0, sB1 = 84, 83
    XP = [int(x) for x in XPP_.split()]
    def vissue(uu):
        d = RG + 4*(uu % 16)
        off = " offset:256" if uu & 1 else ""
        if not uu & 1: a(f"s_xor_b32 s{sOff}, s{sB0 if uu < 32 else sB1}, {hex(perm_t((uu >> 1) & 15))}")
        a(f"buffer_load_dwordx4 v[{d}:{d+3}], v{vKV}, s[{sV}:{sV+3}], s{sOff} offen{off}{vpol}")
    def vstep(j, last, DV):
        A = AB + 4*(j & 1)
        if lo: abuild(A, PH+NP, inv[j], PL+NP, inv[j])
        else: abuild(A, PH+NP, inv[j])
        for hf in range(2):
            u = 2*j + hf
            rem = (31 - u) if last else 99
            ng = 2*min(7, max(0, (u-16)//2)) if (last and GPRE == 1) else 0
            a(f"s_waitcnt vmcnt({min(DV-1, rem) + ng})")
            if not (last and u + DV >= 32):
                vissue(u + DV)
            elif hf == 0: a("s_nop 0")
            mfma(D0 + 4*hf, A, RG + 4*(u % 16))
        if last and GPRE == 1 and 8 <= j < 15: last(j-8)
    def vcons(uu):
        u = uu - 256; n = u >> 5; j = (u >> 1) & 15; A = AB + 4*(j & 1)
        if not u & 1:
            if lo: abuild(A, PH+n, inv[j], PL+n, inv[j])
            else: abuild(A, PH+n, inv[j])
            a("s_nop 0")
            g.wait(f"u{uu}")
        else: g.wait(f"u{uu}", nop=False)
        mfma(D0 + 4*(u & 1), A, RG + 4*(uu % 16))
    ev = [(XP[0], xch_publish), (XP[1], xch_load1), (XP[2], xch_finish)] + [(x, (lambda k=k: rank_sample(k))) for k, x in enumerate(SPL)]
    for x, fn in sorted(ev, key=lambda e: e[0]):
        run(vcons, 256 + x)
        if fn is xch_publish: assert not wl, len(wl)
        fn()
    run(vcons, 256 + 32*NP)
    assert iss[0] == 256 + 32*NP + DV and g.q[-DV:] == [f"u{256+32*NP+k}" for k in range(DV)], (iss, g.q)
    def vloop(lab, depth, end, hooks=None):
        a(f"{lab}:")
        for j in range(16): vstep(j, False, depth)
        for k in range(NP, 7): a(f"v_mov_b32 v{PH+k}, v{PH+k+1}", f"v_mov_b32 v{PL+k}, v{PL+k+1}")
        for cnt, fn in (hooks or []):
            L = g.label("L_hk")
            a(f"s_cmp_lg_u32 s{sCnt}, {cnt}", f"s_cbranch_scc1 {L}"); fn(); a(f"{L}:")
        a(f"s_mov_b32 s{sB0}, s{sB1}", f"s_add_u32 s{sTmp2}, s{sCnt}, 2", f"s_mov_b32 s{sB1}, s{sRot}")
        for k in range(3): a(f"s_bitcmp1_b32 s{sTmp2}, {k}", f"s_cselect_b32 s{sTmp}, {1 << PW[8+k]}, 0", f"s_xor_b32 s{sB1}, s{sB1}, s{sTmp}")
        a(f"s_add_u32 s{sCnt}, s{sCnt}, 1", f"s_cmp_lt_u32 s{sCnt}, {end}", f"s_cbranch_scc1 {lab}")
    a(f"s_mov_b32 s{sCnt}, {NP}", f"s_xor_b32 s{sB0}, s{sRot}, {hex(perm_t(16*NP))}", f"s_xor_b32 s{sB1}, s{sRot}, {hex(perm_t(16*NP+16))}")
    if not D2: a(f"s_mov_b32 s{sEnd1}, {8-NEND}")
    a(f"s_cmp_ge_u32 s{sCnt}, s{sEnd1}", "s_cbranch_scc1 L_vskip1")
    vloop("L_vloop", DV, f"s{sEnd1}")
    a("L_vskip1:")
    if stamps: a(f"s_mov_b32 s52, s{sEnd1}")
    DM = D2 if D2 else DE
    for uu in range(DV, DM): vissue(uu)
    if D2 or NEND > 1:
        a(f"s_cmp_ge_u32 s{sCnt}, 7", "s_cbranch_scc1 L_vskip2")
        vloop("L_vloop2", DM, 7)
        a("L_vskip2:")
    a(f"s_mov_b32 s{sRot}, s{sB0}")
    sB0 = sRot
    for uu in range(DM, DE): vissue(uu)
    aOW, aOR, aPUB, SM, SIX, aG, aT, XS = ACC+2, ACC+3, ACC+4, ACC+6, ACC+10, ACC+11, T[4], ACC+14
    B1V, B2V, aHA, aAW, aAR, aF = Q, Q+2, Q+4, Q+5, Q+6, Q+7
    tg, tc, t2, t3 = T[0], T[1], T[2], T[3]
    a(f"v_lshrrev_b32 v{tg}, 4, v{vL}", f"v_and_b32 v{tc}, 15, v{vL}")
    a(f"v_bfe_u32 v{t2}, v{vL}, 1, 2", f"v_and_b32 v{t3}, 1, v{vL}", f"v_lshl_add_u32 v{t2}, v{t2}, 1, v{t3}", f"v_bfe_u32 v{t3}, v{vL}, 4, 1", f"v_lshl_add_u32 v{t2}, v{t2}, 1, v{t3}")
    a(f"v_mul_u32_u24 v{aOW}, 80, v{t2}", f"v_lshrrev_b32 v{t2}, 5, v{vL}", f"v_bfe_u32 v{t3}, v{vL}, 3, 1", f"v_lshl_add_u32 v{t2}, v{t2}, 1, v{t3}", f"v_lshl_add_u32 v{aOW}, v{t2}, 3, v{aOW}")
    a(f"s_mul_i32 s{sTmp}, s{sW}, 1280", f"v_add_u32 v{aOW}, s{sTmp}, v{aOW}")
    a(f"v_and_b32 v{t2}, 3, v{vL}", f"v_lshl_add_u32 v{t2}, v{t2}, 2, v{tg}", f"v_mul_u32_u24 v{aOR}, 80, v{t2}", f"v_lshl_add_u32 v{aOR}, v{t3}, 5, v{aOR}")
    a(f"v_lshlrev_b32 v{t2}, 2, v{t2}", f"v_add_u32 v{aT}, v{t2}, v{t3}", f"s_mul_i32 s{sTmp}, s{sW}, 112", f"v_add_u32 v{aHA}, s{sTmp}, v{t2}", f"v_lshlrev_b32 v{aHA}, 1, v{aHA}")
    a(f"v_lshrrev_b32 v{aAR}, 3, v{aT}", f"v_lshl_add_u32 v{aAR}, v{aT}, 1, v{aAR}", f"v_lshlrev_b32 v{aAR}, 4, v{aAR}", f"s_lshl_b32 s{sTmp}, s{sF}, 6", f"v_add_u32 v{aT}, s{sTmp}, v{aT}", f"v_lshlrev_b32 v{aT}, 1, v{aT}")
    a(f"global_load_ushort v{B1V}, v{aT}, s[50:51]{xpol}", f"global_load_ushort v{B1V+1}, v{aT}, s[50:51] offset:4{xpol}")
    a(f"v_and_b32 v{t2}, 7, v{vL}", f"v_bfe_u32 v{aAW}, v{vL}, 4, 1", f"v_lshl_add_u32 v{aAW}, v{t2}, 1, v{aAW}", f"v_lshlrev_b32 v{aAW}, 7, v{aAW}", f"v_lshl_add_u32 v{aAW}, v{t3}, 2, v{aAW}", f"v_lshl_add_u32 v{aAW}, v{t2}, 4, v{aAW}")
    a(f"s_lshl_b32 s{sTmp}, s{sW}, 3", f"v_add_u32 v{aAW}, s{sTmp}, v{aAW}")
    a(f"v_lshrrev_b32 v{t2}, 5, v{vL}", f"v_lshlrev_b32 v{aPUB}, 8, v{t2}", f"v_lshl_add_u32 v{aPUB}, v{tc}, 5, v{aPUB}", f"v_and_b32 v{t3}, 16, v{vL}", f"v_add_u32 v{aPUB}, v{aPUB}, v{t3}")
    a(f"s_lshl_b32 s{sTmp}, s{sW}, 9", f"v_add_u32 v{aPUB}, s{sTmp}, v{aPUB}", f"s_cmp_eq_u32 s{sW}, 3", f"s_cselect_b32 s{sTmp2}, 15, 31")
    a(f"v_and_b32 v{t3}, 31, v{vL}", f"v_min_u32 v{t3}, s{sTmp2}, v{t3}", f"v_lshlrev_b32 v{aG}, 4, v{t3}", f"v_lshl_add_u32 v{aG}, v{t2}, 15, v{aG}", f"v_add_u32 v{aG}, s{sTmp}, v{aG}")
    aG7, TG7, aBP, aBF, TGF = PH+4, PH+6, PL+4, PL+5, PL+6
    vKV2, sOwn = T[7], sH
    a(f"v_lshrrev_b32 v{T[5]}, 4, v{t3}", f"v_and_b32 v{T[6]}, 1, v{t3}", f"v_lshl_add_u32 v{T[5]}, v{T[5]}, 1, v{T[6]}", f"v_bfe_u32 v{T[6]}, v{t3}, 1, 3", f"v_lshl_add_u32 v{T[5]}, v{T[5]}, 4, v{T[6]}", f"v_lshlrev_b32 v{aBP}, 2, v{T[5]}")
    TAGM = vKV2
    a(f"s_and_b32 s{sTmp}, s{sTM32}, 0xff", f"v_mov_b32 v{TAGM}, s{sTmp}")
    a(f"s_cmp_lt_u32 s{sJ}, 16", "s_cselect_b32 vcc_lo, -1, 0", "s_cselect_b32 vcc_hi, 0, -1", f"s_cmp_eq_u32 s{sB}, s{sMB}", "s_cselect_b64 vcc, vcc, 0", f"s_cselect_b32 s{sOwn}, 0, -1", f"v_mov_b32 v{T[5]}, 0x10000000")
    a(f"v_cndmask_b32 v{T[5]}, v{aG}, v{T[5]}, vcc", f"v_cndmask_b32 v{T[6]}, v{TAGM}, 0, vcc")
    a(f"s_bitcmp1_b32 s{sJ}, 0", "s_cselect_b64 vcc, -1, 0")
    a(f"v_cndmask_b32 v{aG7}, v{T[5]}, v{aG}, vcc", f"v_cndmask_b32 v{aG7+1}, v{aG}, v{T[5]}, vcc", f"v_cndmask_b32 v{TG7}, v{T[6]}, v{TAGM}, vcc", f"v_cndmask_b32 v{TG7+1}, v{TAGM}, v{T[6]}, vcc")
    a(f"s_lshl_b32 s{sTmp}, s{sW}, 8", f"v_lshlrev_b32 v{t3}, 3, v{t3}", f"v_add_u32 v{aF}, s{sTmp}, v{t3}")
    a(f"s_mul_i32 s{sTmp}, s{sMB}, 896", f"v_add_u32 v{T[5]}, s{sTmp}, v{aF}", f"global_load_dwordx2 v[{XS}:{XS+1}], v{T[5]}, s[36:37]{xpol}")
    a(f"v_and_b32 v{t3}, 3, v{vL}", f"v_lshlrev_b32 v{t3}, 3, v{t3}", f"s_lshl_b32 s{sTmp}, s{sF}, 5", f"v_add_u32 v{t3}, s{sTmp}, v{t3}")
    a(f"global_load_dwordx2 v[{B2V}:{B2V+1}], v{t3}, s[54:55]{xpol}")
    a(f"v_bfe_u32 v{t2}, v{vL}, 2, 1", f"v_cmp_eq_u32 vcc, 0, v{t2}", f"v_mov_b32 v{t3}, 0xffff", f"v_and_b32 v{SIX}, 3, v{vL}")
    a(f"v_cndmask_b32 v{SM}, 0, v{t3}, vcc", f"v_cndmask_b32 v{SM+1}, v{t3}, 0, vcc", f"v_mul_u32_u24 v{SIX}, 0x5555, v{SIX}")
    a(f"v_lshlrev_b32 v{SM+2}, 16, v{SM}", f"v_lshlrev_b32 v{SM+3}, 16, v{SM+1}")
    sPX, sGB, sPB, sDone = 78, 79, 91, 100
    sEX, sIN, sRU, sU = 101, 3, 88, 80
    _al = list(range(4, 62)) + [sW, sI, sH, sB, sJ, sF, sOff, sRot, sCnt, sTmp, sTmp2, sR, sTag32, sC, sHI, sTM, sSpin, sPC, sPC+1, sPX, sGB, sPB, sDone, sEX, sIN, sRU, 89] + list(range(sU, sU+8)) + [94, 95, 96, 97, 98, 99]
    assert len(_al) == len(set(_al)), sorted(_al)
    a(f"s_cmp_eq_u32 s{sW}, 3", f"s_cselect_b32 s{sPX}, 0, 0x00ff00ff", f"s_cselect_b32 s{sEX}, 0xffff, -1", f"s_mov_b32 s{sIN}, {hex(f2u(1.0/128))}", f"s_cselect_b32 s{sIN}, {hex(f2u(1.0/64))}, s{sIN}")
    a(f"s_bfe_u32 s{sRU}, s{sJ}, 0x30001")
    a(f"s_lshl_b32 s{sGB}, s{sB}, 16", f"s_lshl_b32 s{sPB}, s{sJ}, 11", f"s_add_u32 s{sPB}, s{sPB}, s{sGB}", f"s_add_u32 s{sPB}, s{sPB}, {XOFF}")
    a(f"s_lshl_b32 s{sGB}, s{sMB}, 16", f"s_lshl_b32 s{sPF}, s{sMF}, 11", f"s_add_u32 s{sPF}, s{sPF}, s{sGB}", f"s_add_u32 s{sPF}, s{sPF}, {FOFF}", f"s_add_u32 s{sGB}, s{sGB}, {XOFF}")
    a(f"s_cmp_ge_u32 s{sMF}, 28", f"s_cselect_b32 s{sGB}, 0x10000000, s{sGB}")
    for k in range(8):
        a(f"s_add_u32 s{sU+k}, s{sRU}, {k+1}", f"s_and_b32 s{sU+k}, s{sU+k}, 7", f"s_lshl_b32 s{sU+k}, s{sU+k}, 12", f"s_add_u32 s{sU+k}, s{sU+k}, s{sGB}")
    aF0, aF1, sFB = 71, 70, 89
    a(f"s_lshl_b32 s{sFB}, s{sMB}, 16", f"s_lshl_b32 s{sTmp}, s{sF}, 6", f"s_add_u32 s{sFB}, s{sFB}, s{sTmp}", f"s_add_u32 s{sFB}, s{sFB}, {FOFF}")
    a(f"v_lshrrev_b32 v{T[0]}, 2, v{vL}", f"v_and_b32 v{T[1]}, 3, v{vL}", f"v_lshlrev_b32 v{T[1]}, 4, v{T[1]}", f"v_add_u32 v{T[2]}, 16, v{T[0]}", f"v_min_u32 v{T[2]}, 27, v{T[2]}")
    a(f"v_lshl_add_u32 v{aF0}, v{T[0]}, 11, v{T[1]}", f"v_lshl_add_u32 v{aF1}, v{T[2]}, 11, v{T[1]}", f"v_mov_b32 v{T[3]}, 0x10000000")
    a(f"v_cmp_eq_u32 vcc, s{sMF}, v{T[0]}", f"v_and_b32 v{T[5]}, 1, v{vL}", f"v_bfe_u32 v{T[6]}, v{vL}, 1, 1")
    a(f"v_cndmask_b32 v{aF0}, v{aF0}, v{T[3]}, vcc", f"v_cndmask_b32 v{TGF}, v{TAGM}, 0, vcc")
    a(f"v_cmp_eq_u32 vcc, s{sMF}, v{T[2]}", f"v_lshl_add_u32 v{T[5]}, v{T[5]}, 4, v{T[6]}", f"s_and_b32 s{sTmp}, s{sMF}, 3")
    a(f"v_cndmask_b32 v{aF1}, v{aF1}, v{T[3]}, vcc", f"v_cndmask_b32 v{TGF+1}, v{TAGM}, 0, vcc")
    a(f"s_lshl_b32 s{sTmp}, s{sTmp}, 1", f"s_bfe_u32 s{sTmp2}, s{sMF}, 0x10002", f"s_lshl_b32 s{sTmp2}, s{sTmp2}, 5", f"s_add_u32 s{sTmp}, s{sTmp}, s{sTmp2}")
    a(f"v_add_u32 v{aBF}, s{sTmp}, v{T[5]}", f"v_lshlrev_b32 v{aBF}, 2, v{aBF}")
    sFW = sR
    a(f"s_lshr_b32 s{sFW}, s{sMF}, 3")
    if XPF:
        xpp = (" " + XPP) if XPP else ""
        a("s_mov_b32 exec_lo, 0x00110011", f"s_and_b32 exec_hi, s{sPX}, 0x00110011", )
        a(f"buffer_load_dword v{T[7]}, v{aPUB}, s[{sWS}:{sWS+3}], s{sPB} offen{xpp}")
        if XPF > 1:
            a(f"buffer_load_dword v{T[7]}, v{aPUB}, s[{sWS}:{sWS+3}], s{sPF} offen{xpp}")
        a("s_mov_b64 exec, -1")
    if FPF:
        L = g.label("L_nofpf")
        a(f"s_cmp_lg_u32 s{sW}, s{sFW}", f"s_cbranch_scc1 {L}")
        a(f"buffer_load_dword v{T[7]}, v{aF0}, s[{sWS}:{sWS+3}], s{sFB} offen {GPOL}", f"buffer_load_dword v{T[7]}, v{aF1}, s[{sWS}:{sWS+3}], s{sFB} offen {GPOL}")
        a(f"{L}:")
    if TAILPF:
        a(f"s_getpc_b64 s[{sPC}:{sPC+1}]")
        a(f"v_lshlrev_b32 v{T[6]}, 6, v{vL}", f"s_lshl_b32 s{sTmp}, s{sW}, 12", f"v_add_u32 v{T[6]}, s{sTmp}, v{T[6]}")
        a(f"global_load_dword v{T[7]}, v{T[6]}, s[{sPC}:{sPC+1}]{ppol}")
    if TLBPF:
        a(f"v_mov_b32 v{T[6]}, 0", f"global_load_dword v{T[7]}, v{T[6]}, s[56:57]{ppol}")
        a(f"buffer_load_dword v{T[7]}, v{T[6]}, s[{sWS}:{sWS+3}], 0 offen{ppol}")
    def gissue(r, so):
        own = (so == sU+7)
        a(f"buffer_load_dwordx4 v[{r}:{r+3}], v{aG7 if own else aG}, s[{sWS}:{sWS+3}], s{so} offen {GPOL}")
        a(f"buffer_load_dwordx4 v[{r+4}:{r+7}], v{aG7+1 if own else aG}, s[{sWS}:{sWS+3}], s{so} offen offset:2048 {GPOL}")
    assert DE == 15 or not GPRE
    for j in range(16):
        vstep(j, lambda k: gissue(RG+8*k, sU+k), DE)
    g.q = []
    stamp("Vend")
    gq = [(k, hh) for k in range(8) for hh in range(2)] if GPRE == 2 else []
    gs = [int(x) for x in str(GS).replace(" ", ",").split(",")]
    def gpre(n):
        for _ in range(n):
            if not gq: return
            k, hh = gq.pop(0); r = RG + 8*k + 4*hh
            a(f"buffer_load_dwordx4 v[{r}:{r+3}], v{aG7+hh if k == 7 else aG}, s[{sWS}:{sWS+3}], s{sU+k} offen{' offset:2048' if hh else ''} {GPOL}")
    n0 = min(gs[0], len(gq)); gpre(n0)
    a(f"s_nop {7-n0}")
    for t in range(4): a(f"v_permlane32_swap_b32 v{D0+t}, v{D1+t}")
    O4 = AB
    for t, r in enumerate((0, 2, 1, 3)):
        if lo: a(f"v_add_f32 v{O4+r}, v{D0+t}, v{D1+t}")
        else: a(f"v_mov_b32 v{O4+r}, v{D0+t}")
    a(f"ds_write_b64 v{aOW}, v[{O4}:{O4+1}] offset:{OPo}", f"ds_write_b64 v{aOW}, v[{O4+2}:{O4+3}] offset:{OPo+32}")
    gpre(gs[1])
    a("s_waitcnt lgkmcnt(0)", "s_barrier")
    stamp("B1")
    OT = ((AB, AB+4), (D0, D1), (T[0], T[4]), (MK, PH))
    for w in range(4):
        for hh in range(2): a(f"ds_read_b128 v[{OT[w][hh]}:{OT[w][hh]+3}], v{aOR} offset:{OPo + w*1280 + 16*hh}")
    gpre(gs[2])
    SO = AB
    for w in range(4):
        a(f"s_waitcnt lgkmcnt({6-2*w})")
        Fp = (F0, F0, F2, F2)[w]; o = w & 1
        for k in range(4):
            if w == 0: a(f"v_pk_mul_f32 v[{SO+2*k}:{SO+2*k+1}], v[{SO+2*k}:{SO+2*k+1}], v[{Fp}:{Fp+1}] op_sel_hi:[1,0]")
            else: a(f"v_pk_fma_f32 v[{SO+2*k}:{SO+2*k+1}], v[{OT[w][k>>1]+2*(k&1)}:{OT[w][k>>1]+2*(k&1)+1}], v[{Fp}:{Fp+1}], v[{SO+2*k}:{SO+2*k+1}] op_sel:[0,{o},0] op_sel_hi:[1,{o},1]")
        if w == 1:
            for e in range(8): a(f"v_mov_b32 v{D0+e}, 0")
    S = PL
    for u in range(4): a(f"v_cvt_pk_bf16_f32 v{S+u}, v{SO+2*u}, v{SO+2*u+1}")
    def sbuild(dst, src, q, ts):
        for t in ts: a(f"v_and_b32_dpp v{dst+t}, v{src}, v{SM+t} quad_perm:[{q},{q},{q},{q}] row_mask:0xf bank_mask:0xf")
    def smf(d, A, B, br):
        a(f"v_smfmac_f32_16x16x64_bf16 v[{d}:{d+3}], v[{A}:{A+3}], {br}[{B}:{B+7}], v{SIX}")
    BUF = [AB, AB+4, PH]
    sbuild(BUF[0], S, 0, range(4)); sbuild(BUF[1], S, 1, range(4))
    stamp("T2")
    def proj(nj, breg, br, pre=False):
        for jj in range(nj):
            if pre and (len(gq) >= nj - jj or jj % 2 == 0): gpre(1)
            A = BUF[jj % 3]; nA = BUF[(jj+2) % 3]
            smf(D0, A, breg + (jj*2)*8, br)
            if jj + 2 < nj: sbuild(nA, S + ((jj+2) >> 2), (jj+2) & 3, (0, 1))
            smf(D1, A, breg + (jj*2+1)*8, br)
            if jj + 2 < nj: sbuild(nA, S + ((jj+2) >> 2), (jj+2) & 3, (2, 3))
    def publish(so, tg):
        Z = AB
        a("s_nop 7")
        for t in range(4): a(f"v_permlane32_swap_b32 v{D0+t}, v{D1+t}")
        for t in range(4): a(f"v_add_f32_dpp v{D0+t}, v{D1+t}, v{D0+t} row_ror:8 row_mask:0xf bank_mask:0xf")
        for t in range(4): a(f"v_bfi_b32 v{Z+t}, s{sTM}, v{D0+t}, v{tg}")
        a("s_mov_b32 exec_lo, 0x00ff00ff", f"s_mov_b32 exec_hi, s{sPX}")
        a(f"buffer_store_dwordx4 v[{Z}:{Z+3}], v{aPUB}, s[{sWS}:{sWS+3}], s{so} offen {HPOL}")
        a("s_mov_b64 exec, -1")
    proj(16, 0, "a", True)
    assert not gq
    stamp("Wo")
    publish(sPB, TAGV)
    TAGM = TAGV
    a(f"s_and_b32 s{sTmp}, s{sTM32}, 0xff", f"v_mov_b32 v{TAGM}, s{sTmp}")
    stamp("pub")
    a(f"s_cmp_ge_u32 s{sMF}, 28", "s_cbranch_scc1 L_fin")
    GA = D0
    CK = T[1]
    def tagchk(r, ta=None, tb=None):
        ta = TAGM if ta is None else ta; tb = TAGM if tb is None else tb
        a(f"v_xor_b32 v{CK}, v{r}, v{ta}", f"v_xor_b32 v{T[2]}, v{r+4}, v{tb}")
        for e in (range(1, 4) if CHK == 4 else (2,)): a(f"v_bitop3_b32 v{CK}, v{CK}, v{r+e}, v{ta} bitop3:0xf6", f"v_bitop3_b32 v{T[2]}, v{T[2]}, v{r+4+e}, v{tb} bitop3:0xf6")
        a(f"v_bitop3_b32 v{CK}, v{CK}, v{T[2]}, s{sTM} bitop3:0x54", f"v_cmp_ne_u32 vcc, 0, v{CK}")
    def gacc(r, L, su):
        if su == 7: tagchk(r, TG7, TG7+1)
        else: tagchk(r)
        a(f"v_pk_add_f32 v[{r}:{r+1}], v[{r}:{r+1}], v[{r+4}:{r+5}]", f"v_pk_add_f32 v[{r+2}:{r+3}], v[{r+2}:{r+3}], v[{r+6}:{r+7}]", f"s_cbranch_vccnz {L}")
        a(f"v_pk_add_f32 v[{GA}:{GA+1}], v[{GA}:{GA+1}], v[{r}:{r+1}]", f"v_pk_add_f32 v[{GA+2}:{GA+3}], v[{GA+2}:{GA+3}], v[{r+2}:{r+3}]")
        if su is not None: a(f"s_bitset0_b32 s{sDone}, {su}")
    late = []
    if DIAG == 1: a("s_waitcnt vmcnt(0)"); stamp("ack")
    for e in range(4): a(f"ds_bpermute_b32 v{GA+e}, v{aBP}, v{AB+e}")
    if not GPRE:
        for k in range(7): gissue(RG+8*k, sU+k)
    if not GPRE: gissue(RG+56, sU+7)
    a(f"s_movk_i32 s{sDone}, 0xff", f"s_mov_b32 s{sSpin}, 0", "s_waitcnt lgkmcnt(0)", f"s_mov_b32 exec_lo, s{sOwn}")
    for e in range(4): a(f"v_mov_b32 v{GA+e}, 0")
    a("s_mov_b32 exec_lo, -1")
    if DIAG: stamp("iss")
    if DIAG: a(f"s_waitcnt vmcnt({1 if GPRE else 0})"); stamp("w2")
    for k in range(8):
        L, Lb = g.label("L_g0f"), g.label("L_g0b")
        if k == 0: a(f"s_waitcnt vmcnt({1 if GPRE else 0})")
        gacc(RG+8*k, L, k)
        a(f"{Lb}:"); late.append((L, Lb, k))
    if DIAG: stamp("r0")
    a(f"s_cmp_eq_u32 s{sDone}, 0", "s_cbranch_scc1 L_gdone")
    a("L_gtop:")
    a("s_waitcnt vmcnt(0)")
    for k in range(8):
        L, Lb = g.label("L_gf"), g.label("L_gb")
        a(f"s_bitcmp1_b32 s{sDone}, {k}", f"s_cbranch_scc0 {Lb}")
        gacc(RG+8*k, L, k)
        a(f"{Lb}:"); late.append((L, Lb, k))
    a(f"s_bcnt1_i32_b32 s{sTmp}, s{sDone}", "s_cbranch_scc0 L_gdone")
    if FAST1: a(f"s_bitcmp1_b32 s{sDone}, 7", "s_cbranch_scc1 2", f"s_cmp_eq_u32 s{sTmp}, 1", "s_cbranch_scc1 L_gone")
    a(f"s_add_u32 s{sSpin}, s{sSpin}, 1", f"s_cmp_ge_u32 s{sSpin}, 0x40000", "s_cbranch_scc1 L_gdone")
    if SLEEP: a(f"s_cmp_le_u32 s{sTmp}, {UMAX}", "s_cbranch_scc1 L_gtop", f"s_sleep {SLEEP}")
    a("s_branch L_gtop")
    for L, Lb, k in late:
        a(f"{L}:"); gissue(RG+8*k, sU+k); a(f"s_branch {Lb}")
    if FAST1:
        a("L_gone:")
        a(f"s_ff1_i32_b32 s{sTmp2}, s{sDone}", f"s_add_u32 s{sTmp2}, s{sTmp2}, s{sRU}", f"s_add_u32 s{sTmp2}, s{sTmp2}, 1", f"s_and_b32 s{sTmp2}, s{sTmp2}, 7", f"s_lshl_b32 s{sTmp2}, s{sTmp2}, 12", f"s_add_u32 s{sTmp2}, s{sTmp2}, s{sGB}")
        a("L_gone1:")
        gissue(RG, sTmp2)
        a(f"s_add_u32 s{sSpin}, s{sSpin}, 1", f"s_cmp_ge_u32 s{sSpin}, 0x40000", "s_cbranch_scc1 L_gdone", "s_waitcnt vmcnt(0)")
        gacc(RG, "L_gone1", None)
    a("L_gdone:")
    stamp("dat")
    R2 = RG+32
    XF = R2; H4 = R2+4; HPK = R2+8
    for e in range(4): a(f"v_mov_b32 v{GA+4+e}, v{GA+e}")
    unpack(XF, XS, 2)
    for e in range(4): a(f"v_permlane32_swap_b32 v{GA+4+e}, v{GA+e}")
    a(f"v_pk_add_f32 v[{GA}:{GA+1}], v[{GA}:{GA+1}], v[{GA+4}:{GA+5}]", f"v_pk_add_f32 v[{GA+2}:{GA+3}], v[{GA+2}:{GA+3}], v[{GA+6}:{GA+7}]")
    a(f"v_cvt_pk_bf16_f32 v{HPK}, v{GA}, v{GA+1}", f"v_cvt_pk_bf16_f32 v{HPK+1}, v{GA+2}, v{GA+3}")
    unpack(H4, HPK, 2)
    a(f"v_pk_add_f32 v[{H4}:{H4+1}], v[{H4}:{H4+1}], v[{XF}:{XF+1}]", f"v_pk_add_f32 v[{H4+2}:{H4+3}], v[{H4+2}:{H4+3}], v[{XF+2}:{XF+3}]")
    a(f"v_cvt_pk_bf16_f32 v{HPK}, v{H4}, v{H4+1}", f"v_cvt_pk_bf16_f32 v{HPK+1}, v{H4+2}, v{H4+3}")
    S1, S2 = R2+10, R2+11
    a(f"v_mov_b32 v{S1}, 0", f"v_mov_b32 v{S2}, 0")
    unpack(H4, HPK, 2)
    a(f"ds_write_b64 v{aF}, v[{HPK}:{HPK+1}] offset:{HBo}")
    a(f"v_readlane_b32 s{sTmp}, v{H4}, 0", f"s_mov_b32 exec_lo, s{sEX}", "s_nop 0")
    for e in range(4): a(f"v_subrev_f32 v{H4+e}, s{sTmp}, v{H4+e}")
    a(f"v_add_f32 v{XF}, v{H4}, v{H4+1}", f"v_mul_f32 v{S2}, v{H4}, v{H4}", f"v_add_f32 v{S1}, v{H4+2}, v{H4+3}", f"v_fmac_f32 v{S2}, v{H4+1}, v{H4+1}", f"v_add_f32 v{S1}, v{S1}, v{XF}", f"v_fmac_f32 v{S2}, v{H4+2}, v{H4+2}", f"v_fmac_f32 v{S2}, v{H4+3}, v{H4+3}")
    a("s_mov_b32 exec_lo, -1")
    for rot in (8, 4, 2, 1):
        a("s_nop 0")
        for r in (S1, S2): a(f"v_add_f32_dpp v{r}, v{r}, v{r} row_ror:{rot} row_mask:0xf bank_mask:0xf")
    a("s_nop 0")
    for r in (S1, S2): a(f"v_add_f32_dpp v{r}, v{r}, v{r} row_bcast:15 row_mask:0x2 bank_mask:0xf")
    a(f"s_lshl_b32 s{sCnt}, s{sW}, 3", f"v_mov_b32 v{T[0]}, s{sCnt}", f"v_mul_f32 v{XF}, s{sIN}, v{S1}")
    a(f"v_fma_f32 v{S2}, -v{XF}, v{S1}, v{S2}", f"v_add_f32 v{S1}, s{sTmp}, v{XF}")
    a("s_mov_b32 exec_lo, 0x10000", "s_mov_b32 exec_hi, 0")
    a(f"ds_write_b64 v{T[0]}, v[{S1}:{S1+1}] offset:{STo}")
    a("s_mov_b64 exec, -1")
    a(f"v_min_u32 v{T[1]}, 55, v{vL}", f"v_lshlrev_b32 v{T[1]}, 4, v{T[1]}", f"v_mov_b32 v{T[0]}, 0", f"v_bfe_u32 v{T[2]}, v{vL}, 3, 1", f"v_lshlrev_b32 v{T[2]}, 4, v{T[2]}", f"v_sub_u32 v{T[2]}, 16, v{T[2]}")
    a("s_waitcnt lgkmcnt(0)", "s_barrier")
    stamp("B3")
    ST = R2; HR = R2+8; HA = R2+12; E = R2+16
    a(f"ds_read_b128 v[{ST}:{ST+3}], v{T[0]} offset:{STo}", f"ds_read_b128 v[{ST+4}:{ST+7}], v{T[0]} offset:{STo+16}")
    a(f"ds_read_b128 v[{HR}:{HR+3}], v{T[1]} offset:{HBo}")
    a(f"ds_read_b64 v[{HA}:{HA+1}], v{aHA} offset:{HBo}", f"ds_read_b64 v[{HA+2}:{HA+3}], v{aHA} offset:{HBo+128}")
    MU, RS = T[4], T[6]
    def sdchain(pre):
        seq = [f"v_cvt_pk_bf16_f32 v{RS}, v{RS}, v{RS}", f"v_cvt_pk_bf16_f32 v{MU}, v{MU}, v{MU}", f"v_and_b32 v{RS}, s{sHI}, v{RS}", f"v_and_b32 v{MU}, s{sHI}, v{MU}",
               f"v_add_f32 v{RS}, {hex(f2u(1e-5))}, v{RS}", f"v_cvt_pk_bf16_f32 v{RS}, v{RS}, v{RS}", f"v_and_b32 v{RS}, s{sHI}, v{RS}", f"v_sqrt_f32 v{RS}, v{RS}", None,
               f"v_cvt_pk_bf16_f32 v{RS}, v{RS}, v{RS}", f"v_and_b32 v{RS}, s{sHI}, v{RS}", f"v_rcp_f32 v{RS}, v{RS}", None]
        pre = list(pre)
        for x in seq:
            if x is None: a(pre.pop(0) if pre else "s_nop 0")
            else: a(x)
        for x in pre: a(x)
    a("s_waitcnt lgkmcnt(3)")
    a(f"v_add_f32 v{MU}, v{ST}, v{ST+2}", f"v_fma_f32 v{T[5]}, v{ST+6}, 0.5, v{ST+4}", f"v_add_f32 v{RS}, v{ST+1}, v{ST+3}", f"v_add_f32 v{MU}, v{MU}, v{T[5]}", f"v_add_f32 v{T[7]}, v{ST+5}, v{ST+7}")
    a(f"v_mul_f32 v{MU}, {hex(f2u(2.0/7))}, v{MU}", f"v_add_f32 v{RS}, v{RS}, v{T[7]}")
    for w in range(4): a(f"v_sub_f32 v{ST+2*w}, v{ST+2*w}, v{MU}")
    a(f"v_mul_f32 v{T[5]}, v{ST+6}, v{ST+6}", f"v_mul_f32 v{RS}, {hex(f2u(1.0/448))}, v{RS}", f"v_mul_f32 v{T[5]}, 0.5, v{T[5]}")
    for w in range(3): a(f"v_fmac_f32 v{T[5]}, v{ST+2*w}, v{ST+2*w}")
    a("s_waitcnt lgkmcnt(0)", f"v_fmac_f32 v{RS}, {hex(f2u(2.0/7))}, v{T[5]}")
    unpack(E, HR, 4)
    selA = [f"v_lshlrev_b32 v{E+8+k}, v{T[2]}, v{HA+k}" for k in range(4)] + [f"v_and_b32 v{E+8+k}, s{sHI}, v{E+8+k}" for k in range(4)]
    sdchain(selA)
    def lnapply(rs, last):
        for r in rs: a(f"v_pk_add_f32 v[{r}:{r+1}], v[{r}:{r+1}], v[{MU}:{MU+1}] op_sel_hi:[1,0] neg_lo:[0,1] neg_hi:[0,1]")
        for r in rs: a(f"v_cvt_pk_bf16_f32 v{r}, v{r}, v{r+1}")
        for r in rs: a(f"v_and_b32 v{r+1}, s{sHI}, v{r}", f"v_lshlrev_b32 v{r}, 16, v{r}")
        for r in rs: a(f"v_pk_mul_f32 v[{r}:{r+1}], v[{r}:{r+1}], v[{RS}:{RS+1}] op_sel_hi:[1,0]")
        for k, r in enumerate(rs): a(f"v_cvt_pk_bf16_f32 v{(last+k) if last is not None else r}, v{r}, v{r+1}")
    lnapply([E+2*k for k in range(6)], None)
    a(f"v_mov_b32 v{MU}, 0", f"v_mov_b32 v{RS}, 0", f"s_mov_b32 s{sTmp}, 0x3f803f80", "s_mov_b32 exec_hi, 0x00ffffff")
    for k in range(4): a(f"v_dot2_f32_bf16 v{MU}, v{E+2*k}, s{sTmp}, v{MU}", f"v_dot2_f32_bf16 v{RS}, v{E+2*k}, v{E+2*k}, v{RS}")
    a("s_mov_b32 exec_hi, -1")
    for r in (E+8, E+10): a(f"v_and_b32 v{r+1}, s{sHI}, v{r}", f"v_lshlrev_b32 v{r}, 16, v{r}")
    allred("v_add_f32", [MU, RS], [T[5], T[7]])
    inv448 = hex(f2u(1.0/448))
    a(f"v_mul_f32 v{MU}, {inv448}, v{MU}", f"v_mul_f32 v{RS}, {inv448}, v{RS}", f"v_fma_f32 v{RS}, -v{MU}, v{MU}, v{RS}", f"v_max_f32 v{RS}, 0, v{RS}")
    sdchain([f"v_mov_b32 v{D0+e}, 0" for e in range(4)])
    lnapply([E+8, E+10], S)
    a("s_nop 0")
    stamp("LN")
    sbuild(AB, S, 0, range(4))
    for jj in range(7):
        A = AB + 4*(jj & 1); nA = AB + 4*((jj+1) & 1)
        if jj + 1 < 7: sbuild(nA, S + ((jj+1) >> 2), (jj+1) & 3, (0, 1))
        else: a("s_nop 1")
        smf(D0, A, W1R + 8*jj, "v")
        if jj + 1 < 7: sbuild(nA, S + ((jj+1) >> 2), (jj+1) & 3, (2, 3))
    a(f"v_lshlrev_b32 v{B1V}, 16, v{B1V}", f"v_lshlrev_b32 v{B1V+1}, 16, v{B1V+1}")
    a("s_mov_b32 exec_lo, 0x00ff00ff", "s_mov_b32 exec_hi, 0xff00ff00", "s_nop 3")
    for t in range(4): a(f"ds_write_b32 v{aAW}, v{D0+t} offset:{APo + 32*t}")
    a("s_mov_b64 exec, -1", "s_waitcnt lgkmcnt(0)", "s_barrier")
    stamp("B4")
    for x in range(2):
        for hh in range(2): a(f"ds_read_b128 v[{R2+8*x+4*hh}:{R2+8*x+4*hh+3}], v{aAR} offset:{APo + 64*x + 16*hh}")
    for e in range(8): a(f"v_mov_b32 v{D0+e}, 0")
    G2 = T[4]; U2 = T[6]
    for x in range(2):
        r = R2 + 8*x
        a(f"s_waitcnt lgkmcnt({2-2*x})")
        a(f"v_pk_add_f32 v[{r}:{r+1}], v[{r}:{r+1}], v[{r+2}:{r+3}]", f"v_pk_add_f32 v[{r+4}:{r+5}], v[{r+4}:{r+5}], v[{r+6}:{r+7}]", f"v_pk_add_f32 v[{r}:{r+1}], v[{r}:{r+1}], v[{r+4}:{r+5}]", f"v_add_f32 v{G2+x}, v{r}, v{r+1}")
    def rnd2(r):
        a(f"v_cvt_pk_bf16_f32 v{r}, v{r}, v{r+1}", f"v_and_b32 v{r+1}, s{sHI}, v{r}", f"v_lshlrev_b32 v{r}, 16, v{r}")
    rnd2(G2); a(f"v_pk_add_f32 v[{G2}:{G2+1}], v[{G2}:{G2+1}], v[{B1V}:{B1V+1}]"); rnd2(G2)
    beta = 0.7978845608028654; kap = 0.044715
    a(f"v_pk_mul_f32 v[{U2}:{U2+1}], v[{G2}:{G2+1}], v[{G2}:{G2+1}]")
    for x in range(2): a(f"v_mul_f32 v{U2+x}, {hex(f2u(kap))}, v{U2+x}")
    a(f"v_pk_fma_f32 v[{U2}:{U2+1}], v[{U2}:{U2+1}], v[{G2}:{G2+1}], v[{G2}:{G2+1}]")
    for x in range(2): a(f"v_mul_f32 v{U2+x}, {hex(f2u(-2*beta*math.log2(math.e)))}, v{U2+x}")
    for x in range(2): a(f"v_exp_f32 v{U2+x}, v{U2+x}")
    a("s_nop 0")
    for x in range(2): a(f"v_add_f32 v{U2+x}, 1.0, v{U2+x}")
    for x in range(2): a(f"v_rcp_f32 v{U2+x}, v{U2+x}")
    a("s_nop 0", f"v_pk_mul_f32 v[{G2}:{G2+1}], v[{G2}:{G2+1}], v[{U2}:{U2+1}]", f"v_cvt_pk_bf16_f32 v{S}, v{G2}, v{G2+1}", "s_nop 1")
    stamp("gelu")
    sbuild(BUF[0], S, 0, range(4)); sbuild(BUF[1], S, 1, range(4))
    proj(4, W2R, "v")
    publish(sPF, TAGM)
    stamp("pub2")
    a(f"s_cmp_lg_u32 s{sW}, s{sFW}", "s_cbranch_scc1 L_fin")
    def fissue(r):
        a(f"buffer_load_dwordx4 v[{r}:{r+3}], v{aF0}, s[{sWS}:{sWS+3}], s{sFB} offen {GPOL}")
        a(f"buffer_load_dwordx4 v[{r+4}:{r+7}], v{aF1}, s[{sWS}:{sWS+3}], s{sFB} offen {GPOL}")
    FA = R2; FB = R2+8; FH = R2+12; aO = T[4]
    fissue(FA)
    FO = R2+20
    for e in range(4): a(f"ds_bpermute_b32 v{FO+e}, v{aBF}, v{AB+e}")
    a(f"s_lshl_b32 s{sTmp}, s{sMF}, 5", f"v_and_b32 v{aO}, 3, v{vL}", f"v_lshlrev_b32 v{aO}, 3, v{aO}", f"v_add_u32 v{T[5]}, s{sTmp}, v{aO}", f"ds_read_b64 v[{R2+16}:{R2+17}], v{T[5]} offset:{HBo}")
    unpack(FB, B2V, 2)
    a(f"s_mul_i32 s{sCnt}, s{sMB}, 896", f"s_add_u32 s{sCnt}, s{sCnt}, s{sTmp}")
    srd(sX, 56, 57, None, 3584*2)
    a(f"s_mov_b32 s{sSpin}, 0", "s_waitcnt lgkmcnt(0)")
    unpack(FH, R2+16, 2)
    a("s_branch L_fchk")
    a("L_fpoll:")
    fissue(FA)
    a(f"s_add_u32 s{sSpin}, s{sSpin}, 1", f"s_cmp_ge_u32 s{sSpin}, 0x40000", "s_cbranch_scc1 L_fdone")
    a("L_fchk:")
    a("s_waitcnt vmcnt(0)")
    tagchk(FA, TGF, TGF+1)
    a("s_mov_b32 exec_hi, 0xffff")
    a(f"v_pk_add_f32 v[{FA}:{FA+1}], v[{FA}:{FA+1}], v[{FA+4}:{FA+5}]", f"v_pk_add_f32 v[{FA+2}:{FA+3}], v[{FA+2}:{FA+3}], v[{FA+6}:{FA+7}]")
    a("s_mov_b64 exec, 15")
    a(f"v_pk_add_f32 v[{FA}:{FA+1}], v[{FA}:{FA+1}], v[{FO}:{FO+1}]", f"v_pk_add_f32 v[{FA+2}:{FA+3}], v[{FA+2}:{FA+3}], v[{FO+2}:{FO+3}]")
    a("s_mov_b64 exec, -1", "s_cbranch_vccnz L_fpoll")
    a("L_fdone:")
    for rot in (4, 8):
        for e in range(4): a(f"v_add_f32_dpp v{FA+e}, v{FA+e}, v{FA+e} row_ror:{rot} row_mask:0xf bank_mask:0xf")
    for sw in ("v_permlane16_swap_b32", "v_permlane32_swap_b32"):
        for e in range(4): a(f"v_mov_b32 v{FA+4+e}, v{FA+e}")
        for e in range(4): a(f"{sw} v{FA+4+e}, v{FA+e}")
        a(f"v_pk_add_f32 v[{FA}:{FA+1}], v[{FA}:{FA+1}], v[{FA+4}:{FA+5}]", f"v_pk_add_f32 v[{FA+2}:{FA+3}], v[{FA+2}:{FA+3}], v[{FA+6}:{FA+7}]")
    def rnd4():
        a(f"v_cvt_pk_bf16_f32 v{FA}, v{FA}, v{FA+1}", f"v_cvt_pk_bf16_f32 v{FA+2}, v{FA+2}, v{FA+3}")
        a(f"v_and_b32 v{FA+1}, s{sHI}, v{FA}", f"v_and_b32 v{FA+3}, s{sHI}, v{FA+2}", f"v_lshlrev_b32 v{FA}, 16, v{FA}", f"v_lshlrev_b32 v{FA+2}, 16, v{FA+2}")
    rnd4()
    a(f"v_pk_add_f32 v[{FA}:{FA+1}], v[{FA}:{FA+1}], v[{FB}:{FB+1}]", f"v_pk_add_f32 v[{FA+2}:{FA+3}], v[{FA+2}:{FA+3}], v[{FB+2}:{FB+3}]")
    rnd4()
    a(f"v_pk_add_f32 v[{FA}:{FA+1}], v[{FA}:{FA+1}], v[{FH}:{FH+1}]", f"v_pk_add_f32 v[{FA+2}:{FA+3}], v[{FA+2}:{FA+3}], v[{FH+2}:{FH+3}]")
    a(f"v_cvt_pk_bf16_f32 v{FA}, v{FA}, v{FA+1}", f"v_cvt_pk_bf16_f32 v{FA+1}, v{FA+2}, v{FA+3}")
    a("s_mov_b64 exec, 15")
    a(f"buffer_store_dwordx2 v[{FA}:{FA+1}], v{aO}, s[{sX}:{sX+3}], s{sCnt} offen{opol}")
    Lr = g.label("L_nor")
    a(f"s_cmp_lg_u32 s{sMF}, 0", f"s_cbranch_scc1 {Lr}")
    a(f"s_lshl_b32 s{sTmp}, s{sMB}, 7", f"s_add_u32 s{sTmp}, s{sTmp}, {ROFF}", f"v_mov_b32 v{T[5]}, s{sTM32}", "s_mov_b64 exec, 1")
    a(f"buffer_store_dword v{T[5]}, v{aO}, s[{sWS}:{sWS+3}], s{sTmp} offen")
    a(f"{Lr}:")
    a("s_mov_b64 exec, -1")
    if stamps:
        a(f"s_memrealtime s[{sSt}:{sSt+1}]", f"s_mul_i32 s{sTmp}, s2, {NSTAMP*8}", f"s_add_u32 s{sTmp}, s{sTmp}, {8*(NSTAMP-2)}")
        a(f"s_add_u32 s60, s60, {STOFF}", "s_addc_u32 s61, s61, 0", "s_waitcnt lgkmcnt(0)")
        a(f"v_mov_b32 v{T[0]}, s{sTmp}", f"v_mov_b32 v{T[2]}, s{sSt}", f"v_mov_b32 v{T[3]}, s{sSt+1}", "s_mov_b64 exec, 1")
        a(f"global_store_dwordx2 v{T[0]}, v[{T[2]}:{T[3]}], s[60:61]")
        a("s_mov_b64 exec, -1", f"s_sub_u32 s60, s60, {STOFF}", "s_subb_u32 s61, s61, 0")
    a("L_fin:")
    if stamps:
        a(f"s_cmp_lg_u32 s{sW}, 0", "s_cbranch_scc1 L_end", "s_waitcnt lgkmcnt(0)", f"v_mov_b32 v{VSP}, -1")
        for k in range(len(snames)):
            a(f"v_writelane_b32 v{VSP}, s{SP[k]}, {2*k}", f"v_writelane_b32 v{VSP}, s{SP[k]+1}, {2*k+1}")
        a("s_getreg_b32 s33, hwreg(HW_REG_XCC_ID, 0, 4)", "s_mul_i32 s33, s33, 100", "s_add_u32 s33, s33, s52", f"v_writelane_b32 v{VSP}, s33, {2*NSTAMP-2}", f"v_writelane_b32 v{VSP}, s53, {2*NSTAMP-1}")
        a(f"s_add_u32 s60, s60, {STOFF}", "s_addc_u32 s61, s61, 0", f"s_mul_i32 s{sTmp}, s2, {NSTAMP*8}")
        a(f"v_lshlrev_b32 v{T[0]}, 2, v{vL}", f"v_add_u32 v{T[0]}, s{sTmp}, v{T[0]}")
        hi = (1 << (2*NSTAMP-32)) - 1
        a(f"s_cmp_ge_u32 s{sMF}, 28", f"s_mov_b32 s33, {hi & ~(3 << (2*NSTAMP-4-32))}", f"s_cselect_b32 exec_hi, {hi}, s33")
        a(f"global_store_dword v{T[0]}, v{VSP}, s[60:61]")
        g.o.insert(1, "; stamps: " + " ".join(snames))
    a("L_end:", "s_endpgm")
    if CODEPF or TAILPF:
        a(".fill 5120, 4, 0xbf810000")
    a('.section .rodata,"a"', ".p2align 6", f".amdhsa_kernel {NAME}_kernel")
    a("  .amdhsa_next_free_vgpr 512", "  .amdhsa_next_free_sgpr 102", "  .amdhsa_accum_offset 256")
    a("  .amdhsa_group_segment_fixed_size 0", "  .amdhsa_kernarg_size 104", "  .amdhsa_user_sgpr_count 2", "  .amdhsa_user_sgpr_kernarg_segment_ptr 1", "  .amdhsa_system_sgpr_workgroup_id_x 1")
    a("  .amdhsa_float_denorm_mode_32 3")
    a(".end_amdhsa_kernel")
    return "\n".join(g.o) + "\n"

if __name__ == "__main__":
    for spec in sys.argv[1:]:
        name, kv = spec.split(":", 1) if ":" in spec else (spec, "")
        kw = {}
        for t in kv.split(","):
            if not t: continue
            k, v = t.split("=")
            kw[k] = int(v) if v.lstrip("-").isdigit() else (float(v) if v.replace(".","").isdigit() else v.replace("+", " "))
        open(name, "w").write(gen(**kw))
```

```python
import sys, struct, math
NAME = "sequential_preLN__mha_block_cached__mixer_channel_mlp__decode"
def f2u(x): return struct.unpack("<I", struct.pack("<f", x))[0]

class G:
    def __init__(s): s.o = []; s.q = []; s.lab = 0
    def __call__(s, *xs): s.o.extend("    " + x if not x.endswith(":") and not x.startswith((".", ";")) else x for x in xs)
    def vm(s, text, tag): s(text); s.q.append(tag)
    def wait(s, tag, nop=True):
        if tag not in s.q:
            if nop: s("s_nop 0")
            return
        idx = max(i for i, t in enumerate(s.q) if t == tag)
        n = len(s.q) - 1 - idx; assert n <= 63
        s(f"s_waitcnt vmcnt({n})"); s.q = s.q[idx+1:]
    def label(s, p): s.lab += 1; return f"{p}_{s.lab}"

HEADER = """\
;
"""

def gen(NST=32, NX=24, DQ=3, K0=4, DH=6, DV=5, D2=6, DE=15, RCU=7, WEV=2.3, NP=3, BPF=7, QPF=0, WOF=0, WST=0, BAT=0, QAT=0, QS=0, XP=(16, 56, 84),
        PW=(11, 13, 12, 16, 10, 9, 15, 18, 14, 17, 19), PHS=((14, 4), (17, 1), (19, 132)), XT=(2, 0, 4, 2, 4, 3, 4, 0)):
    g = G(); a = g
    def c(t): a("; " + t)
    def perm_t(t): return sum(((t >> k) & 1) << PW[4+k] for k in range(7))
    ROFF, HOFF, XOFF, FOFF = 0x0, 0x8000, 0x10000, 0x100000
    vL, vKV = 0, 1
    T = list(range(2, 10))
    MK, Q, PH, PL, ACC, D0, D1, AB = 10, 14, 22, 30, 38, 54, 58, 62
    X8 = AB
    RG, W1R, W2R, WQR = 72, 136, 192, 136
    sK, sV, sWQ, sWO, sW1, sW2, sX, sWS = 4, 8, 12, 16, 20, 24, 28, 32
    sW, sI, sH, sB, sJ, sF, sOff, sRot, sCnt, sTmp, sTmp2, sR, sTag32, sC, sHI, sTM = range(62, 78)
    sPX, sGB, sU, sRU, sFB, sSpin, sPB, sPF, sDone, sEX, sIN = 78, 79, 80, 88, 89, 90, 91, 92, 93, 94, 95
    sB1, sB0, sEnd1 = 83, 84, 85

    a("; @launch grid=(256,1,1) block=(256,1,1) lds=16384")
    g.o.append(HEADER.rstrip("\n"))
    a('.amdgcn_target "amdgcn-amd-amdhsa--gfx950"', ".text", f".globl {NAME}_kernel", ".p2align 8", f".type {NAME}_kernel,@function", f"{NAME}_kernel:")
    a("s_cmp_ge_u32 s2, 256", "s_cbranch_scc1 L_end")
    a("s_load_dwordx16 s[36:51], s[0:1], 0", "s_load_dwordx8 s[52:59], s[0:1], 64", "s_load_dwordx2 s[60:61], s[0:1], 96")
    a(f"v_lshrrev_b32 v{T[0]}, 6, v0", f"v_and_b32 v{vL}, 63, v0", f"v_readfirstlane_b32 s{sW}, v{T[0]}")
    c("i = (wg&7)*32 + (wg>>3): workgroups that share a head's weights tend to share an L2.  h = i>>4, b = (i>>1)&7, j = 2h + (i&1)")
    a(f"s_and_b32 s{sI}, s2, 7", f"s_lshl_b32 s{sI}, s{sI}, 5", f"s_lshr_b32 s{sTmp}, s2, 3", f"s_add_u32 s{sI}, s{sI}, s{sTmp}")
    a(f"s_lshr_b32 s{sH}, s{sI}, 4", f"s_bfe_u32 s{sB}, s{sI}, 0x30001", f"s_and_b32 s{sTmp}, s{sI}, 1")
    a(f"s_lshl_b32 s{sJ}, s{sH}, 1", f"s_add_u32 s{sJ}, s{sJ}, s{sTmp}")
    c("lane l = (g = l>>4, c = l&15) reads 16 B at column c of the row picked by g, the wave and the step")
    a(f"v_lshrrev_b32 v{T[0]}, 4, v{vL}", f"v_and_b32 v{T[1]}, 15, v{vL}", f"v_lshlrev_b32 v{T[2]}, 4, v{T[1]}")
    a(f"v_and_b32 v{T[3]}, 1, v{T[0]}", f"v_lshl_add_u32 v{vKV}, v{T[3]}, {PW[0]}, v{T[2]}", f"v_lshrrev_b32 v{T[3]}, 1, v{T[0]}", f"v_lshl_add_u32 v{vKV}, v{T[3]}, {PW[1]}, v{vKV}")
    a(f"s_and_b32 s{sTmp}, s{sW}, 1", f"s_lshl_b32 s{sTmp}, s{sTmp}, {PW[2]}", f"s_lshr_b32 s{sTmp2}, s{sW}, 1", f"s_lshl_b32 s{sTmp2}, s{sTmp2}, {PW[3]}", f"s_or_b32 s{sTmp}, s{sTmp}, s{sTmp2}")
    a(f"v_add_u32 v{vKV}, s{sTmp}, v{vKV}")
    c("wq rows of step j: 112w + 16(j>>2) + (j&3) + 4g ; x gather for the same rows")
    a(f"s_mul_i32 s{sTmp}, s{sW}, {112*8192}", f"v_lshl_add_u32 v{T[3]}, v{T[0]}, 15, v{T[2]}", f"v_add_u32 v{T[3]}, s{sTmp}, v{T[3]}")
    a(f"v_lshrrev_b32 v{T[5]}, 2, v{T[1]}", f"v_lshl_add_u32 v{T[5]}, v{T[5]}, 2, v{T[0]}", f"v_and_b32 v{T[4]}, 3, v{T[1]}", f"v_lshl_add_u32 v{T[5]}, v{T[5]}, 2, v{T[4]}")
    a(f"v_lshlrev_b32 v{T[4]}, 4, v{vL}", f"s_mul_i32 s{sTmp}, s{sW}, 112", f"v_add_u32 v{T[5]}, s{sTmp}, v{T[5]}", f"v_lshlrev_b32 v{T[5]}, 1, v{T[5]}")
    c("K/V chunk = (32b + j) MiB; the walk through it starts at a workgroup-specific phase")
    a(f"s_lshl_b32 s{sTmp2}, s{sB}, 5", f"s_add_u32 s{sTmp2}, s{sTmp2}, s{sJ}", f"s_lshl_b32 s{sTmp2}, s{sTmp2}, 20", f"s_mov_b32 s{sRot}, 0")
    for k, m in PHS:
        if m & (m-1) == 0: a(f"s_bitcmp1_b32 s{sI}, {m.bit_length()-1}")
        else: a(f"s_and_b32 s{sTmp}, s{sI}, {m}", f"s_bcnt1_i32_b32 s{sTmp}, s{sTmp}", f"s_bitcmp1_b32 s{sTmp}, 0")
        a(f"s_cselect_b32 s{sTmp}, {1 << k}, 0", f"s_xor_b32 s{sRot}, s{sRot}, s{sTmp}")
    a(f"s_mov_b32 s{sK+2}, {1 << 20}", f"s_mov_b32 s{sK+3}, 0x20000", "s_waitcnt lgkmcnt(0)")
    a(f"s_add_u32 s{sK}, s38, s{sTmp2}", f"s_addc_u32 s{sK+1}, s39, 0", f"s_and_b32 s{sK+1}, s{sK+1}, 0xffff")
    iss = [0]
    NS = 2*NST + NX
    def hdst(u):
        if u < 2*NST: return ("a", 4*u)
        if u < NS: return ("v", 256 - 4*(NS - u))
        return ("v", RG + 4*(u % 16))
    def hissue():
        u = iss[0]; iss[0] += 1
        r, d = hdst(u); srdn = sK if u < 256 else sV
        if not u & 1: a(f"s_xor_b32 s{sOff}, s{sRot}, {hex(perm_t((u >> 1) & 127))}")
        g.vm(f"buffer_load_dwordx4 {r}[{d}:{d+3}], v{vKV}, s[{srdn}:{srdn+3}], s{sOff} offen{' offset:256' if u & 1 else ''} nt", f"u{u}")
    for _ in range(K0): hissue()
    def srd(s, lo, off, nrec):
        if off is None: a(f"s_mov_b32 s{s}, s{lo}", f"s_and_b32 s{s+1}, s{lo+1}, 0xffff")
        else: a(f"s_add_u32 s{s}, s{lo}, s{off}", f"s_addc_u32 s{s+1}, s{lo+1}, 0", f"s_and_b32 s{s+1}, s{s+1}, 0xffff")
        a(f"s_mov_b32 s{s+2}, {nrec}", f"s_mov_b32 s{s+3}, 0x20000")
    a(f"s_min_u32 s{sF}, s{sJ}, 27", f"s_mul_i32 s{sTmp}, s{sB}, 896")
    srd(sX, 36, sTmp, 896)
    g.vm(f"buffer_load_dwordx4 v[{X8}:{X8+3}], v{T[4]}, s[{sX}:{sX+3}], 0 offen nt", "x")
    g.vm(f"buffer_load_ushort v{PH}, v{T[5]}, s[{sX}:{sX+3}], 0 offen nt", "x")
    g.vm(f"buffer_load_ushort v{PH+1}, v{T[5]}, s[{sX}:{sX+3}], 0 offen offset:128 nt", "x")
    a(f"s_lshl_b32 s{sTmp}, s{sH}, 9")
    srd(sWQ, 42, sTmp, 0)
    a(f"s_sub_u32 s{sWQ+2}, {448*8192}, s{sTmp}")
    def qbulk():
        c("bulk L2 prefetch of the two heads' wq columns, 8 rows x 1 KiB per wave (values unused)")
        a(f"s_and_b32 s96, s{sI}, 31", f"s_add_u32 s96, s96, {QS}", "s_lshr_b32 s97, s96, 1", "s_lshl_b32 s97, s97, 3", "s_and_b32 s98, s96, 1", "s_add_u32 s97, s97, s98")
        a(f"s_mul_i32 s98, s{sW}, 56", "s_add_u32 s97, s97, s98", "s_lshl_b32 s97, s97, 14", "s_cmp_ge_u32 s96, 14", "s_cselect_b32 s97, 0x10000000, s97")
        a(f"s_and_b32 s96, s{sH}, 1", "s_lshl_b32 s96, s96, 9", f"v_lshrrev_b32 v{T[6]}, 4, v{vL}", f"v_bfe_u32 v{T[7]}, v{vL}, 3, 1", f"v_lshl_add_u32 v{T[6]}, v{T[6]}, 2, v{T[7]}", f"v_and_b32 v{T[5]}, 7, v{vL}")
        a(f"v_lshlrev_b32 v{T[5]}, 7, v{T[5]}", f"v_lshl_add_u32 v{T[6]}, v{T[6]}, 13, v{T[5]}")
        a(f"s_sub_u32 s{sWO}, s{sWQ}, s96", f"s_subb_u32 s{sWO+1}, s{sWQ+1}, 0", f"s_add_u32 s{sWO+2}, s{sWQ+2}, s96", f"s_mov_b32 s{sWO+3}, 0x20000")
        g.vm(f"buffer_load_dword v70, v{T[6]}, s[{sWO}:{sWO+3}], s97 offen", "pf")
    def bulk():
        c("bulk L2 prefetch of the wo / w2 / w1 lines used by the 32 workgroups of this group, one unit of whole DRAM rows per wave (values unused)")
        a(f"s_and_b32 s96, s{sI}, 31", "s_lshl_b32 s96, s96, 2", f"s_add_u32 s96, s96, s{sW}", f"s_lshr_b32 s97, s{sI}, 5", f"s_mov_b32 s{sW2+3}, 0x20000")
        a("s_cmp_ge_u32 s96, 96", "s_cbranch_scc1 L_bw1", "s_cmp_ge_u32 s96, 64", "s_cbranch_scc1 L_bw2")
        c("wo: 14 blocks of 32 KiB x 4 lines")
        a(f"s_mov_b32 s{sW2}, s44", f"s_and_b32 s{sW2+1}, s45, 0xffff", f"s_mul_i32 s98, s97, {14*32768}", f"s_add_u32 s{sW2+2}, s98, {14*32768 if BPF & 1 else 0}", "s_lshl_b32 s96, s96, 9", "s_add_u32 s98, s98, s96")
        a(f"v_lshrrev_b32 v{T[5]}, 2, v{vL}", f"v_and_b32 v{T[6]}, 3, v{vL}", f"v_lshlrev_b32 v{T[5]}, 15, v{T[5]}", "s_branch L_bgo", "L_bw2:")
        c("w2: 7 blocks x 8 lines")
        a(f"s_mov_b32 s{sW2}, s52", f"s_and_b32 s{sW2+1}, s53, 0xffff", f"s_mul_i32 s98, s97, {7*32768}", f"s_add_u32 s{sW2+2}, s98, {7*32768 if BPF & 2 else 0}", f"s_min_u32 s{sW2+2}, s{sW2+2}, {1792*896}")
        a("s_sub_u32 s96, s96, 64", "s_lshl_b32 s96, s96, 10", "s_add_u32 s98, s98, s96")
        a(f"v_lshrrev_b32 v{T[5]}, 3, v{vL}", f"v_and_b32 v{T[6]}, 7, v{vL}", f"v_lshlrev_b32 v{T[5]}, 15, v{T[5]}", "s_branch L_bgo", "L_bw1:")
        c("w1: 16 rows x 4 lines")
        a(f"s_mov_b32 s{sW2}, s48", f"s_and_b32 s{sW2+1}, s49, 0xffff", "s_cmp_eq_u32 s97, 7", f"s_cselect_b32 s{sW2+2}, 0, {448*3584 if BPF & 4 else 0}")
        a("s_sub_u32 s96, s96, 96", f"s_mul_i32 s98, s96, {16*3584}", "s_lshl_b32 s97, s97, 9", "s_add_u32 s98, s98, s97")
        a(f"v_lshrrev_b32 v{T[5]}, 2, v{vL}", f"v_and_b32 v{T[6]}, 3, v{vL}", f"v_mul_u32_u24 v{T[5]}, 3584, v{T[5]}", "L_bgo:")
        a(f"v_lshl_add_u32 v{T[5]}, v{T[6]}, 7, v{T[5]}")
        g.vm(f"buffer_load_dword v71, v{T[5]}, s[{sW2}:{sW2+3}], s98 offen", "pf")
    def qload(j):
        dst = WQR + 8*(j % DQ)
        a(f"s_mov_b32 s{sTmp}, {(16*(j >> 2) + (j & 3))*8192}")
        g.vm(f"buffer_load_dwordx4 v[{dst}:{dst+3}], v{T[3]}, s[{sWQ}:{sWQ+3}], s{sTmp} offen", f"q{j}a")
        g.vm(f"buffer_load_dwordx4 v[{dst+4}:{dst+7}], v{T[3]}, s[{sWQ}:{sWQ+3}], s{sTmp} offen offset:256", f"q{j}b")
    def kstage_upto(n):
        while iss[0] < n: hissue()
    def quota(j): return min(NS, K0 + math.ceil((j+1)*(NS-K0)/28))
    for j in range(DQ):
        qload(j); kstage_upto(quota(j))
        if QPF and QAT == j: qbulk()
        if BPF and BAT == j: bulk()
        if j == 1:
            srd(sV, 40, sTmp2, 1 << 20)
            a(f"s_lshl_b32 s{sTmp}, s{sB}, 7", f"s_load_dword s{sR}, s[60:61], s{sTmp}")
    c("one-hot masks of the MFMA A operand: row i keeps element i&7 of its 8-element group")
    a(f"s_mov_b32 s{sHI}, 0xffff0000", f"s_mov_b32 s{sTM}, 0xffffff00", f"s_mov_b32 s{sC}, {hex(f2u(math.log2(math.e)/16))}")
    a(f"v_and_b32 v{T[6]}, 1, v{vL}", f"v_lshlrev_b32 v{T[6]}, 4, v{T[6]}", f"v_mov_b32 v{T[2]}, 0xffff", f"v_lshlrev_b32 v{T[2]}, v{T[6]}, v{T[2]}", f"v_bfe_u32 v{T[6]}, v{vL}, 1, 2")
    for t in range(4): a(f"v_cmp_eq_u32 vcc, {t}, v{T[6]}", "s_nop 1", f"v_cndmask_b32 v{MK+t}, 0, v{T[2]}, vcc")

    def allred(op, regs, tmp):
        for rot in (8, 4, 2, 1):
            a(f"s_nop {2-len(regs)}")
            for r in regs: a(f"{op}_dpp v{r}, v{r}, v{r} row_ror:{rot} row_mask:0xf bank_mask:0xf")
        for sw in ("v_permlane16_swap_b32", "v_permlane32_swap_b32"):
            for r, t in zip(regs, tmp): a(f"v_mov_b32 v{t}, v{r}")
            a("s_nop 1")
            for r, t in zip(regs, tmp): a(f"{sw} v{t}, v{r}")
            a("s_nop 1")
            for r, t in zip(regs, tmp): a(f"{op} v{r}, v{r}, v{t}")
    def bfr(r): a(f"v_cvt_pk_bf16_f32 v{r}, v{r}, v{r}", f"v_and_b32 v{r}, s{sHI}, v{r}")
    def unpack(dst, src, n):
        for k in range(n): a(f"v_lshlrev_b32 v{dst+2*k}, 16, v{src+k}", f"v_and_b32 v{dst+2*k+1}, s{sHI}, v{src+k}")
    def abuild(dst, src, lane, src2=None):
        for t in range(4): a(f"v_and_b32_dpp v{dst+t}, v{src}, v{MK+t} row_newbcast:{lane} row_mask:0xf bank_mask:{'0xf' if src2 is None else '0x3'}")
        if src2 is not None:
            for t in range(4): a(f"v_and_b32_dpp v{dst+t}, v{src2}, v{MK+t} row_newbcast:{lane} row_mask:0xf bank_mask:0xc")
    def mfma(d, A, B, zero=False): a(f"v_mfma_f32_16x16x32_bf16 v[{d}:{d+3}], v[{A}:{A+3}], v[{B}:{B+3}], {'0' if zero else f'v[{d}:{d+3}]'}")

    c("---- LN(x[b]) with the reference's bf16 rounding points; variance around a pivot element")
    g.wait("x")
    mu, rs, t0, t1 = ACC+8, ACC+9, ACC+10, ACC+11
    unpack(ACC, X8, 4)
    a(f"v_lshlrev_b32 v{PH}, 16, v{PH}", f"v_lshlrev_b32 v{PH+1}, 16, v{PH+1}")
    a(f"v_readlane_b32 s{sTmp}, v{ACC}, 0", f"v_mov_b32 v{mu}, 0", f"v_mov_b32 v{rs}, 0", "s_mov_b32 exec_hi, 0x00ffffff")
    for k in range(8): a(f"v_subrev_f32 v{t0}, s{sTmp}, v{ACC+k}", f"v_add_f32 v{mu}, v{mu}, v{t0}", f"v_fmac_f32 v{rs}, v{t0}, v{t0}")
    a("s_mov_b32 exec_hi, -1")
    allred("v_add_f32", [mu, rs], [t0, t1])
    inv448, eps = hex(f2u(1.0/448)), hex(f2u(1e-5))
    a(f"v_mul_f32 v{mu}, {inv448}, v{mu}", f"v_mul_f32 v{rs}, {inv448}, v{rs}")
    a(f"v_fma_f32 v{rs}, -v{mu}, v{mu}, v{rs}", f"v_add_f32 v{mu}, s{sTmp}, v{mu}", f"v_max_f32 v{rs}, 0, v{rs}")
    bfr(mu); bfr(rs); a(f"v_add_f32 v{rs}, {eps}, v{rs}"); bfr(rs)
    a(f"v_sqrt_f32 v{rs}, v{rs}", "s_nop 0"); bfr(rs); a(f"v_rcp_f32 v{rs}, v{rs}", "s_nop 0")
    for r in (PH, PH+1):
        a(f"v_sub_f32 v{r}, v{r}, v{mu}"); bfr(r); a(f"v_mul_f32 v{r}, v{r}, v{rs}", f"v_cvt_pk_bf16_f32 v{r}, v{r}, v{r}")
    a("s_nop 1")
    c("---- q partial of this wave's 112 rows of wq")
    for j in range(28):
        A = AB + 4*(j & 1); dst = WQR + 8*(j % DQ)
        abuild(A, PH + (j >> 4), j & 15); a("s_nop 0")
        g.wait(f"q{j}a"); mfma(D0, A, dst, j == 0)
        g.wait(f"q{j}b"); mfma(D1, A, dst+4, j == 0)
        if j + DQ < 28: qload(j+DQ); kstage_upto(quota(j+DQ))
        if BPF and BAT == j + DQ: bulk()
    kstage_upto(NS + DH)
    c("---- sum the four partials through LDS, round q to bf16")
    a(f"v_and_b32 v{T[0]}, 15, v{vL}", f"v_lshlrev_b32 v{T[0]}, 5, v{T[0]}", f"v_and_b32 v{T[1]}, 16, v{vL}", f"v_add_u32 v{T[1]}, v{T[0]}, v{T[1]}")
    a(f"s_lshl_b32 s{sTmp}, s{sW}, 10", f"v_add_u32 v{T[1]}, s{sTmp}, v{T[1]}", "s_nop 2")
    a(f"ds_write_b128 v{T[1]}, v[{D0}:{D0+3}]", f"ds_write_b128 v{T[1]}, v[{D1}:{D1+3}] offset:512", "s_waitcnt lgkmcnt(0)", "s_barrier")
    busy = {hdst(u)[1] for u in range(2*NST, iss[0])}
    QG = [r for r in list(range(WQR, 256, 4)) + list(range(RG, RG+64, 4)) if r not in busy][:16]
    assert len(QG) == 16
    for k in range(16): a(f"ds_read_b128 v[{QG[k]}:{QG[k]+3}], v{T[0]} offset:{((k >> 1) & 3)*1024 + (k >> 3)*512 + (k & 1)*16}")
    a(f"s_mul_i32 s{sTmp}, s{sH}, {256*896}"); srd(sWO, 44, sTmp, 256*896)
    a(f"s_lshl_b32 s{sTmp}, s{sF}, 7"); srd(sW1, 48, sTmp, 0); a(f"s_sub_u32 s{sW1+2}, {448*3584}, s{sTmp}")
    a(f"s_mul_i32 s{sTmp}, s{sF}, {64*896}"); srd(sW2, 52, sTmp, 64*896)
    c("workgroups with j >= 28 own no MLP slice: empty descriptors")
    a(f"s_cmp_ge_u32 s{sJ}, 28", f"s_cselect_b32 s{sW1+2}, 0, s{sW1+2}", f"s_cselect_b32 s{sW2+2}, 0, s{sW2+2}")
    srd(sWS, 60, None, 0x200000)
    for hf in range(2):
        a(f"s_waitcnt lgkmcnt({8*(1-hf)})")
        q_ = lambda w, e: QG[(hf*4 + w)*2 + (e >> 2)] + (e & 3)
        pa = lambda x, y: f"v_pk_add_f32 v[{x}:{x+1}], v[{x}:{x+1}], v[{y}:{y+1}]"
        for e in range(0, 8, 2): a(pa(q_(0,e), q_(1,e)), pa(q_(2,e), q_(3,e)))
        for e in range(0, 8, 2): a(pa(q_(0,e), q_(2,e)))
        for e in range(4): a(f"v_cvt_pk_bf16_f32 v{Q+hf*4+e}, v{q_(0,2*e)}, v{q_(0,2*e)+1}")
    a(f"s_add_u32 s{sTag32}, s{sR}, 1")
    c("weight addresses: wo/w2 (2g + (c>>3))*896 + (16w + (c&7))*16 (+128 for the second column pass, out of range for wave 3); w1 (112w + 2g + (c>>3))*3584 + (c&7)*16")
    a(f"v_lshrrev_b32 v{T[0]}, 4, v{vL}", f"v_bfe_u32 v{T[1]}, v{vL}, 3, 1", f"v_lshl_add_u32 v{T[0]}, v{T[0]}, 1, v{T[1]}")
    a(f"v_and_b32 v{T[1]}, 7, v{vL}", f"s_lshl_b32 s{sTmp}, s{sW}, 4", f"v_add_u32 v{T[4]}, s{sTmp}, v{T[1]}", f"v_lshlrev_b32 v{T[4]}, 4, v{T[4]}")
    a(f"s_movk_i32 s{sTmp}, 896", f"v_mad_u32_u24 v{T[2]}, v{T[0]}, s{sTmp}, v{T[4]}")
    a(f"s_cmp_eq_u32 s{sW}, 3", f"s_cselect_b32 s{sTmp}, 0x10000000, 0", f"s_add_u32 s{sTmp}, s{sTmp}, 128", f"v_add_u32 v{T[4]}, s{sTmp}, v{T[2]}")
    a(f"s_mul_i32 s{sTmp}, s{sW}, 112", f"v_add_u32 v{T[0]}, s{sTmp}, v{T[0]}", f"v_lshlrev_b32 v{T[1]}, 4, v{T[1]}", f"s_movk_i32 s{sTmp}, 3584", f"v_mad_u32_u24 v{T[3]}, v{T[0]}, s{sTmp}, v{T[1]}")

    if BPF and BAT < 0: bulk()
    c("---- K pass")
    lanemap = [None]
    def kreduce(n):
        regs = [(ACC+j, [j]*16) for j in range(16)]
        a("s_nop 2")
        def lvl(regs, ctrl, m0, m1, sel):
            out = []
            for (r0, l0), (r1, l1) in zip(regs[0::2], regs[1::2]):
                a(f"v_add_f32_dpp v{r0}, v{r0}, v{r0} {ctrl} row_mask:0xf bank_mask:{m0}")
                out.append((r0, [l0[i] if sel(i) == 0 else l1[i] for i in range(16)]))
            for (r0, l0), (r1, l1) in zip(regs[0::2], regs[1::2]):
                a(f"v_add_f32_dpp v{r0}, v{r1}, v{r1} {ctrl} row_mask:0xf bank_mask:{m1}")
            return out
        regs = lvl(regs, "row_mirror", "0x3", "0xc", lambda i: i >> 3)
        tick()
        regs = lvl(regs, "row_half_mirror", "0x5", "0xa", lambda i: (i >> 2) & 1)
        for qp in ("[1,0,3,2]", "[2,3,0,1]"):
            for r, _ in regs: a(f"v_add_f32_dpp v{r}, v{r}, v{r} quad_perm:{qp} row_mask:0xf bank_mask:0xf")
        a("s_mov_b32 vcc_lo, 0xaaaaaaaa", "s_mov_b32 vcc_hi, 0xaaaaaaaa")
        a(f"v_cndmask_b32 v{regs[0][0]}, v{regs[0][0]}, v{regs[1][0]}, vcc", f"v_cndmask_b32 v{regs[2][0]}, v{regs[2][0]}, v{regs[3][0]}, vcc")
        a("s_mov_b32 vcc_lo, 0xcccccccc", "s_mov_b32 vcc_hi, 0xcccccccc", f"v_cndmask_b32 v{PH+n}, v{regs[0][0]}, v{regs[2][0]}, vcc")
        lanemap[0] = [regs[i & 3][1][i] for i in range(16)]
    wl = []
    def vneed(r): return max([-1] + [u for u in range(2*NST, NS) if hdst(u)[1] == r])
    def smov(v): return f"s_movk_i32 s{sTmp}, {v}" if v < 32768 else f"s_mov_b32 s{sTmp}, {v}"
    for jj in range(7):
        for L in range(2):
            r = W1R + 8*jj + 4*L
            wl.append((smov(3584*(16*jj + 8*L)), f"buffer_load_dwordx4 v[{r}:{r+3}], v{T[3]}, s[{sW1}:{sW1+3}], s{sTmp} offen", vneed(r)))
    for nj, rf, base, sr in ((4, "v", W2R, sW2), (16, "a", 0, sWO)):
        for jj in range(nj):
            for L in range(2):
                for ps in range(2):
                    r = base + (jj*2+ps)*8 + 4*L
                    need = vneed(r) if rf == "v" else (r//4 if r//4 < 2*NST else -1)
                    wl.append((smov(896*(16*jj + 8*L)), f"buffer_load_dwordx4 {rf}[{r}:{r+3}], v{T[2+2*ps]}, s[{sr}:{sr+3}], s{sTmp} offen", need))
    if WOF: wl = wl[30:] + wl[:30]
    def kcons(u):
        acc = ACC + (u >> 1) % 16; hf = u & 1
        g.wait(f"u{u}", nop=False)
        r, d = hdst(u)
        if r == "a":
            for e in range(4): a(f"v_accvgpr_read_b32 v{D0+4*hf+e}, a{d+e}")
            d = D0 + 4*hf
        for e in range(4): a(f"v_dot2_f32_bf16 v{acc}, v{d+e}, v{Q+4*hf+e}, {'0' if e == 0 and hf == 0 else f'v{acc}'}")
        if u % 32 == 31: kreduce(u // 32)
    st = dict(con=0, wc=0.0, n=0)
    def tick():
        u = iss[0]; depth = DH if u < 256 else DV
        if not (u - 16 < st["con"] or u - 16 < NS): return False
        g.wait(f"u{u-depth}", nop=False)
        hissue(); st["n"] += 1
        if st["n"] > WST: st["wc"] += 1.0/WEV
        if wl and st["wc"] >= 1:
            k = next((k for k, w in enumerate(wl) if st["con"] > w[2]), None)
            if k is not None:
                s0, ld, _ = wl.pop(k); a(s0); g.vm(ld, "w"); st["wc"] -= 1
        return True
    def run(cons, end):
        while st["con"] < end:
            depth = DH if iss[0] < 256 else DV
            can = tick() if iss[0] - st["con"] <= depth or st["con"] < NS + 16 else False
            n = 0
            while st["con"] < end and n < RCU and iss[0] - st["con"] > depth:
                u = st["con"]; st["con"] += 1; cons(u); n += 1
            assert can or n
    run(kcons, 256)
    inv = [lanemap[0].index(j) for j in range(16)]
    c("---- softmax numerators of this wave's 512 keys: scores rounded to bf16 as in the reference, true max, p = hi + lo in bf16")
    MC, LS = ACC, ACC+1
    for n in range(8): bfr(PH+n)
    a(f"v_max3_f32 v{MC}, v{PH}, v{PH+1}, v{PH+2}", f"v_max3_f32 v{MC}, v{MC}, v{PH+3}, v{PH+4}", f"v_max3_f32 v{MC}, v{MC}, v{PH+5}, v{PH+6}", f"v_max_f32 v{MC}, v{MC}, v{PH+7}")
    allred("v_max_f32", [MC], [T[0]]); tick()
    a(f"v_mul_f32 v{MC}, s{sC}, v{MC}")
    for n in range(8): a(f"v_fma_f32 v{PH+n}, v{PH+n}, s{sC}, -v{MC}")
    for n in range(8): a(f"v_exp_f32 v{PH+n}, v{PH+n}")
    a(f"v_add_f32 v{LS}, v{PH}, v{PH+1}")
    for n in range(2, 8): a(f"v_add_f32 v{LS}, v{LS}, v{PH+n}")
    for n in range(8):
        a(f"v_cvt_pk_bf16_f32 v{T[0]}, v{PH+n}, v{PH+n}", f"v_and_b32 v{T[1]}, s{sHI}, v{T[0]}", f"v_sub_f32 v{T[1]}, v{PH+n}, v{T[1]}")
        a(f"v_cvt_pk_bf16_f32 v{PL+n}, v{T[1]}, v{T[1]}", f"v_mov_b32 v{PH+n}, v{T[0]}")
    tick(); allred("v_add_f32", [LS], [T[0]])
    OPo, MLo, HBo, STo, APo = 0, 5120, 5248, 7296, 7424
    TAGV, F0, F2, MW, LW, HD = ACC+5, ACC, ACC+12, ACC+2, ACC+3, ACC+6
    FR = (F0, F0+1, F2, F2+1)
    a(f"s_lshl_b32 s{sTmp}, s{sW}, 3", f"v_mov_b32 v{T[0]}, s{sTmp}", f"ds_write_b64 v{T[0]}, v[{MC}:{MC+1}] offset:{MLo}")
    a(f"s_and_b32 s{sTmp}, s{sTag32}, 0xff", f"v_mov_b32 v{TAGV}, s{sTmp}")
    for e in range(8): a(f"v_mov_b32 v{D0+e}, 0")
    TQ = list(range(Q, Q+8))
    def xch_publish():
        c("---- workgroup (max, sum) -> header for the other key half")
        ML = TQ[0]; tick()
        a(f"v_mov_b32 v{HD}, 0", "s_waitcnt lgkmcnt(0)", "s_barrier")
        a(f"ds_read_b128 v[{ML}:{ML+3}], v{HD} offset:{MLo}", f"ds_read_b128 v[{ML+4}:{ML+7}], v{HD} offset:{MLo+16}", "s_waitcnt lgkmcnt(0)")
        a(f"v_max3_f32 v{MW}, v{ML}, v{ML+2}, v{ML+4}", f"v_max_f32 v{MW}, v{MW}, v{ML+6}", f"v_and_b32 v{MW}, s{sTM}, v{MW}")
        for w in range(4): a(f"v_sub_f32 v{FR[w]}, v{ML+2*w}, v{MW}")
        for w in range(4): a(f"v_exp_f32 v{FR[w]}, v{FR[w]}")
        a(f"v_mul_f32 v{LW}, v{FR[0]}, v{ML+1}")
        for w in range(1, 4): a(f"v_fmac_f32 v{LW}, v{FR[w]}, v{ML+2*w+1}")
        a(f"v_and_b32 v{LW}, s{sTM}, v{LW}", f"s_cmp_lg_u32 s{sW}, 0", "s_cbranch_scc1 L_nohdr")
        a(f"v_or_b32 v{TQ[0]}, v{MW}, v{TAGV}", f"v_or_b32 v{TQ[1]}, v{LW}, v{TAGV}", f"v_mov_b32 v{TQ[2]}, s{sTag32}", f"v_mov_b32 v{TQ[3]}, s{sTag32}")
        a(f"s_lshl_b32 s{sTmp}, s{sI}, 7", f"s_add_u32 s{sTmp}, s{sTmp}, {HOFF}", "s_mov_b64 exec, 1")
        a(f"buffer_store_dwordx4 v[{TQ[0]}:{TQ[3]}], v{HD}, s[{sWS}:{sWS+3}], s{sTmp} offen sc1", "s_mov_b64 exec, -1", "L_nohdr:")
    def xch_load(track=True):
        a(f"s_xor_b32 s{sTmp}, s{sI}, 1", f"s_lshl_b32 s{sTmp}, s{sTmp}, 7", f"s_add_u32 s{sTmp}, s{sTmp}, {HOFF}", f"v_mov_b32 v{TQ[0]}, 0")
        x = f"buffer_load_dwordx4 v[{HD}:{HD+3}], v{TQ[0]}, s[{sWS}:{sWS+3}], s{sTmp} offen sc1"
        g.vm(x, "hd") if track else a(x)
    def xch_finish():
        c("---- per-wave factors exp2(max_w - max) / sum over both key halves")
        g.wait("hd", nop=False)
        a(f"s_mov_b32 s{sSpin}, 0", "L_xchk:")
        a(f"v_xor_b32 v{TQ[1]}, v{HD}, v{TAGV}", f"v_bitop3_b32 v{TQ[1]}, v{TQ[1]}, v{HD+1}, v{TAGV} bitop3:0xf6", f"v_and_b32 v{TQ[1]}, 0xff, v{TQ[1]}")
        a(f"v_xor_b32 v{TQ[2]}, s{sTag32}, v{HD+2}", f"v_xor_b32 v{TQ[3]}, s{sTag32}, v{HD+3}", f"v_or3_b32 v{TQ[1]}, v{TQ[1]}, v{TQ[2]}, v{TQ[3]}", f"v_cmp_ne_u32 vcc, 0, v{TQ[1]}", "s_cbranch_vccz L_xok")
        a(f"s_add_u32 s{sSpin}, s{sSpin}, 1", f"s_cmp_ge_u32 s{sSpin}, 0x40000", "s_cbranch_scc1 L_xok")
        xch_load(False)
        a("s_waitcnt vmcnt(0)", "s_branch L_xchk", "L_xok:")
        a(f"v_and_b32 v{HD}, s{sTM}, v{HD}", f"v_and_b32 v{HD+1}, s{sTM}, v{HD+1}", f"v_max_f32 v{TQ[1]}, v{HD}, v{MW}")
        a(f"v_sub_f32 v{HD}, v{HD}, v{TQ[1]}", f"v_sub_f32 v{MW}, v{MW}, v{TQ[1]}", f"v_exp_f32 v{HD}, v{HD}", f"v_exp_f32 v{MW}, v{MW}", "s_nop 0")
        a(f"v_mul_f32 v{HD}, v{HD}, v{HD+1}", f"v_mul_f32 v{LW}, v{MW}, v{LW}", f"v_add_f32 v{LW}, v{LW}, v{HD}", f"v_rcp_f32 v{LW}, v{LW}", "s_nop 0", f"v_mul_f32 v{MW}, v{MW}, v{LW}")
        for r in FR: a(f"v_mul_f32 v{r}, v{r}, v{MW}")
        tick()
        c("workgroup classes that tend to finish late switch to one more load in flight a few blocks early (speed only)")
        tbl = sum(x << (4*k) for k, x in enumerate(XT))
        a(f"s_and_b32 s{sTmp}, s2, 7", f"s_lshl_b32 s{sTmp}, s{sTmp}, 2", f"s_lshr_b32 s{sTmp}, {hex(tbl)}, s{sTmp}", f"s_and_b32 s{sTmp}, s{sTmp}, 7", f"s_sub_u32 s{sEnd1}, 7, s{sTmp}")
    c("---- V pass: rows 0-7 of the tile take p_hi, rows 8-15 p_lo")
    vb = [sB0]
    def vissue(uu):
        d = RG + 4*(uu % 16)
        if not uu & 1: a(f"s_xor_b32 s{sOff}, s{vb[0] if uu < 32 else sB1}, {hex(perm_t((uu >> 1) & 15))}")
        a(f"buffer_load_dwordx4 v[{d}:{d+3}], v{vKV}, s[{sV}:{sV+3}], s{sOff} offen{' offset:256' if uu & 1 else ''} nt")
    def vstep(j, last, depth):
        A = AB + 4*(j & 1)
        abuild(A, PH+NP, inv[j], PL+NP)
        for hf in range(2):
            u = 2*j + hf
            a(f"s_waitcnt vmcnt({min(depth-1, 31-u) if last else depth-1})")
            if not (last and u + depth >= 32): vissue(u + depth)
            elif hf == 0: a("s_nop 0")
            mfma(D0 + 4*hf, A, RG + 4*(u % 16))
    def vcons(uu):
        u = uu - 256; j = (u >> 1) & 15; A = AB + 4*(j & 1)
        if not u & 1: abuild(A, PH + (u >> 5), inv[j], PL + (u >> 5)); a("s_nop 0"); g.wait(f"u{uu}")
        else: g.wait(f"u{uu}", nop=False)
        mfma(D0 + 4*(u & 1), A, RG + 4*(uu % 16))
    for x, fn in zip(XP, (xch_publish, xch_load, xch_finish)): run(vcons, 256 + x); fn()
    run(vcons, 256 + 32*NP)
    assert not wl, len(wl)
    assert iss[0] == 256 + 32*NP + DV and g.q[-DV:] == [f"u{256+32*NP+k}" for k in range(DV)]
    def vloop(lab, depth, end):
        a(f"s_cmp_ge_u32 s{sCnt}, {end}", f"s_cbranch_scc1 {lab}_skip", f"{lab}:")
        for j in range(16): vstep(j, False, depth)
        for k in range(NP, 7): a(f"v_mov_b32 v{PH+k}, v{PH+k+1}", f"v_mov_b32 v{PL+k}, v{PL+k+1}")
        a(f"s_mov_b32 s{sB0}, s{sB1}", f"s_add_u32 s{sTmp2}, s{sCnt}, 2", f"s_mov_b32 s{sB1}, s{sRot}")
        for k in range(3): a(f"s_bitcmp1_b32 s{sTmp2}, {k}", f"s_cselect_b32 s{sTmp}, {1 << PW[8+k]}, 0", f"s_xor_b32 s{sB1}, s{sB1}, s{sTmp}")
        a(f"s_add_u32 s{sCnt}, s{sCnt}, 1", f"s_cmp_lt_u32 s{sCnt}, {end}", f"s_cbranch_scc1 {lab}", f"{lab}_skip:")
    a(f"s_mov_b32 s{sCnt}, {NP}", f"s_xor_b32 s{sB0}, s{sRot}, {hex(perm_t(16*NP))}", f"s_xor_b32 s{sB1}, s{sRot}, {hex(perm_t(16*NP+16))}")
    vloop("L_vloop", DV, f"s{sEnd1}")
    for uu in range(DV, D2): vissue(uu)
    vloop("L_vloop2", D2, 7)
    a(f"s_mov_b32 s{sRot}, s{sB0}"); vb[0] = sRot
    for uu in range(D2, DE): vissue(uu)

    c("---- epilogue addresses, biases and x slice, in the shadow of the last V block")
    aOW, aOR, aPUB, aF0, SM, SIX, aG, XS = ACC+2, ACC+3, ACC+4, 71, ACC+6, ACC+10, ACC+11, ACC+14
    B1V, B2V, aHA, aAW, aAR, aF = Q, Q+2, Q+4, Q+5, Q+6, Q+7
    aG7, TG7, aBP, aBF, TGF, aF1 = PH+4, PH+6, PL+4, PL+5, PL+6, 70
    tg, tc, t2, t3, aT = T[0], T[1], T[2], T[3], T[4]
    a(f"v_lshrrev_b32 v{tg}, 4, v{vL}", f"v_and_b32 v{tc}, 15, v{vL}")
    a(f"v_bfe_u32 v{t2}, v{vL}, 1, 2", f"v_and_b32 v{t3}, 1, v{vL}", f"v_lshl_add_u32 v{t2}, v{t2}, 1, v{t3}", f"v_bfe_u32 v{t3}, v{vL}, 4, 1", f"v_lshl_add_u32 v{t2}, v{t2}, 1, v{t3}")
    a(f"v_mul_u32_u24 v{aOW}, 80, v{t2}", f"v_lshrrev_b32 v{t2}, 5, v{vL}", f"v_bfe_u32 v{t3}, v{vL}, 3, 1", f"v_lshl_add_u32 v{t2}, v{t2}, 1, v{t3}", f"v_lshl_add_u32 v{aOW}, v{t2}, 3, v{aOW}")
    a(f"s_mul_i32 s{sTmp}, s{sW}, 1280", f"v_add_u32 v{aOW}, s{sTmp}, v{aOW}")
    a(f"v_and_b32 v{t2}, 3, v{vL}", f"v_lshl_add_u32 v{t2}, v{t2}, 2, v{tg}", f"v_mul_u32_u24 v{aOR}, 80, v{t2}", f"v_lshl_add_u32 v{aOR}, v{t3}, 5, v{aOR}")
    a(f"v_lshlrev_b32 v{t2}, 2, v{t2}", f"v_add_u32 v{aT}, v{t2}, v{t3}", f"s_mul_i32 s{sTmp}, s{sW}, 112", f"v_add_u32 v{aHA}, s{sTmp}, v{aT}", f"v_lshlrev_b32 v{aHA}, 2, v{aHA}", f"v_add_u32 v{aHA}, {HBo}, v{aHA}")
    a(f"v_lshrrev_b32 v{aAR}, 3, v{aT}", f"v_lshl_add_u32 v{aAR}, v{aT}, 1, v{aAR}", f"v_lshlrev_b32 v{aAR}, 4, v{aAR}", f"s_lshl_b32 s{sTmp}, s{sF}, 6", f"v_add_u32 v{aT}, s{sTmp}, v{aT}", f"v_lshlrev_b32 v{aT}, 1, v{aT}")
    a(f"global_load_ushort v{B1V}, v{aT}, s[50:51] nt", f"global_load_ushort v{B1V+1}, v{aT}, s[50:51] offset:4 nt")
    a(f"v_and_b32 v{t2}, 7, v{vL}", f"v_bfe_u32 v{aAW}, v{vL}, 4, 1", f"v_lshl_add_u32 v{aAW}, v{t2}, 1, v{aAW}", f"v_lshlrev_b32 v{aAW}, 7, v{aAW}", f"v_lshl_add_u32 v{aAW}, v{t3}, 2, v{aAW}", f"v_lshl_add_u32 v{aAW}, v{t2}, 4, v{aAW}")
    a(f"s_lshl_b32 s{sTmp}, s{sW}, 3", f"v_add_u32 v{aAW}, s{sTmp}, v{aAW}")
    a(f"v_lshrrev_b32 v{t2}, 5, v{vL}", f"v_lshlrev_b32 v{aPUB}, 8, v{t2}", f"v_lshl_add_u32 v{aPUB}, v{tc}, 5, v{aPUB}", f"v_and_b32 v{t3}, 16, v{vL}", f"v_add_u32 v{aPUB}, v{aPUB}, v{t3}")
    a(f"s_lshl_b32 s{sTmp}, s{sW}, 9", f"v_add_u32 v{aPUB}, s{sTmp}, v{aPUB}", f"s_cmp_eq_u32 s{sW}, 3", f"s_cselect_b32 s{sTmp2}, 15, 31")
    a(f"v_and_b32 v{t3}, 31, v{vL}", f"v_min_u32 v{t3}, s{sTmp2}, v{t3}", f"v_lshlrev_b32 v{aG}, 4, v{t3}", f"v_lshl_add_u32 v{aG}, v{t2}, 15, v{aG}", f"v_add_u32 v{aG}, s{sTmp}, v{aG}")
    c("this workgroup's own partials are taken from registers: their lanes read out of range (zero) and expect tag 0")
    a(f"v_lshrrev_b32 v{T[5]}, 4, v{t3}", f"v_and_b32 v{T[6]}, 1, v{t3}", f"v_lshl_add_u32 v{T[5]}, v{T[5]}, 1, v{T[6]}", f"v_bfe_u32 v{T[6]}, v{t3}, 1, 3", f"v_lshl_add_u32 v{T[5]}, v{T[5]}, 4, v{T[6]}", f"v_lshlrev_b32 v{aBP}, 2, v{T[5]}")
    a(f"s_cmp_lt_u32 s{sJ}, 16", "s_cselect_b32 vcc_lo, -1, 0", "s_cselect_b32 vcc_hi, 0, -1", f"v_mov_b32 v{T[5]}, 0x10000000")
    a(f"v_cndmask_b32 v{T[5]}, v{aG}, v{T[5]}, vcc", f"v_cndmask_b32 v{T[6]}, v{TAGV}, 0, vcc", f"s_bitcmp1_b32 s{sJ}, 0", "s_cselect_b64 vcc, -1, 0")
    a(f"v_cndmask_b32 v{aG7}, v{T[5]}, v{aG}, vcc", f"v_cndmask_b32 v{aG7+1}, v{aG}, v{T[5]}, vcc", f"v_cndmask_b32 v{TG7}, v{T[6]}, v{TAGV}, vcc", f"v_cndmask_b32 v{TG7+1}, v{TAGV}, v{T[6]}, vcc")
    a(f"s_lshl_b32 s{sTmp}, s{sW}, 8", f"v_lshlrev_b32 v{t3}, 3, v{t3}", f"v_add_u32 v{aF}, s{sTmp}, v{t3}")
    a(f"buffer_load_dwordx2 v[{XS}:{XS+1}], v{aF}, s[{sX}:{sX+3}], 0 offen nt", f"v_lshlrev_b32 v{aF}, 1, v{aF}")
    a(f"v_and_b32 v{t3}, 3, v{vL}", f"v_lshlrev_b32 v{t3}, 3, v{t3}", f"s_lshl_b32 s{sTmp}, s{sF}, 5", f"v_add_u32 v{t3}, s{sTmp}, v{t3}")
    a(f"global_load_dwordx2 v[{B2V}:{B2V+1}], v{t3}, s[54:55] nt")
    c("sparse-MFMA one-hot masks and index")
    a(f"v_bfe_u32 v{t2}, v{vL}, 2, 1", f"v_cmp_eq_u32 vcc, 0, v{t2}", f"v_mov_b32 v{t3}, 0xffff", f"v_and_b32 v{SIX}, 3, v{vL}")
    a(f"v_cndmask_b32 v{SM}, 0, v{t3}, vcc", f"v_cndmask_b32 v{SM+1}, v{t3}, 0, vcc", f"v_mul_u32_u24 v{SIX}, 0x5555, v{SIX}", f"v_lshlrev_b32 v{SM+2}, 16, v{SM}", f"v_lshlrev_b32 v{SM+3}, 16, v{SM+1}")
    a(f"s_cmp_eq_u32 s{sW}, 3", f"s_cselect_b32 s{sPX}, 0, 0x00ff00ff", f"s_cselect_b32 s{sEX}, 0xffff, -1", f"s_mov_b32 s{sIN}, {hex(f2u(1.0/128))}", f"s_cselect_b32 s{sIN}, {hex(f2u(1.0/64))}, s{sIN}")
    a(f"s_bfe_u32 s{sRU}, s{sJ}, 0x30001", f"s_lshl_b32 s{sGB}, s{sB}, 16", f"s_lshl_b32 s{sPB}, s{sJ}, 11", f"s_add_u32 s{sPB}, s{sPB}, s{sGB}")
    a(f"s_add_u32 s{sPF}, s{sPB}, {FOFF}", f"s_add_u32 s{sPB}, s{sPB}, {XOFF}", f"s_lshl_b32 s{sFB}, s{sF}, 6", f"s_add_u32 s{sFB}, s{sFB}, s{sGB}", f"s_add_u32 s{sFB}, s{sFB}, {FOFF}", f"s_add_u32 s{sGB}, s{sGB}, {XOFF}")
    for k in range(8): a(f"s_add_u32 s{sU+k}, s{sRU}, {k+1}", f"s_and_b32 s{sU+k}, s{sU+k}, 7", f"s_lshl_b32 s{sU+k}, s{sU+k}, 12", f"s_add_u32 s{sU+k}, s{sU+k}, s{sGB}")
    a(f"v_lshrrev_b32 v{T[0]}, 2, v{vL}", f"v_and_b32 v{T[1]}, 3, v{vL}", f"v_lshlrev_b32 v{T[1]}, 4, v{T[1]}", f"v_add_u32 v{T[2]}, 16, v{T[0]}", f"v_min_u32 v{T[2]}, 27, v{T[2]}")
    a(f"v_lshl_add_u32 v{aF0}, v{T[0]}, 11, v{T[1]}", f"v_lshl_add_u32 v{aF1}, v{T[2]}, 11, v{T[1]}", f"v_mov_b32 v{T[3]}, 0x10000000")
    a(f"v_cmp_eq_u32 vcc, s{sJ}, v{T[0]}", f"v_and_b32 v{T[5]}, 1, v{vL}", f"v_bfe_u32 v{T[6]}, v{vL}, 1, 1")
    a(f"v_cndmask_b32 v{aF0}, v{aF0}, v{T[3]}, vcc", f"v_cndmask_b32 v{TGF}, v{TAGV}, 0, vcc")
    a(f"v_cmp_eq_u32 vcc, s{sJ}, v{T[2]}", f"v_lshl_add_u32 v{T[5]}, v{T[5]}, 4, v{T[6]}", f"s_and_b32 s{sTmp}, s{sJ}, 3")
    a(f"v_cndmask_b32 v{aF1}, v{aF1}, v{T[3]}, vcc", f"v_cndmask_b32 v{TGF+1}, v{TAGV}, 0, vcc")
    a(f"s_lshl_b32 s{sTmp}, s{sTmp}, 1", f"s_bfe_u32 s{sTmp2}, s{sJ}, 0x10002", f"s_lshl_b32 s{sTmp2}, s{sTmp2}, 5", f"s_add_u32 s{sTmp}, s{sTmp}, s{sTmp2}")
    sFW = sR
    a(f"v_add_u32 v{aBF}, s{sTmp}, v{T[5]}", f"v_lshlrev_b32 v{aBF}, 2, v{aBF}", f"s_lshr_b32 s{sFW}, s{sJ}, 3")
    c("pull this wave's own hand-off lines on die ahead of time (values unused)")
    a("s_mov_b32 exec_lo, 0x00110011", f"s_and_b32 exec_hi, s{sPX}, 0x00110011")
    a(f"buffer_load_dword v{T[7]}, v{aPUB}, s[{sWS}:{sWS+3}], s{sPB} offen sc1", f"buffer_load_dword v{T[7]}, v{aPUB}, s[{sWS}:{sWS+3}], s{sPF} offen sc1", "s_mov_b64 exec, -1")
    for j in range(16): vstep(j, True, DE)

    c("---- o partial (hi + lo rows) -> LDS -> normalised sum of the four waves, bf16")
    a("s_nop 7")
    for t in range(4): a(f"v_permlane32_swap_b32 v{D0+t}, v{D1+t}")
    for t, r in enumerate((0, 2, 1, 3)): a(f"v_add_f32 v{AB+r}, v{D0+t}, v{D1+t}")
    a(f"ds_write_b64 v{aOW}, v[{AB}:{AB+1}] offset:{OPo}", f"ds_write_b64 v{aOW}, v[{AB+2}:{AB+3}] offset:{OPo+32}", "s_waitcnt lgkmcnt(0)", "s_barrier")
    for w in range(4):
        for hh in range(2): a(f"ds_read_b128 v[{RG+8*w+4*hh}:{RG+8*w+4*hh+3}], v{aOR} offset:{OPo + w*1280 + 16*hh}")
    for e in range(8): a(f"v_mov_b32 v{D0+e}, 0")
    for w in range(4):
        a(f"s_waitcnt lgkmcnt({6-2*w})")
        Fp = (F0, F0, F2, F2)[w]; o = w & 1
        for k in range(4):
            r = RG + 2*k
            if w == 0: a(f"v_pk_mul_f32 v[{r}:{r+1}], v[{r}:{r+1}], v[{Fp}:{Fp+1}] op_sel_hi:[1,0]")
            else: a(f"v_pk_fma_f32 v[{r}:{r+1}], v[{r+8*w}:{r+8*w+1}], v[{Fp}:{Fp+1}], v[{r}:{r+1}] op_sel:[0,{o},0] op_sel_hi:[1,{o},1]")
    S = PL
    for u in range(4): a(f"v_cvt_pk_bf16_f32 v{S+u}, v{RG+2*u}, v{RG+2*u+1}")
    def sbuild(dst, n, ts):
        for t in ts: a(f"v_and_b32_dpp v{dst+t}, v{S + (n >> 2)}, v{SM+t} quad_perm:[{n&3},{n&3},{n&3},{n&3}] row_mask:0xf bank_mask:0xf")
    def smf(d, A, B, br): a(f"v_smfmac_f32_16x16x64_bf16 v[{d}:{d+3}], v[{A}:{A+3}], {br}[{B}:{B+7}], v{SIX}")
    BUF = [AB, AB+4, PH]
    def proj(nj, breg, br):
        sbuild(BUF[0], 0, range(4)); sbuild(BUF[1], 1, range(4))
        for jj in range(nj):
            A, nA = BUF[jj % 3], BUF[(jj+2) % 3]
            smf(D0, A, breg + (jj*2)*8, br)
            if jj + 2 < nj: sbuild(nA, jj+2, (0, 1))
            smf(D1, A, breg + (jj*2+1)*8, br)
            if jj + 2 < nj: sbuild(nA, jj+2, (2, 3))
    def publish(so):
        a("s_nop 7")
        for t in range(4): a(f"v_permlane32_swap_b32 v{D0+t}, v{D1+t}")
        for t in range(4): a(f"v_add_f32_dpp v{D0+t}, v{D1+t}, v{D0+t} row_ror:8 row_mask:0xf bank_mask:0xf")
        for t in range(4): a(f"v_bfi_b32 v{AB+t}, s{sTM}, v{D0+t}, v{TAGV}")
        a("s_mov_b32 exec_lo, 0x00ff00ff", f"s_mov_b32 exec_hi, s{sPX}")
        a(f"buffer_store_dwordx4 v[{AB}:{AB+3}], v{aPUB}, s[{sWS}:{sWS+3}], s{so} offen sc1", "s_mov_b64 exec, -1")
    c("---- y partial = o @ wo[head]: wave w owns columns 128w..128w+127, 16 rows x 64 columns per sparse MFMA")
    proj(16, 0, "a")
    publish(sPB)
    a(f"s_cmp_ge_u32 s{sJ}, 28", "s_cbranch_scc1 L_end")
    c("---- hand-off X: sum the 32 partials of this batch (8 slots of 4 producers); lanes 32-63 start from x")
    GA, CK, R2 = D0, T[1], RG+32
    def gissue(r, so, own=False):
        a(f"buffer_load_dwordx4 v[{r}:{r+3}], v{aG7 if own else aG}, s[{sWS}:{sWS+3}], s{so} offen sc1")
        a(f"buffer_load_dwordx4 v[{r+4}:{r+7}], v{aG7+1 if own else aG}, s[{sWS}:{sWS+3}], s{so} offen offset:2048 sc1")
    def tagchk(r, ta=TAGV, tb=TAGV):
        a(f"v_xor_b32 v{CK}, v{r}, v{ta}", f"v_xor_b32 v{T[2]}, v{r+4}, v{tb}")
        a(f"v_bitop3_b32 v{CK}, v{CK}, v{r+2}, v{ta} bitop3:0xf6", f"v_bitop3_b32 v{T[2]}, v{T[2]}, v{r+6}, v{tb} bitop3:0xf6")
        a(f"v_bitop3_b32 v{CK}, v{CK}, v{T[2]}, s{sTM} bitop3:0x54", f"v_cmp_ne_u32 vcc, 0, v{CK}")
    pa = lambda x, y, z=None: f"v_pk_add_f32 v[{x}:{x+1}], v[{x if z is None else z}:{(x if z is None else z)+1}], v[{y}:{y+1}]"
    def gacc(r, L, k):
        tagchk(r, TG7, TG7+1) if k == 7 else tagchk(r)
        a(pa(r, r+4), pa(r+2, r+6), f"s_cbranch_vccnz {L}", pa(GA, r), pa(GA+2, r+2))
        if k is not None: a(f"s_bitset0_b32 s{sDone}, {k}")
    for e in range(4): a(f"ds_bpermute_b32 v{GA+e}, v{aBP}, v{AB+e}")
    for k in range(8): gissue(RG+8*k, sU+k, k == 7)
    a(f"s_movk_i32 s{sDone}, 0xff", f"s_mov_b32 s{sSpin}, 0", "s_waitcnt lgkmcnt(0)", "s_mov_b32 exec_lo, 0")
    unpack(GA, XS, 2)
    a("s_mov_b32 exec_lo, -1")
    for k in range(8):
        a(f"s_waitcnt vmcnt({14-2*k})"); gacc(RG+8*k, f"L_g0_{k}", k); a(f"L_g0_{k}:")
    a(f"s_cmp_eq_u32 s{sDone}, 0", "s_cbranch_scc1 L_gdone")
    for k in range(8):
        a(f"s_bitcmp1_b32 s{sDone}, {k}", f"s_cbranch_scc0 L_g1_{k}"); gissue(RG+8*k, sU+k, k == 7); a(f"L_g1_{k}:")
    a("L_gtop:", "s_waitcnt vmcnt(0)")
    for k in range(8):
        a(f"s_bitcmp1_b32 s{sDone}, {k}", f"s_cbranch_scc0 L_gb_{k}"); gacc(RG+8*k, f"L_gf_{k}", k); a(f"L_gb_{k}:")
    a(f"s_bcnt1_i32_b32 s{sTmp}, s{sDone}", "s_cbranch_scc0 L_gdone")
    a(f"s_bitcmp1_b32 s{sDone}, 7", "s_cbranch_scc1 L_gmany", f"s_cmp_eq_u32 s{sTmp}, 1", "s_cbranch_scc1 L_gone", "L_gmany:")
    a(f"s_add_u32 s{sSpin}, s{sSpin}, 1", f"s_cmp_lt_u32 s{sSpin}, 0x40000", "s_cbranch_scc1 L_gtop", "s_branch L_gdone")
    for k in range(8):
        a(f"L_gf_{k}:"); gissue(RG+8*k, sU+k, k == 7); a(f"s_branch L_gb_{k}")
    a("L_gone:")
    a(f"s_ff1_i32_b32 s{sTmp2}, s{sDone}", f"s_add_u32 s{sTmp2}, s{sTmp2}, s{sRU}", f"s_add_u32 s{sTmp2}, s{sTmp2}, 1", f"s_and_b32 s{sTmp2}, s{sTmp2}, 7", f"s_lshl_b32 s{sTmp2}, s{sTmp2}, 12", f"s_add_u32 s{sTmp2}, s{sTmp2}, s{sGB}")
    a("L_gone1:"); gissue(RG, sTmp2)
    a(f"s_add_u32 s{sSpin}, s{sSpin}, 1", f"s_cmp_ge_u32 s{sSpin}, 0x40000", "s_cbranch_scc1 L_gdone", "s_waitcnt vmcnt(0)")
    gacc(RG, "L_gone1", None)
    a("L_gdone:")
    c("---- h slice (fp32) and its mean / centred sum of squares (pivot = first element)")
    S1, S2, H4, XF = R2+10, R2+11, R2+4, R2
    for e in range(4): a(f"v_mov_b32 v{GA+4+e}, v{GA+e}")
    a(f"v_mov_b32 v{S1}, 0", f"v_mov_b32 v{S2}, 0")
    for e in range(4): a(f"v_permlane32_swap_b32 v{GA+4+e}, v{GA+e}")
    a(pa(GA, GA+4), pa(GA+2, GA+6))
    a(f"s_lshl_b32 s{sCnt}, s{sW}, 3", f"v_readlane_b32 s{sTmp2}, v{GA}, 0", f"ds_write_b128 v{aF}, v[{GA}:{GA+3}] offset:{HBo}", f"s_mov_b32 exec_lo, s{sEX}")
    neg = "op_sel_hi:[1,0] neg_lo:[0,1] neg_hi:[0,1]"
    a(f"v_pk_add_f32 v[{H4}:{H4+1}], v[{GA}:{GA+1}], s[{sTmp2}:{sTmp2+1}] {neg}", f"v_pk_add_f32 v[{H4+2}:{H4+3}], v[{GA+2}:{GA+3}], s[{sTmp2}:{sTmp2+1}] {neg}")
    a(f"v_pk_mul_f32 v[{XF}:{XF+1}], v[{H4}:{H4+1}], v[{H4}:{H4+1}]", pa(XF+2, H4+2, H4), f"v_pk_fma_f32 v[{XF}:{XF+1}], v[{H4+2}:{H4+3}], v[{H4+2}:{H4+3}], v[{XF}:{XF+1}]")
    a(f"v_add_f32 v{S1}, v{XF+2}, v{XF+3}", f"v_add_f32 v{S2}, v{XF}, v{XF+1}", "s_mov_b32 exec_lo, -1")
    fill = [f"v_mov_b32 v{T[0]}, s{sCnt}", f"v_mov_b32 v{T[1]}, 0", f"v_mov_b32 v{D0}, 0", f"v_mov_b32 v{D0+1}, 0", f"v_mov_b32 v{D0+2}, 0"]
    for ctl in ("row_ror:8 row_mask:0xf", "row_ror:4 row_mask:0xf", "row_ror:2 row_mask:0xf", "row_ror:1 row_mask:0xf", "row_bcast:15 row_mask:0x2"):
        a(fill.pop(0))
        for r in (S1, S2): a(f"v_add_f32_dpp v{r}, v{r}, v{r} {ctl} bank_mask:0xf")
    a(f"v_mul_f32 v{XF}, s{sIN}, v{S1}", f"v_mov_b32 v{D0+3}, 0", f"v_fma_f32 v{S2}, -v{XF}, v{S1}, v{S2}", f"v_add_f32 v{S1}, s{sTmp2}, v{XF}")
    a("s_mov_b32 exec_lo, 0x10000", "s_mov_b32 exec_hi, 0", f"ds_write_b64 v{T[0]}, v[{S1}:{S1+1}] offset:{STo}", "s_mov_b64 exec, -1", "s_waitcnt lgkmcnt(0)", "s_barrier")
    c("---- combine the four slices (128,128,128,64 columns) into mean and variance of h")
    ST, E, MU, RS = R2, R2+16, T[4], T[6]
    a(f"ds_read_b128 v[{ST}:{ST+3}], v{T[1]} offset:{STo}", f"ds_read_b128 v[{ST+4}:{ST+7}], v{T[1]} offset:{STo+16}")
    a(f"ds_read2_b32 v[{E}:{E+1}], v{aHA} offset0:0 offset1:2", f"ds_read2_b32 v[{E+2}:{E+3}], v{aHA} offset0:64 offset1:66", "s_waitcnt lgkmcnt(2)")
    a(f"v_add_f32 v{MU}, v{ST}, v{ST+2}", f"v_fma_f32 v{T[5]}, v{ST+6}, 0.5, v{ST+4}", f"v_add_f32 v{RS}, v{ST+1}, v{ST+3}", f"v_add_f32 v{MU}, v{MU}, v{T[5]}", f"v_add_f32 v{T[7]}, v{ST+5}, v{ST+7}")
    a(f"v_mul_f32 v{MU}, {hex(f2u(2.0/7))}, v{MU}", f"v_add_f32 v{RS}, v{RS}, v{T[7]}")
    for w in range(4): a(f"v_sub_f32 v{ST+2*w}, v{ST+2*w}, v{MU}")
    a(f"v_mul_f32 v{T[5]}, v{ST+6}, v{ST+6}", f"v_mul_f32 v{T[7]}, v{ST}, v{ST}", f"v_mul_f32 v{RS}, {inv448}, v{RS}")
    a(f"v_fmac_f32 v{T[7]}, v{ST+2}, v{ST+2}", f"v_fmac_f32 v{RS}, {hex(f2u(1.0/7))}, v{T[5]}", f"v_fmac_f32 v{T[7]}, v{ST+4}, v{ST+4}", "s_waitcnt lgkmcnt(0)")
    a(f"v_pk_add_f32 v[{E}:{E+1}], v[{E}:{E+1}], v[{MU}:{MU+1}] {neg}", f"v_fmac_f32 v{RS}, {hex(f2u(2.0/7))}, v{T[7]}")
    c("both layer norms: z1 = (h-mu)/sqrt(var+eps) has mean 0 and variance var/(var+eps), hence")
    c("LN(z1) = z1/sqrt(var/(var+eps) + eps) = (h-mu)/sqrt(var + eps*(var+eps))")
    a(f"v_pk_add_f32 v[{E+2}:{E+3}], v[{E+2}:{E+3}], v[{MU}:{MU+1}] {neg}", f"v_add_f32 v{T[5]}, {eps}, v{RS}", f"v_fmac_f32 v{RS}, {eps}, v{T[5]}", f"v_rsq_f32 v{RS}, v{RS}", "s_nop 0")
    a(f"v_pk_mul_f32 v[{E}:{E+1}], v[{E}:{E+1}], v[{RS}:{RS+1}] op_sel_hi:[1,0]", f"v_pk_mul_f32 v[{E+2}:{E+3}], v[{E+2}:{E+3}], v[{RS}:{RS+1}] op_sel_hi:[1,0]")
    a(f"v_cvt_pk_bf16_f32 v{S}, v{E}, v{E+1}", f"v_cvt_pk_bf16_f32 v{S+1}, v{E+2}, v{E+3}", "s_nop 0")
    c("---- w1 slice: wave w takes rows 112w..112w+111, partials summed through LDS")
    sbuild(AB, 0, range(4))
    for jj in range(7):
        nA = AB + 4*((jj+1) & 1)
        if jj < 6: sbuild(nA, jj+1, (0, 1))
        else: a("s_nop 1")
        smf(D0, AB + 4*(jj & 1), W1R + 8*jj, "v")
        if jj < 6: sbuild(nA, jj+1, (2, 3))
    a(f"v_lshlrev_b32 v{B1V}, 16, v{B1V}", f"v_lshlrev_b32 v{B1V+1}, 16, v{B1V+1}", "s_mov_b32 exec_lo, 0x00ff00ff", "s_mov_b32 exec_hi, 0xff00ff00", "s_nop 3")
    for t in range(4): a(f"ds_write_b32 v{aAW}, v{D0+t} offset:{APo + 32*t}")
    a("s_mov_b64 exec, -1", "s_waitcnt lgkmcnt(0)", "s_barrier")
    for k in range(4): a(f"ds_read_b128 v[{R2+4*k}:{R2+4*k+3}], v{aAR} offset:{APo + 64*(k >> 1) + 16*(k & 1)}")
    for e in range(8): a(f"v_mov_b32 v{D0+e}, 0")
    G2, U2 = T[4], T[6]
    for x in range(2):
        r = R2 + 8*x
        a(f"s_waitcnt lgkmcnt({2-2*x})", pa(r, r+2), pa(r+4, r+6), pa(r, r+4), f"v_add_f32 v{G2+x}, v{r}, v{r+1}")
    c("GELU(tanh form): 0.5 a (1 + tanh u) = a / (1 + exp(-2u)), u = sqrt(2/pi) (a + 0.044715 a^3)")
    beta, kap = 0.7978845608028654, 0.044715
    a(pa(G2, B1V), f"v_pk_mul_f32 v[{U2}:{U2+1}], v[{G2}:{G2+1}], v[{G2}:{G2+1}]")
    for x in range(2): a(f"v_mul_f32 v{U2+x}, {hex(f2u(kap))}, v{U2+x}")
    a(f"v_pk_fma_f32 v[{U2}:{U2+1}], v[{U2}:{U2+1}], v[{G2}:{G2+1}], v[{G2}:{G2+1}]")
    for x in range(2): a(f"v_mul_f32 v{U2+x}, {hex(f2u(-2*beta*math.log2(math.e)))}, v{U2+x}")
    for x in range(2): a(f"v_exp_f32 v{U2+x}, v{U2+x}")
    a("s_nop 0")
    for x in range(2): a(f"v_add_f32 v{U2+x}, 1.0, v{U2+x}")
    for x in range(2): a(f"v_rcp_f32 v{U2+x}, v{U2+x}")
    a("s_nop 0", f"v_pk_mul_f32 v[{G2}:{G2+1}], v[{G2}:{G2+1}], v[{U2}:{U2+1}]", f"v_cvt_pk_bf16_f32 v{S}, v{G2}, v{G2+1}", "s_nop 1")
    c("---- w2 slice, hand-off F")
    proj(4, W2R, "v")
    publish(sPF)
    c("---- the wave that holds columns 16j..16j+15 sums the 28 partials, adds b2 and h, stores the output")
    a(f"s_cmp_lg_u32 s{sW}, s{sFW}", "s_cbranch_scc1 L_end")
    FA, FB, FH, FO, aO = R2, R2+8, R2+12, R2+20, T[4]
    def fissue():
        a(f"buffer_load_dwordx4 v[{FA}:{FA+3}], v{aF0}, s[{sWS}:{sWS+3}], s{sFB} offen sc1", f"buffer_load_dwordx4 v[{FA+4}:{FA+7}], v{aF1}, s[{sWS}:{sWS+3}], s{sFB} offen sc1")
    fissue()
    for e in range(4): a(f"ds_bpermute_b32 v{FO+e}, v{aBF}, v{AB+e}")
    a(f"s_lshl_b32 s{sTmp}, s{sJ}, 5", f"v_and_b32 v{aO}, 3, v{vL}", f"v_lshlrev_b32 v{aO}, 3, v{aO}", f"v_add_lshl_u32 v{T[5]}, s{sTmp}, v{aO}, 1", f"ds_read_b128 v[{FH}:{FH+3}], v{T[5]} offset:{HBo}")
    unpack(FB, B2V, 2)
    a(f"s_mul_i32 s{sCnt}, s{sB}, 896", f"s_add_u32 s{sCnt}, s{sCnt}, s{sTmp}")
    srd(sX, 56, None, 3584*2)
    a(f"s_mov_b32 s{sSpin}, 0", "s_waitcnt lgkmcnt(0)", pa(FO, FB), pa(FO+2, FB+2), pa(FB, FH, FO), pa(FB+2, FH+2, FO+2), "s_branch L_fchk", "L_fpoll:")
    fissue()
    a(f"s_add_u32 s{sSpin}, s{sSpin}, 1", f"s_cmp_ge_u32 s{sSpin}, 0x40000", "s_cbranch_scc1 L_fdone", "L_fchk:", "s_waitcnt vmcnt(0)")
    tagchk(FA, TGF, TGF+1)
    a("s_mov_b32 exec_hi, 0xffff", pa(FA, FA+4), pa(FA+2, FA+6), "s_mov_b32 exec_hi, -1", "s_cbranch_vccnz L_fpoll", "L_fdone:")
    for rot in (4, 8):
        for e in range(4): a(f"v_add_f32_dpp v{FA+e}, v{FA+e}, v{FA+e} row_ror:{rot} row_mask:0xf bank_mask:0xf")
    for sw in ("v_permlane16_swap_b32", "v_permlane32_swap_b32"):
        for e in range(4): a(f"v_mov_b32 v{FA+4+e}, v{FA+e}")
        for e in range(4): a(f"{sw} v{FA+4+e}, v{FA+e}")
        a(pa(FA, FA+4), pa(FA+2, FA+6))
    a(pa(FA, FB), pa(FA+2, FB+2), f"v_cvt_pk_bf16_f32 v{FA}, v{FA}, v{FA+1}", f"v_cvt_pk_bf16_f32 v{FA+1}, v{FA+2}, v{FA+3}", "s_mov_b64 exec, 15")
    a(f"buffer_store_dwordx2 v[{FA}:{FA+1}], v{aO}, s[{sX}:{sX+3}], s{sCnt} offen")
    c("every reader of this batch's epoch word has published by now: advance it")
    a(f"s_cmp_lg_u32 s{sJ}, 0", "s_cbranch_scc1 L_end")
    a(f"s_lshl_b32 s{sTmp}, s{sB}, 7", f"v_mov_b32 v{T[5]}, s{sTag32}", "s_mov_b64 exec, 1", f"buffer_store_dword v{T[5]}, v{aO}, s[{sWS}:{sWS+3}], s{sTmp} offen")
    a("L_end:", "s_endpgm")
    a('.section .rodata,"a"', ".p2align 6", f".amdhsa_kernel {NAME}_kernel")
    for x in ("next_free_vgpr 512", "next_free_sgpr 102", "accum_offset 256", "group_segment_fixed_size 0", "kernarg_size 104", "user_sgpr_count 2",
              "user_sgpr_kernarg_segment_ptr 1", "system_sgpr_workgroup_id_x 1", "float_denorm_mode_32 3"): g.o.append("  .amdhsa_" + x)
    a(".end_amdhsa_kernel")
    return "\n".join(g.o) + "\n"

if __name__ == "__main__":
    kw = dict(x.split("=") for x in sys.argv[2:])
    open(sys.argv[1], "w").write(gen(**{k: eval(v) for k, v in kw.items()}))
```

```python
import sys, struct, math
NAME = "sequential_preLN__mha_block_cached__mixer_channel_mlp__decode"
def f2u(x): return struct.unpack("<I", struct.pack("<f", x))[0]

class G:
    def __init__(s): s.o = []; s.q = []; s.lab = 0
    def __call__(s, *xs): s.o.extend("    " + x if not x.endswith(":") and not x.startswith((".", ";")) else x for x in xs)
    def vm(s, text, tag): s(text); s.q.append(tag)
    def wait(s, tag, nop=True):
        if tag not in s.q:
            if nop: s("s_nop 0")
            return
        idx = max(i for i, t in enumerate(s.q) if t == tag)
        n = len(s.q) - 1 - idx; assert n <= 63
        s(f"s_waitcnt vmcnt({n})"); s.q = s.q[idx+1:]
    def label(s, p): s.lab += 1; return f"{p}_{s.lab}"

HEADER = """\
;
"""

def gen(NST=32, NX=24, DQ=3, K0=4, DH=6, DV=5, D2=6, DE=15, RCU=7, WEV=2.3, NP=3, BPF=7, QPF=0, WOF=0, WST=0, BAT=0, QAT=0, QS=0, QROW=1, QPOL='', WPOL='', BPOL='', XP=(16, 56, 84),
        PW=(11, 13, 12, 16, 10, 9, 15, 18, 14, 17, 19), PHS=((14, 4), (17, 1), (19, 132)), XT=(2, 0, 4, 2, 4, 3, 4, 0)):
    g = G(); a = g
    def c(t): a("; " + t)
    def perm_t(t): return sum(((t >> k) & 1) << PW[4+k] for k in range(7))
    ROFF, HOFF, XOFF, FOFF = 0x0, 0x8000, 0x10000, 0x100000
    vL, vKV = 0, 1
    T = list(range(2, 10))
    MK, Q, PH, PL, ACC, D0, D1, AB = 10, 14, 22, 30, 38, 54, 58, 62
    X8 = AB
    RG, W1R, W2R, WQR = 72, 136, 192, 136
    sK, sV, sWQ, sWO, sW1, sW2, sX, sWS = 4, 8, 12, 16, 20, 24, 28, 32
    sW, sI, sH, sB, sJ, sF, sOff, sRot, sCnt, sTmp, sTmp2, sR, sTag32, sC, sHI, sTM = range(62, 78)
    sPX, sGB, sU, sRU, sFB, sSpin, sPB, sPF, sDone, sEX, sIN = 78, 79, 80, 88, 89, 90, 91, 92, 93, 94, 95
    sB1, sB0, sEnd1 = 83, 84, 85

    a("; @launch grid=(256,1,1) block=(256,1,1) lds=16384")
    g.o.append(HEADER.rstrip("\n"))
    a('.amdgcn_target "amdgcn-amd-amdhsa--gfx950"', ".text", f".globl {NAME}_kernel", ".p2align 8", f".type {NAME}_kernel,@function", f"{NAME}_kernel:")
    a("s_cmp_ge_u32 s2, 256", "s_cbranch_scc1 L_end")
    a("s_load_dwordx16 s[36:51], s[0:1], 0", "s_load_dwordx8 s[52:59], s[0:1], 64", "s_load_dwordx2 s[60:61], s[0:1], 96")
    a(f"v_lshrrev_b32 v{T[0]}, 6, v0", f"v_and_b32 v{vL}, 63, v0", f"v_readfirstlane_b32 s{sW}, v{T[0]}")
    c("i = (wg&7)*32 + (wg>>3): workgroups that share a head's weights tend to share an L2.  h = i>>4, b = (i>>1)&7, j = 2h + (i&1)")
    a(f"s_and_b32 s{sI}, s2, 7", f"s_lshl_b32 s{sI}, s{sI}, 5", f"s_lshr_b32 s{sTmp}, s2, 3", f"s_add_u32 s{sI}, s{sI}, s{sTmp}")
    a(f"s_lshr_b32 s{sH}, s{sI}, 4", f"s_bfe_u32 s{sB}, s{sI}, 0x30001", f"s_and_b32 s{sTmp}, s{sI}, 1")
    a(f"s_lshl_b32 s{sJ}, s{sH}, 1", f"s_add_u32 s{sJ}, s{sJ}, s{sTmp}")
    c("lane l = (g = l>>4, c = l&15) reads 16 B at column c of the row picked by g, the wave and the step")
    a(f"v_lshrrev_b32 v{T[0]}, 4, v{vL}", f"v_and_b32 v{T[1]}, 15, v{vL}", f"v_lshlrev_b32 v{T[2]}, 4, v{T[1]}")
    a(f"v_and_b32 v{T[3]}, 1, v{T[0]}", f"v_lshl_add_u32 v{vKV}, v{T[3]}, {PW[0]}, v{T[2]}", f"v_lshrrev_b32 v{T[3]}, 1, v{T[0]}", f"v_lshl_add_u32 v{vKV}, v{T[3]}, {PW[1]}, v{vKV}")
    a(f"s_and_b32 s{sTmp}, s{sW}, 1", f"s_lshl_b32 s{sTmp}, s{sTmp}, {PW[2]}", f"s_lshr_b32 s{sTmp2}, s{sW}, 1", f"s_lshl_b32 s{sTmp2}, s{sTmp2}, {PW[3]}", f"s_or_b32 s{sTmp}, s{sTmp}, s{sTmp2}")
    a(f"v_add_u32 v{vKV}, s{sTmp}, v{vKV}")
    c("wq rows of step j: 112w + 16(j>>2) + (j&3) + 4g ; x gather for the same rows")
    a(f"s_mul_i32 s{sTmp}, s{sW}, {112*8192}", f"v_lshl_add_u32 v{T[3]}, v{T[0]}, {15 if QROW else 13}, v{T[2]}", f"v_add_u32 v{T[3]}, s{sTmp}, v{T[3]}")
    if QROW: a(f"v_lshrrev_b32 v{T[5]}, 2, v{T[1]}", f"v_lshl_add_u32 v{T[5]}, v{T[5]}, 2, v{T[0]}", f"v_and_b32 v{T[4]}, 3, v{T[1]}", f"v_lshl_add_u32 v{T[5]}, v{T[5]}, 2, v{T[4]}")
    else: a(f"v_lshl_add_u32 v{T[5]}, v{T[1]}, 2, v{T[0]}")
    a(f"v_lshlrev_b32 v{T[4]}, 4, v{vL}", f"s_mul_i32 s{sTmp}, s{sW}, 112", f"v_add_u32 v{T[5]}, s{sTmp}, v{T[5]}", f"v_lshlrev_b32 v{T[5]}, 1, v{T[5]}")
    c("K/V chunk = (32b + j) MiB; the walk through it starts at a workgroup-specific phase")
    a(f"s_lshl_b32 s{sTmp2}, s{sB}, 5", f"s_add_u32 s{sTmp2}, s{sTmp2}, s{sJ}", f"s_lshl_b32 s{sTmp2}, s{sTmp2}, 20", f"s_mov_b32 s{sRot}, 0")
    for k, m in PHS:
        if m & (m-1) == 0: a(f"s_bitcmp1_b32 s{sI}, {m.bit_length()-1}")
        else: a(f"s_and_b32 s{sTmp}, s{sI}, {m}", f"s_bcnt1_i32_b32 s{sTmp}, s{sTmp}", f"s_bitcmp1_b32 s{sTmp}, 0")
        a(f"s_cselect_b32 s{sTmp}, {1 << k}, 0", f"s_xor_b32 s{sRot}, s{sRot}, s{sTmp}")
    a(f"s_mov_b32 s{sK+2}, {1 << 20}", f"s_mov_b32 s{sK+3}, 0x20000", "s_waitcnt lgkmcnt(0)")
    a(f"s_add_u32 s{sK}, s38, s{sTmp2}", f"s_addc_u32 s{sK+1}, s39, 0", f"s_and_b32 s{sK+1}, s{sK+1}, 0xffff")
    iss = [0]
    NS = 2*NST + NX
    def hdst(u):
        if u < 2*NST: return ("a", 4*u)
        if u < NS: return ("v", 256 - 4*(NS - u))
        return ("v", RG + 4*(u % 16))
    def hissue():
        u = iss[0]; iss[0] += 1
        r, d = hdst(u); srdn = sK if u < 256 else sV
        if not u & 1: a(f"s_xor_b32 s{sOff}, s{sRot}, {hex(perm_t((u >> 1) & 127))}")
        g.vm(f"buffer_load_dwordx4 {r}[{d}:{d+3}], v{vKV}, s[{srdn}:{srdn+3}], s{sOff} offen{' offset:256' if u & 1 else ''} nt", f"u{u}")
    for _ in range(K0): hissue()
    def srd(s, lo, off, nrec):
        if off is None: a(f"s_mov_b32 s{s}, s{lo}", f"s_and_b32 s{s+1}, s{lo+1}, 0xffff")
        else: a(f"s_add_u32 s{s}, s{lo}, s{off}", f"s_addc_u32 s{s+1}, s{lo+1}, 0", f"s_and_b32 s{s+1}, s{s+1}, 0xffff")
        a(f"s_mov_b32 s{s+2}, {nrec}", f"s_mov_b32 s{s+3}, 0x20000")
    a(f"s_min_u32 s{sF}, s{sJ}, 27", f"s_mul_i32 s{sTmp}, s{sB}, 896")
    srd(sX, 36, sTmp, 896)
    g.vm(f"buffer_load_dwordx4 v[{X8}:{X8+3}], v{T[4]}, s[{sX}:{sX+3}], 0 offen nt", "x")
    g.vm(f"buffer_load_ushort v{PH}, v{T[5]}, s[{sX}:{sX+3}], 0 offen nt", "x")
    g.vm(f"buffer_load_ushort v{PH+1}, v{T[5]}, s[{sX}:{sX+3}], 0 offen offset:128 nt", "x")
    a(f"s_lshl_b32 s{sTmp}, s{sH}, 9")
    srd(sWQ, 42, sTmp, 0)
    a(f"s_sub_u32 s{sWQ+2}, {448*8192}, s{sTmp}")
    def qbulk():
        c("bulk L2 prefetch of the two heads' wq columns, 8 rows x 1 KiB per wave (values unused)")
        a(f"s_and_b32 s96, s{sI}, 31", f"s_add_u32 s96, s96, {QS}", "s_lshr_b32 s97, s96, 1", "s_lshl_b32 s97, s97, 3", "s_and_b32 s98, s96, 1", "s_add_u32 s97, s97, s98")
        a(f"s_mul_i32 s98, s{sW}, 56", "s_add_u32 s97, s97, s98", "s_lshl_b32 s97, s97, 14", "s_cmp_ge_u32 s96, 14", "s_cselect_b32 s97, 0x10000000, s97")
        a(f"s_and_b32 s96, s{sH}, 1", "s_lshl_b32 s96, s96, 9", f"v_lshrrev_b32 v{T[6]}, 4, v{vL}", f"v_bfe_u32 v{T[7]}, v{vL}, 3, 1", f"v_lshl_add_u32 v{T[6]}, v{T[6]}, 2, v{T[7]}", f"v_and_b32 v{T[5]}, 7, v{vL}")
        a(f"v_lshlrev_b32 v{T[5]}, 7, v{T[5]}", f"v_lshl_add_u32 v{T[6]}, v{T[6]}, 13, v{T[5]}")
        a(f"s_sub_u32 s{sWO}, s{sWQ}, s96", f"s_subb_u32 s{sWO+1}, s{sWQ+1}, 0", f"s_add_u32 s{sWO+2}, s{sWQ+2}, s96", f"s_mov_b32 s{sWO+3}, 0x20000")
        g.vm(f"buffer_load_dword v70, v{T[6]}, s[{sWO}:{sWO+3}], s97 offen", "pf")
    def bulk():
        c("bulk L2 prefetch of the wo / w2 / w1 lines used by the 32 workgroups of this group, one unit of whole DRAM rows per wave (values unused)")
        a(f"s_and_b32 s96, s{sI}, 31", "s_lshl_b32 s96, s96, 2", f"s_add_u32 s96, s96, s{sW}", f"s_lshr_b32 s97, s{sI}, 5", f"s_mov_b32 s{sW2+3}, 0x20000")
        a("s_cmp_ge_u32 s96, 96", "s_cbranch_scc1 L_bw1", "s_cmp_ge_u32 s96, 64", "s_cbranch_scc1 L_bw2")
        c("wo: 14 blocks of 32 KiB x 4 lines")
        a(f"s_mov_b32 s{sW2}, s44", f"s_and_b32 s{sW2+1}, s45, 0xffff", f"s_mul_i32 s98, s97, {14*32768}", f"s_add_u32 s{sW2+2}, s98, {14*32768 if BPF & 1 else 0}", "s_lshl_b32 s96, s96, 9", "s_add_u32 s98, s98, s96")
        a(f"v_lshrrev_b32 v{T[5]}, 2, v{vL}", f"v_and_b32 v{T[6]}, 3, v{vL}", f"v_lshlrev_b32 v{T[5]}, 15, v{T[5]}", "s_branch L_bgo", "L_bw2:")
        c("w2: 7 blocks x 8 lines")
        a(f"s_mov_b32 s{sW2}, s52", f"s_and_b32 s{sW2+1}, s53, 0xffff", f"s_mul_i32 s98, s97, {7*32768}", f"s_add_u32 s{sW2+2}, s98, {7*32768 if BPF & 2 else 0}", f"s_min_u32 s{sW2+2}, s{sW2+2}, {1792*896}")
        a("s_sub_u32 s96, s96, 64", "s_lshl_b32 s96, s96, 10", "s_add_u32 s98, s98, s96")
        a(f"v_lshrrev_b32 v{T[5]}, 3, v{vL}", f"v_and_b32 v{T[6]}, 7, v{vL}", f"v_lshlrev_b32 v{T[5]}, 15, v{T[5]}", "s_branch L_bgo", "L_bw1:")
        c("w1: 16 rows x 4 lines")
        a(f"s_mov_b32 s{sW2}, s48", f"s_and_b32 s{sW2+1}, s49, 0xffff", "s_cmp_eq_u32 s97, 7", f"s_cselect_b32 s{sW2+2}, 0, {448*3584 if BPF & 4 else 0}")
        a("s_sub_u32 s96, s96, 96", f"s_mul_i32 s98, s96, {16*3584}", "s_lshl_b32 s97, s97, 9", "s_add_u32 s98, s98, s97")
        a(f"v_lshrrev_b32 v{T[5]}, 2, v{vL}", f"v_and_b32 v{T[6]}, 3, v{vL}", f"v_mul_u32_u24 v{T[5]}, 3584, v{T[5]}", "L_bgo:")
        a(f"v_lshl_add_u32 v{T[5]}, v{T[6]}, 7, v{T[5]}")
        g.vm(f"buffer_load_dword v71, v{T[5]}, s[{sW2}:{sW2+3}], s98 offen{BPOL}", "pf")
    def qload(j):
        dst = WQR + 8*(j % DQ)
        a(f"s_mov_b32 s{sTmp}, {(16*(j >> 2) + (j & 3))*8192 if QROW else j*32768}")
        g.vm(f"buffer_load_dwordx4 v[{dst}:{dst+3}], v{T[3]}, s[{sWQ}:{sWQ+3}], s{sTmp} offen{QPOL}", f"q{j}a")
        g.vm(f"buffer_load_dwordx4 v[{dst+4}:{dst+7}], v{T[3]}, s[{sWQ}:{sWQ+3}], s{sTmp} offen offset:256{QPOL}", f"q{j}b")
    def kstage_upto(n):
        while iss[0] < n: hissue()
    def quota(j): return min(NS, K0 + math.ceil((j+1)*(NS-K0)/28))
    for j in range(DQ):
        qload(j); kstage_upto(quota(j))
        if QPF and QAT == j: qbulk()
        if BPF and BAT == j: bulk()
        if j == 1:
            srd(sV, 40, sTmp2, 1 << 20)
            a(f"s_lshl_b32 s{sTmp}, s{sB}, 7", f"s_load_dword s{sR}, s[60:61], s{sTmp}")
    c("one-hot masks of the MFMA A operand: row i keeps element i&7 of its 8-element group")
    a(f"s_mov_b32 s{sHI}, 0xffff0000", f"s_mov_b32 s{sTM}, 0xffffff00", f"s_mov_b32 s{sC}, {hex(f2u(math.log2(math.e)/16))}")
    a(f"v_and_b32 v{T[6]}, 1, v{vL}", f"v_lshlrev_b32 v{T[6]}, 4, v{T[6]}", f"v_mov_b32 v{T[2]}, 0xffff", f"v_lshlrev_b32 v{T[2]}, v{T[6]}, v{T[2]}", f"v_bfe_u32 v{T[6]}, v{vL}, 1, 2")
    for t in range(4): a(f"v_cmp_eq_u32 vcc, {t}, v{T[6]}", "s_nop 1", f"v_cndmask_b32 v{MK+t}, 0, v{T[2]}, vcc")

    def allred(op, regs, tmp):
        for rot in (8, 4, 2, 1):
            a(f"s_nop {2-len(regs)}")
            for r in regs: a(f"{op}_dpp v{r}, v{r}, v{r} row_ror:{rot} row_mask:0xf bank_mask:0xf")
        for sw in ("v_permlane16_swap_b32", "v_permlane32_swap_b32"):
            for r, t in zip(regs, tmp): a(f"v_mov_b32 v{t}, v{r}")
            a("s_nop 1")
            for r, t in zip(regs, tmp): a(f"{sw} v{t}, v{r}")
            a("s_nop 1")
            for r, t in zip(regs, tmp): a(f"{op} v{r}, v{r}, v{t}")
    def bfr(r): a(f"v_cvt_pk_bf16_f32 v{r}, v{r}, v{r}", f"v_and_b32 v{r}, s{sHI}, v{r}")
    def unpack(dst, src, n):
        for k in range(n): a(f"v_lshlrev_b32 v{dst+2*k}, 16, v{src+k}", f"v_and_b32 v{dst+2*k+1}, s{sHI}, v{src+k}")
    def abuild(dst, src, lane, src2=None):
        for t in range(4): a(f"v_and_b32_dpp v{dst+t}, v{src}, v{MK+t} row_newbcast:{lane} row_mask:0xf bank_mask:{'0xf' if src2 is None else '0x3'}")
        if src2 is not None:
            for t in range(4): a(f"v_and_b32_dpp v{dst+t}, v{src2}, v{MK+t} row_newbcast:{lane} row_mask:0xf bank_mask:0xc")
    def mfma(d, A, B, zero=False): a(f"v_mfma_f32_16x16x32_bf16 v[{d}:{d+3}], v[{A}:{A+3}], v[{B}:{B+3}], {'0' if zero else f'v[{d}:{d+3}]'}")

    c("---- LN(x[b]) with the reference's bf16 rounding points; variance around a pivot element")
    g.wait("x")
    mu, rs, t0, t1 = ACC+8, ACC+9, ACC+10, ACC+11
    unpack(ACC, X8, 4)
    a(f"v_lshlrev_b32 v{PH}, 16, v{PH}", f"v_lshlrev_b32 v{PH+1}, 16, v{PH+1}")
    a(f"v_readlane_b32 s{sTmp}, v{ACC}, 0", f"v_mov_b32 v{mu}, 0", f"v_mov_b32 v{rs}, 0", "s_mov_b32 exec_hi, 0x00ffffff")
    for k in range(8): a(f"v_subrev_f32 v{t0}, s{sTmp}, v{ACC+k}", f"v_add_f32 v{mu}, v{mu}, v{t0}", f"v_fmac_f32 v{rs}, v{t0}, v{t0}")
    a("s_mov_b32 exec_hi, -1")
    allred("v_add_f32", [mu, rs], [t0, t1])
    inv448, eps = hex(f2u(1.0/448)), hex(f2u(1e-5))
    a(f"v_mul_f32 v{mu}, {inv448}, v{mu}", f"v_mul_f32 v{rs}, {inv448}, v{rs}")
    a(f"v_fma_f32 v{rs}, -v{mu}, v{mu}, v{rs}", f"v_add_f32 v{mu}, s{sTmp}, v{mu}", f"v_max_f32 v{rs}, 0, v{rs}")
    bfr(mu); bfr(rs); a(f"v_add_f32 v{rs}, {eps}, v{rs}"); bfr(rs)
    a(f"v_sqrt_f32 v{rs}, v{rs}", "s_nop 0"); bfr(rs); a(f"v_rcp_f32 v{rs}, v{rs}", "s_nop 0")
    for r in (PH, PH+1):
        a(f"v_sub_f32 v{r}, v{r}, v{mu}"); bfr(r); a(f"v_mul_f32 v{r}, v{r}, v{rs}", f"v_cvt_pk_bf16_f32 v{r}, v{r}, v{r}")
    a("s_nop 1")
    c("---- q partial of this wave's 112 rows of wq")
    for j in range(28):
        A = AB + 4*(j & 1); dst = WQR + 8*(j % DQ)
        abuild(A, PH + (j >> 4), j & 15); a("s_nop 0")
        g.wait(f"q{j}a"); mfma(D0, A, dst, j == 0)
        g.wait(f"q{j}b"); mfma(D1, A, dst+4, j == 0)
        if j + DQ < 28: qload(j+DQ); kstage_upto(quota(j+DQ))
        if BPF and BAT == j + DQ: bulk()
    kstage_upto(NS + DH)
    c("---- sum the four partials through LDS, round q to bf16")
    a(f"v_and_b32 v{T[0]}, 15, v{vL}", f"v_lshlrev_b32 v{T[0]}, 5, v{T[0]}", f"v_and_b32 v{T[1]}, 16, v{vL}", f"v_add_u32 v{T[1]}, v{T[0]}, v{T[1]}")
    a(f"s_lshl_b32 s{sTmp}, s{sW}, 10", f"v_add_u32 v{T[1]}, s{sTmp}, v{T[1]}", "s_nop 2")
    a(f"ds_write_b128 v{T[1]}, v[{D0}:{D0+3}]", f"ds_write_b128 v{T[1]}, v[{D1}:{D1+3}] offset:512", "s_waitcnt lgkmcnt(0)", "s_barrier")
    busy = {hdst(u)[1] for u in range(2*NST, iss[0])}
    QG = [r for r in list(range(WQR, 256, 4)) + list(range(RG, RG+64, 4)) if r not in busy][:16]
    assert len(QG) == 16
    for k in range(16): a(f"ds_read_b128 v[{QG[k]}:{QG[k]+3}], v{T[0]} offset:{((k >> 1) & 3)*1024 + (k >> 3)*512 + (k & 1)*16}")
    a(f"s_mul_i32 s{sTmp}, s{sH}, {256*896}"); srd(sWO, 44, sTmp, 256*896)
    a(f"s_lshl_b32 s{sTmp}, s{sF}, 7"); srd(sW1, 48, sTmp, 0); a(f"s_sub_u32 s{sW1+2}, {448*3584}, s{sTmp}")
    a(f"s_mul_i32 s{sTmp}, s{sF}, {64*896}"); srd(sW2, 52, sTmp, 64*896)
    c("workgroups with j >= 28 own no MLP slice: empty descriptors")
    a(f"s_cmp_ge_u32 s{sJ}, 28", f"s_cselect_b32 s{sW1+2}, 0, s{sW1+2}", f"s_cselect_b32 s{sW2+2}, 0, s{sW2+2}")
    srd(sWS, 60, None, 0x200000)
    for hf in range(2):
        a(f"s_waitcnt lgkmcnt({8*(1-hf)})")
        q_ = lambda w, e: QG[(hf*4 + w)*2 + (e >> 2)] + (e & 3)
        pa = lambda x, y: f"v_pk_add_f32 v[{x}:{x+1}], v[{x}:{x+1}], v[{y}:{y+1}]"
        for e in range(0, 8, 2): a(pa(q_(0,e), q_(1,e)), pa(q_(2,e), q_(3,e)))
        for e in range(0, 8, 2): a(pa(q_(0,e), q_(2,e)))
        for e in range(4): a(f"v_cvt_pk_bf16_f32 v{Q+hf*4+e}, v{q_(0,2*e)}, v{q_(0,2*e)+1}")
    a(f"s_add_u32 s{sTag32}, s{sR}, 1")
    c("weight addresses: wo/w2 (2g + (c>>3))*896 + (16w + (c&7))*16 (+128 for the second column pass, out of range for wave 3); w1 (112w + 2g + (c>>3))*3584 + (c&7)*16")
    a(f"v_lshrrev_b32 v{T[0]}, 4, v{vL}", f"v_bfe_u32 v{T[1]}, v{vL}, 3, 1", f"v_lshl_add_u32 v{T[0]}, v{T[0]}, 1, v{T[1]}")
    a(f"v_and_b32 v{T[1]}, 7, v{vL}", f"s_lshl_b32 s{sTmp}, s{sW}, 4", f"v_add_u32 v{T[4]}, s{sTmp}, v{T[1]}", f"v_lshlrev_b32 v{T[4]}, 4, v{T[4]}")
    a(f"s_movk_i32 s{sTmp}, 896", f"v_mad_u32_u24 v{T[2]}, v{T[0]}, s{sTmp}, v{T[4]}")
    a(f"s_cmp_eq_u32 s{sW}, 3", f"s_cselect_b32 s{sTmp}, 0x10000000, 0", f"s_add_u32 s{sTmp}, s{sTmp}, 128", f"v_add_u32 v{T[4]}, s{sTmp}, v{T[2]}")
    a(f"s_mul_i32 s{sTmp}, s{sW}, 112", f"v_add_u32 v{T[0]}, s{sTmp}, v{T[0]}", f"v_lshlrev_b32 v{T[1]}, 4, v{T[1]}", f"s_movk_i32 s{sTmp}, 3584", f"v_mad_u32_u24 v{T[3]}, v{T[0]}, s{sTmp}, v{T[1]}")

    if BPF and BAT < 0: bulk()
    c("---- K pass")
    lanemap = [None]
    def kreduce(n):
        regs = [(ACC+j, [j]*16) for j in range(16)]
        a("s_nop 2")
        def lvl(regs, ctrl, m0, m1, sel):
            out = []
            for (r0, l0), (r1, l1) in zip(regs[0::2], regs[1::2]):
                a(f"v_add_f32_dpp v{r0}, v{r0}, v{r0} {ctrl} row_mask:0xf bank_mask:{m0}")
                out.append((r0, [l0[i] if sel(i) == 0 else l1[i] for i in range(16)]))
            for (r0, l0), (r1, l1) in zip(regs[0::2], regs[1::2]):
                a(f"v_add_f32_dpp v{r0}, v{r1}, v{r1} {ctrl} row_mask:0xf bank_mask:{m1}")
            return out
        regs = lvl(regs, "row_mirror", "0x3", "0xc", lambda i: i >> 3)
        tick()
        regs = lvl(regs, "row_half_mirror", "0x5", "0xa", lambda i: (i >> 2) & 1)
        for qp in ("[1,0,3,2]", "[2,3,0,1]"):
            for r, _ in regs: a(f"v_add_f32_dpp v{r}, v{r}, v{r} quad_perm:{qp} row_mask:0xf bank_mask:0xf")
        a("s_mov_b32 vcc_lo, 0xaaaaaaaa", "s_mov_b32 vcc_hi, 0xaaaaaaaa")
        a(f"v_cndmask_b32 v{regs[0][0]}, v{regs[0][0]}, v{regs[1][0]}, vcc", f"v_cndmask_b32 v{regs[2][0]}, v{regs[2][0]}, v{regs[3][0]}, vcc")
        a("s_mov_b32 vcc_lo, 0xcccccccc", "s_mov_b32 vcc_hi, 0xcccccccc", f"v_cndmask_b32 v{PH+n}, v{regs[0][0]}, v{regs[2][0]}, vcc")
        lanemap[0] = [regs[i & 3][1][i] for i in range(16)]
    wl = []
    def vneed(r): return max([-1] + [u for u in range(2*NST, NS) if hdst(u)[1] == r])
    def smov(v): return f"s_movk_i32 s{sTmp}, {v}" if v < 32768 else f"s_mov_b32 s{sTmp}, {v}"
    for jj in range(7):
        for L in range(2):
            r = W1R + 8*jj + 4*L
            wl.append((smov(3584*(16*jj + 8*L)), f"buffer_load_dwordx4 v[{r}:{r+3}], v{T[3]}, s[{sW1}:{sW1+3}], s{sTmp} offen{WPOL}", vneed(r)))
    for nj, rf, base, sr in ((4, "v", W2R, sW2), (16, "a", 0, sWO)):
        for jj in range(nj):
            for L in range(2):
                for ps in range(2):
                    r = base + (jj*2+ps)*8 + 4*L
                    need = vneed(r) if rf == "v" else (r//4 if r//4 < 2*NST else -1)
                    wl.append((smov(896*(16*jj + 8*L)), f"buffer_load_dwordx4 {rf}[{r}:{r+3}], v{T[2+2*ps]}, s[{sr}:{sr+3}], s{sTmp} offen{WPOL}", need))
    if WOF: wl = wl[30:] + wl[:30]
    def kcons(u):
        acc = ACC + (u >> 1) % 16; hf = u & 1
        g.wait(f"u{u}", nop=False)
        r, d = hdst(u)
        if r == "a":
            for e in range(4): a(f"v_accvgpr_read_b32 v{D0+4*hf+e}, a{d+e}")
            d = D0 + 4*hf
        for e in range(4): a(f"v_dot2_f32_bf16 v{acc}, v{d+e}, v{Q+4*hf+e}, {'0' if e == 0 and hf == 0 else f'v{acc}'}")
        if u % 32 == 31: kreduce(u // 32)
    st = dict(con=0, wc=0.0, n=0)
    def tick():
        u = iss[0]; depth = DH if u < 256 else DV
        if not (u - 16 < st["con"] or u - 16 < NS): return False
        g.wait(f"u{u-depth}", nop=False)
        hissue(); st["n"] += 1
        if st["n"] > WST: st["wc"] += 1.0/WEV
        if wl and st["wc"] >= 1:
            k = next((k for k, w in enumerate(wl) if st["con"] > w[2]), None)
            if k is not None:
                s0, ld, _ = wl.pop(k); a(s0); g.vm(ld, "w"); st["wc"] -= 1
        return True
    def run(cons, end):
        while st["con"] < end:
            depth = DH if iss[0] < 256 else DV
            can = tick() if iss[0] - st["con"] <= depth or st["con"] < NS + 16 else False
            n = 0
            while st["con"] < end and n < RCU and iss[0] - st["con"] > depth:
                u = st["con"]; st["con"] += 1; cons(u); n += 1
            assert can or n
    run(kcons, 256)
    inv = [lanemap[0].index(j) for j in range(16)]
    c("---- softmax numerators of this wave's 512 keys: scores rounded to bf16 as in the reference, true max, p = hi + lo in bf16")
    MC, LS = ACC, ACC+1
    for n in range(8): bfr(PH+n)
    a(f"v_max3_f32 v{MC}, v{PH}, v{PH+1}, v{PH+2}", f"v_max3_f32 v{MC}, v{MC}, v{PH+3}, v{PH+4}", f"v_max3_f32 v{MC}, v{MC}, v{PH+5}, v{PH+6}", f"v_max_f32 v{MC}, v{MC}, v{PH+7}")
    allred("v_max_f32", [MC], [T[0]]); tick()
    a(f"v_mul_f32 v{MC}, s{sC}, v{MC}")
    for n in range(8): a(f"v_fma_f32 v{PH+n}, v{PH+n}, s{sC}, -v{MC}")
    for n in range(8): a(f"v_exp_f32 v{PH+n}, v{PH+n}")
    a(f"v_add_f32 v{LS}, v{PH}, v{PH+1}")
    for n in range(2, 8): a(f"v_add_f32 v{LS}, v{LS}, v{PH+n}")
    for n in range(8):
        a(f"v_cvt_pk_bf16_f32 v{T[0]}, v{PH+n}, v{PH+n}", f"v_and_b32 v{T[1]}, s{sHI}, v{T[0]}", f"v_sub_f32 v{T[1]}, v{PH+n}, v{T[1]}")
        a(f"v_cvt_pk_bf16_f32 v{PL+n}, v{T[1]}, v{T[1]}", f"v_mov_b32 v{PH+n}, v{T[0]}")
    tick(); allred("v_add_f32", [LS], [T[0]])
    OPo, MLo, HBo, STo, APo = 0, 5120, 5248, 7296, 7424
    TAGV, F0, F2, MW, LW, HD = ACC+5, ACC, ACC+12, ACC+2, ACC+3, ACC+6
    FR = (F0, F0+1, F2, F2+1)
    a(f"s_lshl_b32 s{sTmp}, s{sW}, 3", f"v_mov_b32 v{T[0]}, s{sTmp}", f"ds_write_b64 v{T[0]}, v[{MC}:{MC+1}] offset:{MLo}")
    a(f"s_and_b32 s{sTmp}, s{sTag32}, 0xff", f"v_mov_b32 v{TAGV}, s{sTmp}")
    for e in range(8): a(f"v_mov_b32 v{D0+e}, 0")
    TQ = list(range(Q, Q+8))
    def xch_publish():
        c("---- workgroup (max, sum) -> header for the other key half")
        ML = TQ[0]; tick()
        a(f"v_mov_b32 v{HD}, 0", "s_waitcnt lgkmcnt(0)", "s_barrier")
        a(f"ds_read_b128 v[{ML}:{ML+3}], v{HD} offset:{MLo}", f"ds_read_b128 v[{ML+4}:{ML+7}], v{HD} offset:{MLo+16}", "s_waitcnt lgkmcnt(0)")
        a(f"v_max3_f32 v{MW}, v{ML}, v{ML+2}, v{ML+4}", f"v_max_f32 v{MW}, v{MW}, v{ML+6}", f"v_and_b32 v{MW}, s{sTM}, v{MW}")
        for w in range(4): a(f"v_sub_f32 v{FR[w]}, v{ML+2*w}, v{MW}")
        for w in range(4): a(f"v_exp_f32 v{FR[w]}, v{FR[w]}")
        a(f"v_mul_f32 v{LW}, v{FR[0]}, v{ML+1}")
        for w in range(1, 4): a(f"v_fmac_f32 v{LW}, v{FR[w]}, v{ML+2*w+1}")
        a(f"v_and_b32 v{LW}, s{sTM}, v{LW}", f"s_cmp_lg_u32 s{sW}, 0", "s_cbranch_scc1 L_nohdr")
        a(f"v_or_b32 v{TQ[0]}, v{MW}, v{TAGV}", f"v_or_b32 v{TQ[1]}, v{LW}, v{TAGV}", f"v_mov_b32 v{TQ[2]}, s{sTag32}", f"v_mov_b32 v{TQ[3]}, s{sTag32}")
        a(f"s_lshl_b32 s{sTmp}, s{sI}, 7", f"s_add_u32 s{sTmp}, s{sTmp}, {HOFF}", "s_mov_b64 exec, 1")
        a(f"buffer_store_dwordx4 v[{TQ[0]}:{TQ[3]}], v{HD}, s[{sWS}:{sWS+3}], s{sTmp} offen sc1", "s_mov_b64 exec, -1", "L_nohdr:")
    def xch_load(track=True):
        a(f"s_xor_b32 s{sTmp}, s{sI}, 1", f"s_lshl_b32 s{sTmp}, s{sTmp}, 7", f"s_add_u32 s{sTmp}, s{sTmp}, {HOFF}", f"v_mov_b32 v{TQ[0]}, 0")
        x = f"buffer_load_dwordx4 v[{HD}:{HD+3}], v{TQ[0]}, s[{sWS}:{sWS+3}], s{sTmp} offen sc1"
        g.vm(x, "hd") if track else a(x)
    def xch_finish():
        c("---- per-wave factors exp2(max_w - max) / sum over both key halves")
        g.wait("hd", nop=False)
        a(f"s_mov_b32 s{sSpin}, 0", "L_xchk:")
        a(f"v_xor_b32 v{TQ[1]}, v{HD}, v{TAGV}", f"v_bitop3_b32 v{TQ[1]}, v{TQ[1]}, v{HD+1}, v{TAGV} bitop3:0xf6", f"v_and_b32 v{TQ[1]}, 0xff, v{TQ[1]}")
        a(f"v_xor_b32 v{TQ[2]}, s{sTag32}, v{HD+2}", f"v_xor_b32 v{TQ[3]}, s{sTag32}, v{HD+3}", f"v_or3_b32 v{TQ[1]}, v{TQ[1]}, v{TQ[2]}, v{TQ[3]}", f"v_cmp_ne_u32 vcc, 0, v{TQ[1]}", "s_cbranch_vccz L_xok")
        a(f"s_add_u32 s{sSpin}, s{sSpin}, 1", f"s_cmp_ge_u32 s{sSpin}, 0x40000", "s_cbranch_scc1 L_xok")
        xch_load(False)
        a("s_waitcnt vmcnt(0)", "s_branch L_xchk", "L_xok:")
        a(f"v_and_b32 v{HD}, s{sTM}, v{HD}", f"v_and_b32 v{HD+1}, s{sTM}, v{HD+1}", f"v_max_f32 v{TQ[1]}, v{HD}, v{MW}")
        a(f"v_sub_f32 v{HD}, v{HD}, v{TQ[1]}", f"v_sub_f32 v{MW}, v{MW}, v{TQ[1]}", f"v_exp_f32 v{HD}, v{HD}", f"v_exp_f32 v{MW}, v{MW}", "s_nop 0")
        a(f"v_mul_f32 v{HD}, v{HD}, v{HD+1}", f"v_mul_f32 v{LW}, v{MW}, v{LW}", f"v_add_f32 v{LW}, v{LW}, v{HD}", f"v_rcp_f32 v{LW}, v{LW}", "s_nop 0", f"v_mul_f32 v{MW}, v{MW}, v{LW}")
        for r in FR: a(f"v_mul_f32 v{r}, v{r}, v{MW}")
        tick()
        c("workgroup classes that tend to finish late switch to one more load in flight a few blocks early (speed only)")
        tbl = sum(x << (4*k) for k, x in enumerate(XT))
        a(f"s_and_b32 s{sTmp}, s2, 7", f"s_lshl_b32 s{sTmp}, s{sTmp}, 2", f"s_lshr_b32 s{sTmp}, {hex(tbl)}, s{sTmp}", f"s_and_b32 s{sTmp}, s{sTmp}, 7", f"s_sub_u32 s{sEnd1}, 7, s{sTmp}")
    c("---- V pass: rows 0-7 of the tile take p_hi, rows 8-15 p_lo")
    vb = [sB0]
    def vissue(uu):
        d = RG + 4*(uu % 16)
        if not uu & 1: a(f"s_xor_b32 s{sOff}, s{vb[0] if uu < 32 else sB1}, {hex(perm_t((uu >> 1) & 15))}")
        a(f"buffer_load_dwordx4 v[{d}:{d+3}], v{vKV}, s[{sV}:{sV+3}], s{sOff} offen{' offset:256' if uu & 1 else ''} nt")
    def vstep(j, last, depth):
        A = AB + 4*(j & 1)
        abuild(A, PH+NP, inv[j], PL+NP)
        for hf in range(2):
            u = 2*j + hf
            a(f"s_waitcnt vmcnt({min(depth-1, 31-u) if last else depth-1})")
            if not (last and u + depth >= 32): vissue(u + depth)
            elif hf == 0: a("s_nop 0")
            mfma(D0 + 4*hf, A, RG + 4*(u % 16))
    def vcons(uu):
        u = uu - 256; j = (u >> 1) & 15; A = AB + 4*(j & 1)
        if not u & 1: abuild(A, PH + (u >> 5), inv[j], PL + (u >> 5)); a("s_nop 0"); g.wait(f"u{uu}")
        else: g.wait(f"u{uu}", nop=False)
        mfma(D0 + 4*(u & 1), A, RG + 4*(uu % 16))
    for x, fn in zip(XP, (xch_publish, xch_load, xch_finish)): run(vcons, 256 + x); fn()
    run(vcons, 256 + 32*NP)
    assert not wl, len(wl)
    assert iss[0] == 256 + 32*NP + DV and g.q[-DV:] == [f"u{256+32*NP+k}" for k in range(DV)]
    def vloop(lab, depth, end):
        a(f"s_cmp_ge_u32 s{sCnt}, {end}", f"s_cbranch_scc1 {lab}_skip", f"{lab}:")
        for j in range(16): vstep(j, False, depth)
        for k in range(NP, 7): a(f"v_mov_b32 v{PH+k}, v{PH+k+1}", f"v_mov_b32 v{PL+k}, v{PL+k+1}")
        a(f"s_mov_b32 s{sB0}, s{sB1}", f"s_add_u32 s{sTmp2}, s{sCnt}, 2", f"s_mov_b32 s{sB1}, s{sRot}")
        for k in range(3): a(f"s_bitcmp1_b32 s{sTmp2}, {k}", f"s_cselect_b32 s{sTmp}, {1 << PW[8+k]}, 0", f"s_xor_b32 s{sB1}, s{sB1}, s{sTmp}")
        a(f"s_add_u32 s{sCnt}, s{sCnt}, 1", f"s_cmp_lt_u32 s{sCnt}, {end}", f"s_cbranch_scc1 {lab}", f"{lab}_skip:")
    a(f"s_mov_b32 s{sCnt}, {NP}", f"s_xor_b32 s{sB0}, s{sRot}, {hex(perm_t(16*NP))}", f"s_xor_b32 s{sB1}, s{sRot}, {hex(perm_t(16*NP+16))}")
    vloop("L_vloop", DV, f"s{sEnd1}")
    for uu in range(DV, D2): vissue(uu)
    vloop("L_vloop2", D2, 7)
    a(f"s_mov_b32 s{sRot}, s{sB0}"); vb[0] = sRot
    for uu in range(D2, DE): vissue(uu)

    c("---- epilogue addresses, biases and x slice, in the shadow of the last V block")
    aOW, aOR, aPUB, aF0, SM, SIX, aG, XS = ACC+2, ACC+3, ACC+4, 71, ACC+6, ACC+10, ACC+11, ACC+14
    B1V, B2V, aHA, aAW, aAR, aF = Q, Q+2, Q+4, Q+5, Q+6, Q+7
    aG7, TG7, aBP, aBF, TGF, aF1 = PH+4, PH+6, PL+4, PL+5, PL+6, 70
    tg, tc, t2, t3, aT = T[0], T[1], T[2], T[3], T[4]
    a(f"v_lshrrev_b32 v{tg}, 4, v{vL}", f"v_and_b32 v{tc}, 15, v{vL}")
    a(f"v_bfe_u32 v{t2}, v{vL}, 1, 2", f"v_and_b32 v{t3}, 1, v{vL}", f"v_lshl_add_u32 v{t2}, v{t2}, 1, v{t3}", f"v_bfe_u32 v{t3}, v{vL}, 4, 1", f"v_lshl_add_u32 v{t2}, v{t2}, 1, v{t3}")
    a(f"v_mul_u32_u24 v{aOW}, 80, v{t2}", f"v_lshrrev_b32 v{t2}, 5, v{vL}", f"v_bfe_u32 v{t3}, v{vL}, 3, 1", f"v_lshl_add_u32 v{t2}, v{t2}, 1, v{t3}", f"v_lshl_add_u32 v{aOW}, v{t2}, 3, v{aOW}")
    a(f"s_mul_i32 s{sTmp}, s{sW}, 1280", f"v_add_u32 v{aOW}, s{sTmp}, v{aOW}")
    a(f"v_and_b32 v{t2}, 3, v{vL}", f"v_lshl_add_u32 v{t2}, v{t2}, 2, v{tg}", f"v_mul_u32_u24 v{aOR}, 80, v{t2}", f"v_lshl_add_u32 v{aOR}, v{t3}, 5, v{aOR}")
    a(f"v_lshlrev_b32 v{t2}, 2, v{t2}", f"v_add_u32 v{aT}, v{t2}, v{t3}", f"s_mul_i32 s{sTmp}, s{sW}, 112", f"v_add_u32 v{aHA}, s{sTmp}, v{aT}", f"v_lshlrev_b32 v{aHA}, 2, v{aHA}", f"v_add_u32 v{aHA}, {HBo}, v{aHA}")
    a(f"v_lshrrev_b32 v{aAR}, 3, v{aT}", f"v_lshl_add_u32 v{aAR}, v{aT}, 1, v{aAR}", f"v_lshlrev_b32 v{aAR}, 4, v{aAR}", f"s_lshl_b32 s{sTmp}, s{sF}, 6", f"v_add_u32 v{aT}, s{sTmp}, v{aT}", f"v_lshlrev_b32 v{aT}, 1, v{aT}")
    a(f"global_load_ushort v{B1V}, v{aT}, s[50:51] nt", f"global_load_ushort v{B1V+1}, v{aT}, s[50:51] offset:4 nt")
    a(f"v_and_b32 v{t2}, 7, v{vL}", f"v_bfe_u32 v{aAW}, v{vL}, 4, 1", f"v_lshl_add_u32 v{aAW}, v{t2}, 1, v{aAW}", f"v_lshlrev_b32 v{aAW}, 7, v{aAW}", f"v_lshl_add_u32 v{aAW}, v{t3}, 2, v{aAW}", f"v_lshl_add_u32 v{aAW}, v{t2}, 4, v{aAW}")
    a(f"s_lshl_b32 s{sTmp}, s{sW}, 3", f"v_add_u32 v{aAW}, s{sTmp}, v{aAW}")
    a(f"v_lshrrev_b32 v{t2}, 5, v{vL}", f"v_lshlrev_b32 v{aPUB}, 8, v{t2}", f"v_lshl_add_u32 v{aPUB}, v{tc}, 5, v{aPUB}", f"v_and_b32 v{t3}, 16, v{vL}", f"v_add_u32 v{aPUB}, v{aPUB}, v{t3}")
    a(f"s_lshl_b32 s{sTmp}, s{sW}, 9", f"v_add_u32 v{aPUB}, s{sTmp}, v{aPUB}", f"s_cmp_eq_u32 s{sW}, 3", f"s_cselect_b32 s{sTmp2}, 15, 31")
    a(f"v_and_b32 v{t3}, 31, v{vL}", f"v_min_u32 v{t3}, s{sTmp2}, v{t3}", f"v_lshlrev_b32 v{aG}, 4, v{t3}", f"v_lshl_add_u32 v{aG}, v{t2}, 15, v{aG}", f"v_add_u32 v{aG}, s{sTmp}, v{aG}")
    c("this workgroup's own partials are taken from registers: their lanes read out of range (zero) and expect tag 0")
    a(f"v_lshrrev_b32 v{T[5]}, 4, v{t3}", f"v_and_b32 v{T[6]}, 1, v{t3}", f"v_lshl_add_u32 v{T[5]}, v{T[5]}, 1, v{T[6]}", f"v_bfe_u32 v{T[6]}, v{t3}, 1, 3", f"v_lshl_add_u32 v{T[5]}, v{T[5]}, 4, v{T[6]}", f"v_lshlrev_b32 v{aBP}, 2, v{T[5]}")
    a(f"s_cmp_lt_u32 s{sJ}, 16", "s_cselect_b32 vcc_lo, -1, 0", "s_cselect_b32 vcc_hi, 0, -1", f"v_mov_b32 v{T[5]}, 0x10000000")
    a(f"v_cndmask_b32 v{T[5]}, v{aG}, v{T[5]}, vcc", f"v_cndmask_b32 v{T[6]}, v{TAGV}, 0, vcc", f"s_bitcmp1_b32 s{sJ}, 0", "s_cselect_b64 vcc, -1, 0")
    a(f"v_cndmask_b32 v{aG7}, v{T[5]}, v{aG}, vcc", f"v_cndmask_b32 v{aG7+1}, v{aG}, v{T[5]}, vcc", f"v_cndmask_b32 v{TG7}, v{T[6]}, v{TAGV}, vcc", f"v_cndmask_b32 v{TG7+1}, v{TAGV}, v{T[6]}, vcc")
    a(f"s_lshl_b32 s{sTmp}, s{sW}, 8", f"v_lshlrev_b32 v{t3}, 3, v{t3}", f"v_add_u32 v{aF}, s{sTmp}, v{t3}")
    a(f"buffer_load_dwordx2 v[{XS}:{XS+1}], v{aF}, s[{sX}:{sX+3}], 0 offen nt", f"v_lshlrev_b32 v{aF}, 1, v{aF}")
    a(f"v_and_b32 v{t3}, 3, v{vL}", f"v_lshlrev_b32 v{t3}, 3, v{t3}", f"s_lshl_b32 s{sTmp}, s{sF}, 5", f"v_add_u32 v{t3}, s{sTmp}, v{t3}")
    a(f"global_load_dwordx2 v[{B2V}:{B2V+1}], v{t3}, s[54:55] nt")
    c("sparse-MFMA one-hot masks and index")
    a(f"v_bfe_u32 v{t2}, v{vL}, 2, 1", f"v_cmp_eq_u32 vcc, 0, v{t2}", f"v_mov_b32 v{t3}, 0xffff", f"v_and_b32 v{SIX}, 3, v{vL}")
    a(f"v_cndmask_b32 v{SM}, 0, v{t3}, vcc", f"v_cndmask_b32 v{SM+1}, v{t3}, 0, vcc", f"v_mul_u32_u24 v{SIX}, 0x5555, v{SIX}", f"v_lshlrev_b32 v{SM+2}, 16, v{SM}", f"v_lshlrev_b32 v{SM+3}, 16, v{SM+1}")
    a(f"s_cmp_eq_u32 s{sW}, 3", f"s_cselect_b32 s{sPX}, 0, 0x00ff00ff", f"s_cselect_b32 s{sEX}, 0xffff, -1", f"s_mov_b32 s{sIN}, {hex(f2u(1.0/128))}", f"s_cselect_b32 s{sIN}, {hex(f2u(1.0/64))}, s{sIN}")
    a(f"s_bfe_u32 s{sRU}, s{sJ}, 0x30001", f"s_lshl_b32 s{sGB}, s{sB}, 16", f"s_lshl_b32 s{sPB}, s{sJ}, 11", f"s_add_u32 s{sPB}, s{sPB}, s{sGB}")
    a(f"s_add_u32 s{sPF}, s{sPB}, {FOFF}", f"s_add_u32 s{sPB}, s{sPB}, {XOFF}", f"s_lshl_b32 s{sFB}, s{sF}, 6", f"s_add_u32 s{sFB}, s{sFB}, s{sGB}", f"s_add_u32 s{sFB}, s{sFB}, {FOFF}", f"s_add_u32 s{sGB}, s{sGB}, {XOFF}")
    for k in range(8): a(f"s_add_u32 s{sU+k}, s{sRU}, {k+1}", f"s_and_b32 s{sU+k}, s{sU+k}, 7", f"s_lshl_b32 s{sU+k}, s{sU+k}, 12", f"s_add_u32 s{sU+k}, s{sU+k}, s{sGB}")
    a(f"v_lshrrev_b32 v{T[0]}, 2, v{vL}", f"v_and_b32 v{T[1]}, 3, v{vL}", f"v_lshlrev_b32 v{T[1]}, 4, v{T[1]}", f"v_add_u32 v{T[2]}, 16, v{T[0]}", f"v_min_u32 v{T[2]}, 27, v{T[2]}")
    a(f"v_lshl_add_u32 v{aF0}, v{T[0]}, 11, v{T[1]}", f"v_lshl_add_u32 v{aF1}, v{T[2]}, 11, v{T[1]}", f"v_mov_b32 v{T[3]}, 0x10000000")
    a(f"v_cmp_eq_u32 vcc, s{sJ}, v{T[0]}", f"v_and_b32 v{T[5]}, 1, v{vL}", f"v_bfe_u32 v{T[6]}, v{vL}, 1, 1")
    a(f"v_cndmask_b32 v{aF0}, v{aF0}, v{T[3]}, vcc", f"v_cndmask_b32 v{TGF}, v{TAGV}, 0, vcc")
    a(f"v_cmp_eq_u32 vcc, s{sJ}, v{T[2]}", f"v_lshl_add_u32 v{T[5]}, v{T[5]}, 4, v{T[6]}", f"s_and_b32 s{sTmp}, s{sJ}, 3")
    a(f"v_cndmask_b32 v{aF1}, v{aF1}, v{T[3]}, vcc", f"v_cndmask_b32 v{TGF+1}, v{TAGV}, 0, vcc")
    a(f"s_lshl_b32 s{sTmp}, s{sTmp}, 1", f"s_bfe_u32 s{sTmp2}, s{sJ}, 0x10002", f"s_lshl_b32 s{sTmp2}, s{sTmp2}, 5", f"s_add_u32 s{sTmp}, s{sTmp}, s{sTmp2}")
    sFW = sR
    a(f"v_add_u32 v{aBF}, s{sTmp}, v{T[5]}", f"v_lshlrev_b32 v{aBF}, 2, v{aBF}", f"s_lshr_b32 s{sFW}, s{sJ}, 3")
    c("pull this wave's own hand-off lines on die ahead of time (values unused)")
    a("s_mov_b32 exec_lo, 0x00110011", f"s_and_b32 exec_hi, s{sPX}, 0x00110011")
    a(f"buffer_load_dword v{T[7]}, v{aPUB}, s[{sWS}:{sWS+3}], s{sPB} offen sc1", f"buffer_load_dword v{T[7]}, v{aPUB}, s[{sWS}:{sWS+3}], s{sPF} offen sc1", "s_mov_b64 exec, -1")
    for j in range(16): vstep(j, True, DE)

    c("---- o partial (hi + lo rows) -> LDS -> normalised sum of the four waves, bf16")
    a("s_nop 7")
    for t in range(4): a(f"v_permlane32_swap_b32 v{D0+t}, v{D1+t}")
    for t, r in enumerate((0, 2, 1, 3)): a(f"v_add_f32 v{AB+r}, v{D0+t}, v{D1+t}")
    a(f"ds_write_b64 v{aOW}, v[{AB}:{AB+1}] offset:{OPo}", f"ds_write_b64 v{aOW}, v[{AB+2}:{AB+3}] offset:{OPo+32}", "s_waitcnt lgkmcnt(0)", "s_barrier")
    for w in range(4):
        for hh in range(2): a(f"ds_read_b128 v[{RG+8*w+4*hh}:{RG+8*w+4*hh+3}], v{aOR} offset:{OPo + w*1280 + 16*hh}")
    for e in range(8): a(f"v_mov_b32 v{D0+e}, 0")
    for w in range(4):
        a(f"s_waitcnt lgkmcnt({6-2*w})")
        Fp = (F0, F0, F2, F2)[w]; o = w & 1
        for k in range(4):
            r = RG + 2*k
            if w == 0: a(f"v_pk_mul_f32 v[{r}:{r+1}], v[{r}:{r+1}], v[{Fp}:{Fp+1}] op_sel_hi:[1,0]")
            else: a(f"v_pk_fma_f32 v[{r}:{r+1}], v[{r+8*w}:{r+8*w+1}], v[{Fp}:{Fp+1}], v[{r}:{r+1}] op_sel:[0,{o},0] op_sel_hi:[1,{o},1]")
    S = PL
    for u in range(4): a(f"v_cvt_pk_bf16_f32 v{S+u}, v{RG+2*u}, v{RG+2*u+1}")
    def sbuild(dst, n, ts):
        for t in ts: a(f"v_and_b32_dpp v{dst+t}, v{S + (n >> 2)}, v{SM+t} quad_perm:[{n&3},{n&3},{n&3},{n&3}] row_mask:0xf bank_mask:0xf")
    def smf(d, A, B, br): a(f"v_smfmac_f32_16x16x64_bf16 v[{d}:{d+3}], v[{A}:{A+3}], {br}[{B}:{B+7}], v{SIX}")
    BUF = [AB, AB+4, PH]
    def proj(nj, breg, br):
        sbuild(BUF[0], 0, range(4)); sbuild(BUF[1], 1, range(4))
        for jj in range(nj):
            A, nA = BUF[jj % 3], BUF[(jj+2) % 3]
            smf(D0, A, breg + (jj*2)*8, br)
            if jj + 2 < nj: sbuild(nA, jj+2, (0, 1))
            smf(D1, A, breg + (jj*2+1)*8, br)
            if jj + 2 < nj: sbuild(nA, jj+2, (2, 3))
    def publish(so):
        a("s_nop 7")
        for t in range(4): a(f"v_permlane32_swap_b32 v{D0+t}, v{D1+t}")
        for t in range(4): a(f"v_add_f32_dpp v{D0+t}, v{D1+t}, v{D0+t} row_ror:8 row_mask:0xf bank_mask:0xf")
        for t in range(4): a(f"v_bfi_b32 v{AB+t}, s{sTM}, v{D0+t}, v{TAGV}")
        a("s_mov_b32 exec_lo, 0x00ff00ff", f"s_mov_b32 exec_hi, s{sPX}")
        a(f"buffer_store_dwordx4 v[{AB}:{AB+3}], v{aPUB}, s[{sWS}:{sWS+3}], s{so} offen sc1", "s_mov_b64 exec, -1")
    c("---- y partial = o @ wo[head]: wave w owns columns 128w..128w+127, 16 rows x 64 columns per sparse MFMA")
    proj(16, 0, "a")
    publish(sPB)
    a(f"s_cmp_ge_u32 s{sJ}, 28", "s_cbranch_scc1 L_end")
    c("---- hand-off X: sum the 32 partials of this batch (8 slots of 4 producers); lanes 32-63 start from x")
    GA, CK, R2 = D0, T[1], RG+32
    def gissue(r, so, own=False):
        a(f"buffer_load_dwordx4 v[{r}:{r+3}], v{aG7 if own else aG}, s[{sWS}:{sWS+3}], s{so} offen sc1")
        a(f"buffer_load_dwordx4 v[{r+4}:{r+7}], v{aG7+1 if own else aG}, s[{sWS}:{sWS+3}], s{so} offen offset:2048 sc1")
    def tagchk(r, ta=TAGV, tb=TAGV):
        a(f"v_xor_b32 v{CK}, v{r}, v{ta}", f"v_xor_b32 v{T[2]}, v{r+4}, v{tb}")
        a(f"v_bitop3_b32 v{CK}, v{CK}, v{r+2}, v{ta} bitop3:0xf6", f"v_bitop3_b32 v{T[2]}, v{T[2]}, v{r+6}, v{tb} bitop3:0xf6")
        a(f"v_bitop3_b32 v{CK}, v{CK}, v{T[2]}, s{sTM} bitop3:0x54", f"v_cmp_ne_u32 vcc, 0, v{CK}")
    pa = lambda x, y, z=None: f"v_pk_add_f32 v[{x}:{x+1}], v[{x if z is None else z}:{(x if z is None else z)+1}], v[{y}:{y+1}]"
    def gacc(r, L, k):
        tagchk(r, TG7, TG7+1) if k == 7 else tagchk(r)
        a(pa(r, r+4), pa(r+2, r+6), f"s_cbranch_vccnz {L}", pa(GA, r), pa(GA+2, r+2))
        if k is not None: a(f"s_bitset0_b32 s{sDone}, {k}")
    for e in range(4): a(f"ds_bpermute_b32 v{GA+e}, v{aBP}, v{AB+e}")
    for k in range(8): gissue(RG+8*k, sU+k, k == 7)
    a(f"s_movk_i32 s{sDone}, 0xff", f"s_mov_b32 s{sSpin}, 0", "s_waitcnt lgkmcnt(0)", "s_mov_b32 exec_lo, 0")
    unpack(GA, XS, 2)
    a("s_mov_b32 exec_lo, -1")
    for k in range(8):
        a(f"s_waitcnt vmcnt({14-2*k})"); gacc(RG+8*k, f"L_g0_{k}", k); a(f"L_g0_{k}:")
    a(f"s_cmp_eq_u32 s{sDone}, 0", "s_cbranch_scc1 L_gdone")
    for k in range(8):
        a(f"s_bitcmp1_b32 s{sDone}, {k}", f"s_cbranch_scc0 L_g1_{k}"); gissue(RG+8*k, sU+k, k == 7); a(f"L_g1_{k}:")
    a("L_gtop:", "s_waitcnt vmcnt(0)")
    for k in range(8):
        a(f"s_bitcmp1_b32 s{sDone}, {k}", f"s_cbranch_scc0 L_gb_{k}"); gacc(RG+8*k, f"L_gf_{k}", k); a(f"L_gb_{k}:")
    a(f"s_bcnt1_i32_b32 s{sTmp}, s{sDone}", "s_cbranch_scc0 L_gdone")
    a(f"s_bitcmp1_b32 s{sDone}, 7", "s_cbranch_scc1 L_gmany", f"s_cmp_eq_u32 s{sTmp}, 1", "s_cbranch_scc1 L_gone", "L_gmany:")
    a(f"s_add_u32 s{sSpin}, s{sSpin}, 1", f"s_cmp_lt_u32 s{sSpin}, 0x40000", "s_cbranch_scc1 L_gtop", "s_branch L_gdone")
    for k in range(8):
        a(f"L_gf_{k}:"); gissue(RG+8*k, sU+k, k == 7); a(f"s_branch L_gb_{k}")
    a("L_gone:")
    a(f"s_ff1_i32_b32 s{sTmp2}, s{sDone}", f"s_add_u32 s{sTmp2}, s{sTmp2}, s{sRU}", f"s_add_u32 s{sTmp2}, s{sTmp2}, 1", f"s_and_b32 s{sTmp2}, s{sTmp2}, 7", f"s_lshl_b32 s{sTmp2}, s{sTmp2}, 12", f"s_add_u32 s{sTmp2}, s{sTmp2}, s{sGB}")
    a("L_gone1:"); gissue(RG, sTmp2)
    a(f"s_add_u32 s{sSpin}, s{sSpin}, 1", f"s_cmp_ge_u32 s{sSpin}, 0x40000", "s_cbranch_scc1 L_gdone", "s_waitcnt vmcnt(0)")
    gacc(RG, "L_gone1", None)
    a("L_gdone:")
    c("---- h slice (fp32) and its mean / centred sum of squares (pivot = first element)")
    S1, S2, H4, XF = R2+10, R2+11, R2+4, R2
    for e in range(4): a(f"v_mov_b32 v{GA+4+e}, v{GA+e}")
    a(f"v_mov_b32 v{S1}, 0", f"v_mov_b32 v{S2}, 0")
    for e in range(4): a(f"v_permlane32_swap_b32 v{GA+4+e}, v{GA+e}")
    a(pa(GA, GA+4), pa(GA+2, GA+6))
    a(f"s_lshl_b32 s{sCnt}, s{sW}, 3", f"v_readlane_b32 s{sTmp2}, v{GA}, 0", f"ds_write_b128 v{aF}, v[{GA}:{GA+3}] offset:{HBo}", f"s_mov_b32 exec_lo, s{sEX}")
    neg = "op_sel_hi:[1,0] neg_lo:[0,1] neg_hi:[0,1]"
    a(f"v_pk_add_f32 v[{H4}:{H4+1}], v[{GA}:{GA+1}], s[{sTmp2}:{sTmp2+1}] {neg}", f"v_pk_add_f32 v[{H4+2}:{H4+3}], v[{GA+2}:{GA+3}], s[{sTmp2}:{sTmp2+1}] {neg}")
    a(f"v_pk_mul_f32 v[{XF}:{XF+1}], v[{H4}:{H4+1}], v[{H4}:{H4+1}]", pa(XF+2, H4+2, H4), f"v_pk_fma_f32 v[{XF}:{XF+1}], v[{H4+2}:{H4+3}], v[{H4+2}:{H4+3}], v[{XF}:{XF+1}]")
    a(f"v_add_f32 v{S1}, v{XF+2}, v{XF+3}", f"v_add_f32 v{S2}, v{XF}, v{XF+1}", "s_mov_b32 exec_lo, -1")
    fill = [f"v_mov_b32 v{T[0]}, s{sCnt}", f"v_mov_b32 v{T[1]}, 0", f"v_mov_b32 v{D0}, 0", f"v_mov_b32 v{D0+1}, 0", f"v_mov_b32 v{D0+2}, 0"]
    for ctl in ("row_ror:8 row_mask:0xf", "row_ror:4 row_mask:0xf", "row_ror:2 row_mask:0xf", "row_ror:1 row_mask:0xf", "row_bcast:15 row_mask:0x2"):
        a(fill.pop(0))
        for r in (S1, S2): a(f"v_add_f32_dpp v{r}, v{r}, v{r} {ctl} bank_mask:0xf")
    a(f"v_mul_f32 v{XF}, s{sIN}, v{S1}", f"v_mov_b32 v{D0+3}, 0", f"v_fma_f32 v{S2}, -v{XF}, v{S1}, v{S2}", f"v_add_f32 v{S1}, s{sTmp2}, v{XF}")
    a("s_mov_b32 exec_lo, 0x10000", "s_mov_b32 exec_hi, 0", f"ds_write_b64 v{T[0]}, v[{S1}:{S1+1}] offset:{STo}", "s_mov_b64 exec, -1", "s_waitcnt lgkmcnt(0)", "s_barrier")
    c("---- combine the four slices (128,128,128,64 columns) into mean and variance of h")
    ST, E, MU, RS = R2, R2+16, T[4], T[6]
    a(f"ds_read_b128 v[{ST}:{ST+3}], v{T[1]} offset:{STo}", f"ds_read_b128 v[{ST+4}:{ST+7}], v{T[1]} offset:{STo+16}")
    a(f"ds_read2_b32 v[{E}:{E+1}], v{aHA} offset0:0 offset1:2", f"ds_read2_b32 v[{E+2}:{E+3}], v{aHA} offset0:64 offset1:66", "s_waitcnt lgkmcnt(2)")
    a(f"v_add_f32 v{MU}, v{ST}, v{ST+2}", f"v_fma_f32 v{T[5]}, v{ST+6}, 0.5, v{ST+4}", f"v_add_f32 v{RS}, v{ST+1}, v{ST+3}", f"v_add_f32 v{MU}, v{MU}, v{T[5]}", f"v_add_f32 v{T[7]}, v{ST+5}, v{ST+7}")
    a(f"v_mul_f32 v{MU}, {hex(f2u(2.0/7))}, v{MU}", f"v_add_f32 v{RS}, v{RS}, v{T[7]}")
    for w in range(4): a(f"v_sub_f32 v{ST+2*w}, v{ST+2*w}, v{MU}")
    a(f"v_mul_f32 v{T[5]}, v{ST+6}, v{ST+6}", f"v_mul_f32 v{T[7]}, v{ST}, v{ST}", f"v_mul_f32 v{RS}, {inv448}, v{RS}")
    a(f"v_fmac_f32 v{T[7]}, v{ST+2}, v{ST+2}", f"v_fmac_f32 v{RS}, {hex(f2u(1.0/7))}, v{T[5]}", f"v_fmac_f32 v{T[7]}, v{ST+4}, v{ST+4}", "s_waitcnt lgkmcnt(0)")
    a(f"v_pk_add_f32 v[{E}:{E+1}], v[{E}:{E+1}], v[{MU}:{MU+1}] {neg}", f"v_fmac_f32 v{RS}, {hex(f2u(2.0/7))}, v{T[7]}")
    c("both layer norms: z1 = (h-mu)/sqrt(var+eps) has mean 0 and variance var/(var+eps), hence")
    c("LN(z1) = z1/sqrt(var/(var+eps) + eps) = (h-mu)/sqrt(var + eps*(var+eps))")
    a(f"v_pk_add_f32 v[{E+2}:{E+3}], v[{E+2}:{E+3}], v[{MU}:{MU+1}] {neg}", f"v_add_f32 v{T[5]}, {eps}, v{RS}", f"v_fmac_f32 v{RS}, {eps}, v{T[5]}", f"v_rsq_f32 v{RS}, v{RS}", "s_nop 0")
    a(f"v_pk_mul_f32 v[{E}:{E+1}], v[{E}:{E+1}], v[{RS}:{RS+1}] op_sel_hi:[1,0]", f"v_pk_mul_f32 v[{E+2}:{E+3}], v[{E+2}:{E+3}], v[{RS}:{RS+1}] op_sel_hi:[1,0]")
    a(f"v_cvt_pk_bf16_f32 v{S}, v{E}, v{E+1}", f"v_cvt_pk_bf16_f32 v{S+1}, v{E+2}, v{E+3}", "s_nop 0")
    c("---- w1 slice: wave w takes rows 112w..112w+111, partials summed through LDS")
    sbuild(AB, 0, range(4))
    for jj in range(7):
        nA = AB + 4*((jj+1) & 1)
        if jj < 6: sbuild(nA, jj+1, (0, 1))
        else: a("s_nop 1")
        smf(D0, AB + 4*(jj & 1), W1R + 8*jj, "v")
        if jj < 6: sbuild(nA, jj+1, (2, 3))
    a(f"v_lshlrev_b32 v{B1V}, 16, v{B1V}", f"v_lshlrev_b32 v{B1V+1}, 16, v{B1V+1}", "s_mov_b32 exec_lo, 0x00ff00ff", "s_mov_b32 exec_hi, 0xff00ff00", "s_nop 3")
    for t in range(4): a(f"ds_write_b32 v{aAW}, v{D0+t} offset:{APo + 32*t}")
    a("s_mov_b64 exec, -1", "s_waitcnt lgkmcnt(0)", "s_barrier")
    for k in range(4): a(f"ds_read_b128 v[{R2+4*k}:{R2+4*k+3}], v{aAR} offset:{APo + 64*(k >> 1) + 16*(k & 1)}")
    for e in range(8): a(f"v_mov_b32 v{D0+e}, 0")
    G2, U2 = T[4], T[6]
    for x in range(2):
        r = R2 + 8*x
        a(f"s_waitcnt lgkmcnt({2-2*x})", pa(r, r+2), pa(r+4, r+6), pa(r, r+4), f"v_add_f32 v{G2+x}, v{r}, v{r+1}")
    c("GELU(tanh form): 0.5 a (1 + tanh u) = a / (1 + exp(-2u)), u = sqrt(2/pi) (a + 0.044715 a^3)")
    beta, kap = 0.7978845608028654, 0.044715
    a(pa(G2, B1V), f"v_pk_mul_f32 v[{U2}:{U2+1}], v[{G2}:{G2+1}], v[{G2}:{G2+1}]")
    for x in range(2): a(f"v_mul_f32 v{U2+x}, {hex(f2u(kap))}, v{U2+x}")
    a(f"v_pk_fma_f32 v[{U2}:{U2+1}], v[{U2}:{U2+1}], v[{G2}:{G2+1}], v[{G2}:{G2+1}]")
    for x in range(2): a(f"v_mul_f32 v{U2+x}, {hex(f2u(-2*beta*math.log2(math.e)))}, v{U2+x}")
    for x in range(2): a(f"v_exp_f32 v{U2+x}, v{U2+x}")
    a("s_nop 0")
    for x in range(2): a(f"v_add_f32 v{U2+x}, 1.0, v{U2+x}")
    for x in range(2): a(f"v_rcp_f32 v{U2+x}, v{U2+x}")
    a("s_nop 0", f"v_pk_mul_f32 v[{G2}:{G2+1}], v[{G2}:{G2+1}], v[{U2}:{U2+1}]", f"v_cvt_pk_bf16_f32 v{S}, v{G2}, v{G2+1}", "s_nop 1")
    c("---- w2 slice, hand-off F")
    proj(4, W2R, "v")
    publish(sPF)
    c("---- the wave that holds columns 16j..16j+15 sums the 28 partials, adds b2 and h, stores the output")
    a(f"s_cmp_lg_u32 s{sW}, s{sFW}", "s_cbranch_scc1 L_end")
    FA, FB, FH, FO, aO = R2, R2+8, R2+12, R2+20, T[4]
    def fissue():
        a(f"buffer_load_dwordx4 v[{FA}:{FA+3}], v{aF0}, s[{sWS}:{sWS+3}], s{sFB} offen sc1", f"buffer_load_dwordx4 v[{FA+4}:{FA+7}], v{aF1}, s[{sWS}:{sWS+3}], s{sFB} offen sc1")
    fissue()
    for e in range(4): a(f"ds_bpermute_b32 v{FO+e}, v{aBF}, v{AB+e}")
    a(f"s_lshl_b32 s{sTmp}, s{sJ}, 5", f"v_and_b32 v{aO}, 3, v{vL}", f"v_lshlrev_b32 v{aO}, 3, v{aO}", f"v_add_lshl_u32 v{T[5]}, s{sTmp}, v{aO}, 1", f"ds_read_b128 v[{FH}:{FH+3}], v{T[5]} offset:{HBo}")
    unpack(FB, B2V, 2)
    a(f"s_mul_i32 s{sCnt}, s{sB}, 896", f"s_add_u32 s{sCnt}, s{sCnt}, s{sTmp}")
    srd(sX, 56, None, 3584*2)
    a(f"s_mov_b32 s{sSpin}, 0", "s_waitcnt lgkmcnt(0)", pa(FO, FB), pa(FO+2, FB+2), pa(FB, FH, FO), pa(FB+2, FH+2, FO+2), "s_branch L_fchk", "L_fpoll:")
    fissue()
    a(f"s_add_u32 s{sSpin}, s{sSpin}, 1", f"s_cmp_ge_u32 s{sSpin}, 0x40000", "s_cbranch_scc1 L_fdone", "L_fchk:", "s_waitcnt vmcnt(0)")
    tagchk(FA, TGF, TGF+1)
    a("s_mov_b32 exec_hi, 0xffff", pa(FA, FA+4), pa(FA+2, FA+6), "s_mov_b32 exec_hi, -1", "s_cbranch_vccnz L_fpoll", "L_fdone:")
    for rot in (4, 8):
        for e in range(4): a(f"v_add_f32_dpp v{FA+e}, v{FA+e}, v{FA+e} row_ror:{rot} row_mask:0xf bank_mask:0xf")
    for sw in ("v_permlane16_swap_b32", "v_permlane32_swap_b32"):
        for e in range(4): a(f"v_mov_b32 v{FA+4+e}, v{FA+e}")
        for e in range(4): a(f"{sw} v{FA+4+e}, v{FA+e}")
        a(pa(FA, FA+4), pa(FA+2, FA+6))
    a(pa(FA, FB), pa(FA+2, FB+2), f"v_cvt_pk_bf16_f32 v{FA}, v{FA}, v{FA+1}", f"v_cvt_pk_bf16_f32 v{FA+1}, v{FA+2}, v{FA+3}", "s_mov_b64 exec, 15")
    a(f"buffer_store_dwordx2 v[{FA}:{FA+1}], v{aO}, s[{sX}:{sX+3}], s{sCnt} offen")
    c("every reader of this batch's epoch word has published by now: advance it")
    a(f"s_cmp_lg_u32 s{sJ}, 0", "s_cbranch_scc1 L_end")
    a(f"s_lshl_b32 s{sTmp}, s{sB}, 7", f"v_mov_b32 v{T[5]}, s{sTag32}", "s_mov_b64 exec, 1", f"buffer_store_dword v{T[5]}, v{aO}, s[{sWS}:{sWS+3}], s{sTmp} offen")
    a("L_end:", "s_endpgm")
    a('.section .rodata,"a"', ".p2align 6", f".amdhsa_kernel {NAME}_kernel")
    for x in ("next_free_vgpr 512", "next_free_sgpr 102", "accum_offset 256", "group_segment_fixed_size 0", "kernarg_size 104", "user_sgpr_count 2",
              "user_sgpr_kernarg_segment_ptr 1", "system_sgpr_workgroup_id_x 1", "float_denorm_mode_32 3"): g.o.append("  .amdhsa_" + x)
    a(".end_amdhsa_kernel")
    return "\n".join(g.o) + "\n"

if __name__ == "__main__":
    kw = dict(x.split("=") for x in sys.argv[2:])
    open(sys.argv[1], "w").write(gen(**{k: eval(v) for k, v in kw.items()}))
```

```python
import sys, struct, math
NAME = "sequential_preLN__mha_block_cached__mixer_channel_mlp__decode"
def f2u(x): return struct.unpack("<I", struct.pack("<f", x))[0]

class G:
    def __init__(s): s.o = []; s.q = []; s.lab = 0
    def __call__(s, *xs): s.o.extend("    " + x if not x.endswith(":") and not x.startswith((".", ";")) else x for x in xs)
    def vm(s, text, tag): s(text); s.q.append(tag)
    def wait(s, tag, nop=True):
        if tag not in s.q:
            if nop: s("s_nop 0")
            return
        idx = max(i for i, t in enumerate(s.q) if t == tag)
        n = len(s.q) - 1 - idx; assert n <= 63
        s(f"s_waitcnt vmcnt({n})"); s.q = s.q[idx+1:]
    def label(s, p): s.lab += 1; return f"{p}_{s.lab}"

HEADER = """\
;
"""

def gen(NST=32, NX=24, DQ=3, K0=4, DH=6, DV=5, D2=6, DE=15, RCU=7, WEV=2.3, NP=3, BPF=7, QPF=0, WOF=0, WST=0, BAT=0, QAT=0, QS=0, QROW=1, QPOL='', WPOL='', BPOL='', XP=(16, 56, 84),
        PW=(11, 13, 12, 16, 10, 9, 15, 18, 14, 17, 19), PHS=((14, 4), (17, 1), (19, 132)), XT=(2, 0, 4, 2, 4, 3, 4, 0)):
    g = G(); a = g
    def c(t): a("; " + t)
    def perm_t(t): return sum(((t >> k) & 1) << PW[4+k] for k in range(7))
    ROFF, HOFF, XOFF, FOFF = 0x0, 0x8000, 0x10000, 0x100000
    vL, vKV = 0, 1
    T = list(range(2, 10))
    MK, Q, PH, PL, ACC, D0, D1, AB = 10, 14, 22, 30, 38, 54, 58, 62
    X8 = AB
    RG, W1R, W2R, WQR = 72, 136, 192, 136
    sK, sV, sWQ, sWO, sW1, sW2, sX, sWS = 4, 8, 12, 16, 20, 24, 28, 32
    sW, sI, sH, sB, sJ, sF, sOff, sRot, sCnt, sTmp, sTmp2, sR, sTag32, sC, sHI, sTM = range(62, 78)
    sPX, sGB, sU, sRU, sFB, sSpin, sPB, sPF, sDone, sEX, sIN = 78, 79, 80, 88, 89, 90, 91, 92, 93, 94, 95
    sB1, sB0, sEnd1 = 83, 84, 85

    a("; @launch grid=(256,1,1) block=(256,1,1) lds=16384")
    g.o.append(HEADER.rstrip("\n"))
    a('.amdgcn_target "amdgcn-amd-amdhsa--gfx950"', ".text", f".globl {NAME}_kernel", ".p2align 8", f".type {NAME}_kernel,@function", f"{NAME}_kernel:")
    a("s_cmp_ge_u32 s2, 256", "s_cbranch_scc1 L_end")
    a("s_load_dwordx16 s[36:51], s[0:1], 0", "s_load_dwordx8 s[52:59], s[0:1], 64", "s_load_dwordx2 s[60:61], s[0:1], 96")
    a(f"v_lshrrev_b32 v{T[0]}, 6, v0", f"v_and_b32 v{vL}, 63, v0", f"v_readfirstlane_b32 s{sW}, v{T[0]}")
    c("i = (wg&7)*32 + (wg>>3): workgroups that share a head's weights tend to share an L2.  h = i>>4, b = (i>>1)&7, j = 2h + (i&1)")
    a(f"s_and_b32 s{sI}, s2, 7", f"s_lshl_b32 s{sI}, s{sI}, 5", f"s_lshr_b32 s{sTmp}, s2, 3", f"s_add_u32 s{sI}, s{sI}, s{sTmp}")
    a(f"s_lshr_b32 s{sH}, s{sI}, 4", f"s_bfe_u32 s{sB}, s{sI}, 0x30001", f"s_and_b32 s{sTmp}, s{sI}, 1")
    a(f"s_lshl_b32 s{sJ}, s{sH}, 1", f"s_add_u32 s{sJ}, s{sJ}, s{sTmp}")
    c("lane l = (g = l>>4, c = l&15) reads 16 B at column c of the row picked by g, the wave and the step")
    a(f"v_lshrrev_b32 v{T[0]}, 4, v{vL}", f"v_and_b32 v{T[1]}, 15, v{vL}", f"v_lshlrev_b32 v{T[2]}, 4, v{T[1]}")
    a(f"v_and_b32 v{T[3]}, 1, v{T[0]}", f"v_lshl_add_u32 v{vKV}, v{T[3]}, {PW[0]}, v{T[2]}", f"v_lshrrev_b32 v{T[3]}, 1, v{T[0]}", f"v_lshl_add_u32 v{vKV}, v{T[3]}, {PW[1]}, v{vKV}")
    a(f"s_and_b32 s{sTmp}, s{sW}, 1", f"s_lshl_b32 s{sTmp}, s{sTmp}, {PW[2]}", f"s_lshr_b32 s{sTmp2}, s{sW}, 1", f"s_lshl_b32 s{sTmp2}, s{sTmp2}, {PW[3]}", f"s_or_b32 s{sTmp}, s{sTmp}, s{sTmp2}")
    a(f"v_add_u32 v{vKV}, s{sTmp}, v{vKV}")
    c("wq rows of step j: 112w + 16(j>>2) + (j&3) + 4g ; x gather for the same rows")
    a(f"s_mul_i32 s{sTmp}, s{sW}, {112*8192}", f"v_lshl_add_u32 v{T[3]}, v{T[0]}, {15 if QROW else 13}, v{T[2]}", f"v_add_u32 v{T[3]}, s{sTmp}, v{T[3]}")
    if QROW: a(f"v_lshrrev_b32 v{T[5]}, 2, v{T[1]}", f"v_lshl_add_u32 v{T[5]}, v{T[5]}, 2, v{T[0]}", f"v_and_b32 v{T[4]}, 3, v{T[1]}", f"v_lshl_add_u32 v{T[5]}, v{T[5]}, 2, v{T[4]}")
    else: a(f"v_lshl_add_u32 v{T[5]}, v{T[1]}, 2, v{T[0]}")
    a(f"v_lshlrev_b32 v{T[4]}, 4, v{vL}", f"s_mul_i32 s{sTmp}, s{sW}, 112", f"v_add_u32 v{T[5]}, s{sTmp}, v{T[5]}", f"v_lshlrev_b32 v{T[5]}, 1, v{T[5]}")
    c("K/V chunk = (32b + j) MiB; the walk through it starts at a workgroup-specific phase")
    a(f"s_lshl_b32 s{sTmp2}, s{sB}, 5", f"s_add_u32 s{sTmp2}, s{sTmp2}, s{sJ}", f"s_lshl_b32 s{sTmp2}, s{sTmp2}, 20", f"s_mov_b32 s{sRot}, 0")
    for k, m in PHS:
        if m & (m-1) == 0: a(f"s_bitcmp1_b32 s{sI}, {m.bit_length()-1}")
        else: a(f"s_and_b32 s{sTmp}, s{sI}, {m}", f"s_bcnt1_i32_b32 s{sTmp}, s{sTmp}", f"s_bitcmp1_b32 s{sTmp}, 0")
        a(f"s_cselect_b32 s{sTmp}, {1 << k}, 0", f"s_xor_b32 s{sRot}, s{sRot}, s{sTmp}")
    a(f"s_mov_b32 s{sK+2}, {1 << 20}", f"s_mov_b32 s{sK+3}, 0x20000", "s_waitcnt lgkmcnt(0)")
    a(f"s_add_u32 s{sK}, s38, s{sTmp2}", f"s_addc_u32 s{sK+1}, s39, 0", f"s_and_b32 s{sK+1}, s{sK+1}, 0xffff")
    iss = [0]
    NS = 2*NST + NX
    def hdst(u):
        if u < 2*NST: return ("a", 4*u)
        if u < NS: return ("v", 256 - 4*(NS - u))
        return ("v", RG + 4*(u % 16))
    def hissue():
        u = iss[0]; iss[0] += 1
        r, d = hdst(u); srdn = sK if u < 256 else sV
        if not u & 1: a(f"s_xor_b32 s{sOff}, s{sRot}, {hex(perm_t((u >> 1) & 127))}")
        g.vm(f"buffer_load_dwordx4 {r}[{d}:{d+3}], v{vKV}, s[{srdn}:{srdn+3}], s{sOff} offen{' offset:256' if u & 1 else ''} nt", f"u{u}")
    for _ in range(K0): hissue()
    def srd(s, lo, off, nrec):
        if off is None: a(f"s_mov_b32 s{s}, s{lo}", f"s_and_b32 s{s+1}, s{lo+1}, 0xffff")
        else: a(f"s_add_u32 s{s}, s{lo}, s{off}", f"s_addc_u32 s{s+1}, s{lo+1}, 0", f"s_and_b32 s{s+1}, s{s+1}, 0xffff")
        a(f"s_mov_b32 s{s+2}, {nrec}", f"s_mov_b32 s{s+3}, 0x20000")
    a(f"s_min_u32 s{sF}, s{sJ}, 27", f"s_mul_i32 s{sTmp}, s{sB}, 896")
    srd(sX, 36, sTmp, 896)
    g.vm(f"buffer_load_dwordx4 v[{X8}:{X8+3}], v{T[4]}, s[{sX}:{sX+3}], 0 offen nt", "x")
    g.vm(f"buffer_load_ushort v{PH}, v{T[5]}, s[{sX}:{sX+3}], 0 offen nt", "x")
    g.vm(f"buffer_load_ushort v{PH+1}, v{T[5]}, s[{sX}:{sX+3}], 0 offen offset:128 nt", "x")
    a(f"s_lshl_b32 s{sTmp}, s{sH}, 9")
    srd(sWQ, 42, sTmp, 0)
    a(f"s_sub_u32 s{sWQ+2}, {448*8192}, s{sTmp}")
    def bulk():
        c("bulk L2 prefetch of the wo / w2 / w1 lines used by the 32 workgroups of this group, one unit of whole DRAM rows per wave (values unused)")
        a(f"s_and_b32 s96, s{sI}, 31", "s_lshl_b32 s96, s96, 2", f"s_add_u32 s96, s96, s{sW}", f"s_lshr_b32 s97, s{sI}, 5", f"s_mov_b32 s{sW2+3}, 0x20000")
        a("s_cmp_ge_u32 s96, 96", "s_cbranch_scc1 L_bw1", "s_cmp_ge_u32 s96, 64", "s_cbranch_scc1 L_bw2")
        c("wo: 14 blocks of 32 KiB x 4 lines")
        a(f"s_mov_b32 s{sW2}, s44", f"s_and_b32 s{sW2+1}, s45, 0xffff", f"s_mul_i32 s98, s97, {14*32768}", f"s_add_u32 s{sW2+2}, s98, {14*32768 if BPF & 1 else 0}", "s_lshl_b32 s96, s96, 9", "s_add_u32 s98, s98, s96")
        a(f"v_lshrrev_b32 v{T[5]}, 2, v{vL}", f"v_and_b32 v{T[6]}, 3, v{vL}", f"v_lshlrev_b32 v{T[5]}, 15, v{T[5]}", "s_branch L_bgo", "L_bw2:")
        c("w2: 7 blocks x 8 lines")
        a(f"s_mov_b32 s{sW2}, s52", f"s_and_b32 s{sW2+1}, s53, 0xffff", f"s_mul_i32 s98, s97, {7*32768}", f"s_add_u32 s{sW2+2}, s98, {7*32768 if BPF & 2 else 0}", f"s_min_u32 s{sW2+2}, s{sW2+2}, {1792*896}")
        a("s_sub_u32 s96, s96, 64", "s_lshl_b32 s96, s96, 10", "s_add_u32 s98, s98, s96")
        a(f"v_lshrrev_b32 v{T[5]}, 3, v{vL}", f"v_and_b32 v{T[6]}, 7, v{vL}", f"v_lshlrev_b32 v{T[5]}, 15, v{T[5]}", "s_branch L_bgo", "L_bw1:")
        c("w1: 16 rows x 4 lines")
        a(f"s_mov_b32 s{sW2}, s48", f"s_and_b32 s{sW2+1}, s49, 0xffff", "s_cmp_eq_u32 s97, 7", f"s_cselect_b32 s{sW2+2}, 0, {448*3584 if BPF & 4 else 0}")
        a("s_sub_u32 s96, s96, 96", f"s_mul_i32 s98, s96, {16*3584}", "s_lshl_b32 s97, s97, 9", "s_add_u32 s98, s98, s97")
        a(f"v_lshrrev_b32 v{T[5]}, 2, v{vL}", f"v_and_b32 v{T[6]}, 3, v{vL}", f"v_mul_u32_u24 v{T[5]}, 3584, v{T[5]}", "L_bgo:")
        a(f"v_lshl_add_u32 v{T[5]}, v{T[6]}, 7, v{T[5]}")
        g.vm(f"buffer_load_dword v71, v{T[5]}, s[{sW2}:{sW2+3}], s98 offen{BPOL}", "pf")
    def qload(j):
        dst = WQR + 8*(j % DQ)
        a(f"s_mov_b32 s{sTmp}, {(16*(j >> 2) + (j & 3))*8192 if QROW else j*32768}")
        g.vm(f"buffer_load_dwordx4 v[{dst}:{dst+3}], v{T[3]}, s[{sWQ}:{sWQ+3}], s{sTmp} offen{QPOL}", f"q{j}a")
        g.vm(f"buffer_load_dwordx4 v[{dst+4}:{dst+7}], v{T[3]}, s[{sWQ}:{sWQ+3}], s{sTmp} offen offset:256{QPOL}", f"q{j}b")
    def kstage_upto(n):
        while iss[0] < n: hissue()
    def quota(j): return min(NS, K0 + math.ceil((j+1)*(NS-K0)/28))
    for j in range(DQ):
        qload(j); kstage_upto(quota(j))
        if BPF and BAT == j: bulk()
        if j == 1:
            srd(sV, 40, sTmp2, 1 << 20)
            a(f"s_lshl_b32 s{sTmp}, s{sB}, 7", f"s_load_dword s{sR}, s[60:61], s{sTmp}")
    c("one-hot masks of the MFMA A operand: row i keeps element i&7 of its 8-element group")
    a(f"s_mov_b32 s{sHI}, 0xffff0000", f"s_mov_b32 s{sTM}, 0xffffff00", f"s_mov_b32 s{sC}, {hex(f2u(math.log2(math.e)/16))}")
    a(f"v_and_b32 v{T[6]}, 1, v{vL}", f"v_lshlrev_b32 v{T[6]}, 4, v{T[6]}", f"v_mov_b32 v{T[2]}, 0xffff", f"v_lshlrev_b32 v{T[2]}, v{T[6]}, v{T[2]}", f"v_bfe_u32 v{T[6]}, v{vL}, 1, 2")
    for t in range(4): a(f"v_cmp_eq_u32 vcc, {t}, v{T[6]}", "s_nop 1", f"v_cndmask_b32 v{MK+t}, 0, v{T[2]}, vcc")

    def allred(op, regs, tmp):
        for rot in (8, 4, 2, 1):
            a(f"s_nop {2-len(regs)}")
            for r in regs: a(f"{op}_dpp v{r}, v{r}, v{r} row_ror:{rot} row_mask:0xf bank_mask:0xf")
        for sw in ("v_permlane16_swap_b32", "v_permlane32_swap_b32"):
            for r, t in zip(regs, tmp): a(f"v_mov_b32 v{t}, v{r}")
            a("s_nop 1")
            for r, t in zip(regs, tmp): a(f"{sw} v{t}, v{r}")
            a("s_nop 1")
            for r, t in zip(regs, tmp): a(f"{op} v{r}, v{r}, v{t}")
    def bfr(r): a(f"v_cvt_pk_bf16_f32 v{r}, v{r}, v{r}", f"v_and_b32 v{r}, s{sHI}, v{r}")
    def unpack(dst, src, n):
        for k in range(n): a(f"v_lshlrev_b32 v{dst+2*k}, 16, v{src+k}", f"v_and_b32 v{dst+2*k+1}, s{sHI}, v{src+k}")
    def abuild(dst, src, lane, src2=None):
        for t in range(4): a(f"v_and_b32_dpp v{dst+t}, v{src}, v{MK+t} row_newbcast:{lane} row_mask:0xf bank_mask:{'0xf' if src2 is None else '0x3'}")
        if src2 is not None:
            for t in range(4): a(f"v_and_b32_dpp v{dst+t}, v{src2}, v{MK+t} row_newbcast:{lane} row_mask:0xf bank_mask:0xc")
    def mfma(d, A, B, zero=False): a(f"v_mfma_f32_16x16x32_bf16 v[{d}:{d+3}], v[{A}:{A+3}], v[{B}:{B+3}], {'0' if zero else f'v[{d}:{d+3}]'}")

    c("---- LN(x[b]) with the reference's bf16 rounding points; variance around a pivot element")
    g.wait("x")
    mu, rs, t0, t1 = ACC+8, ACC+9, ACC+10, ACC+11
    unpack(ACC, X8, 4)
    a(f"v_lshlrev_b32 v{PH}, 16, v{PH}", f"v_lshlrev_b32 v{PH+1}, 16, v{PH+1}")
    a(f"v_readlane_b32 s{sTmp}, v{ACC}, 0", f"v_mov_b32 v{mu}, 0", f"v_mov_b32 v{rs}, 0", "s_mov_b32 exec_hi, 0x00ffffff")
    for k in range(8): a(f"v_subrev_f32 v{t0}, s{sTmp}, v{ACC+k}", f"v_add_f32 v{mu}, v{mu}, v{t0}", f"v_fmac_f32 v{rs}, v{t0}, v{t0}")
    a("s_mov_b32 exec_hi, -1")
    allred("v_add_f32", [mu, rs], [t0, t1])
    inv448, eps = hex(f2u(1.0/448)), hex(f2u(1e-5))
    a(f"v_mul_f32 v{mu}, {inv448}, v{mu}", f"v_mul_f32 v{rs}, {inv448}, v{rs}")
    a(f"v_fma_f32 v{rs}, -v{mu}, v{mu}, v{rs}", f"v_add_f32 v{mu}, s{sTmp}, v{mu}", f"v_max_f32 v{rs}, 0, v{rs}")
    bfr(mu); bfr(rs); a(f"v_add_f32 v{rs}, {eps}, v{rs}"); bfr(rs)
    a(f"v_sqrt_f32 v{rs}, v{rs}", "s_nop 0"); bfr(rs); a(f"v_rcp_f32 v{rs}, v{rs}", "s_nop 0")
    for r in (PH, PH+1):
        a(f"v_sub_f32 v{r}, v{r}, v{mu}"); bfr(r); a(f"v_mul_f32 v{r}, v{r}, v{rs}", f"v_cvt_pk_bf16_f32 v{r}, v{r}, v{r}")
    a("s_nop 1")
    c("---- q partial of this wave's 112 rows of wq")
    for j in range(28):
        A = AB + 4*(j & 1); dst = WQR + 8*(j % DQ)
        abuild(A, PH + (j >> 4), j & 15); a("s_nop 0")
        g.wait(f"q{j}a"); mfma(D0, A, dst, j == 0)
        g.wait(f"q{j}b"); mfma(D1, A, dst+4, j == 0)
        if j + DQ < 28: qload(j+DQ); kstage_upto(quota(j+DQ))
        if BPF and BAT == j + DQ: bulk()
    kstage_upto(NS + DH)
    c("---- sum the four partials through LDS, round q to bf16")
    a(f"v_and_b32 v{T[0]}, 15, v{vL}", f"v_lshlrev_b32 v{T[0]}, 5, v{T[0]}", f"v_and_b32 v{T[1]}, 16, v{vL}", f"v_add_u32 v{T[1]}, v{T[0]}, v{T[1]}")
    a(f"s_lshl_b32 s{sTmp}, s{sW}, 10", f"v_add_u32 v{T[1]}, s{sTmp}, v{T[1]}", "s_nop 2")
    a(f"ds_write_b128 v{T[1]}, v[{D0}:{D0+3}]", f"ds_write_b128 v{T[1]}, v[{D1}:{D1+3}] offset:512", "s_waitcnt lgkmcnt(0)", "s_barrier")
    busy = {hdst(u)[1] for u in range(2*NST, iss[0])}
    QG = [r for r in list(range(WQR, 256, 4)) + list(range(RG, RG+64, 4)) if r not in busy][:16]
    assert len(QG) == 16
    for k in range(16): a(f"ds_read_b128 v[{QG[k]}:{QG[k]+3}], v{T[0]} offset:{((k >> 1) & 3)*1024 + (k >> 3)*512 + (k & 1)*16}")
    a(f"s_mul_i32 s{sTmp}, s{sH}, {256*896}"); srd(sWO, 44, sTmp, 256*896)
    a(f"s_lshl_b32 s{sTmp}, s{sF}, 7"); srd(sW1, 48, sTmp, 0); a(f"s_sub_u32 s{sW1+2}, {448*3584}, s{sTmp}")
    a(f"s_mul_i32 s{sTmp}, s{sF}, {64*896}"); srd(sW2, 52, sTmp, 64*896)
    c("workgroups with j >= 28 own no MLP slice: empty descriptors")
    a(f"s_cmp_ge_u32 s{sJ}, 28", f"s_cselect_b32 s{sW1+2}, 0, s{sW1+2}", f"s_cselect_b32 s{sW2+2}, 0, s{sW2+2}")
    srd(sWS, 60, None, 0x200000)
    for hf in range(2):
        a(f"s_waitcnt lgkmcnt({8*(1-hf)})")
        q_ = lambda w, e: QG[(hf*4 + w)*2 + (e >> 2)] + (e & 3)
        pa = lambda x, y: f"v_pk_add_f32 v[{x}:{x+1}], v[{x}:{x+1}], v[{y}:{y+1}]"
        for e in range(0, 8, 2): a(pa(q_(0,e), q_(1,e)), pa(q_(2,e), q_(3,e)))
        for e in range(0, 8, 2): a(pa(q_(0,e), q_(2,e)))
        for e in range(4): a(f"v_cvt_pk_bf16_f32 v{Q+hf*4+e}, v{q_(0,2*e)}, v{q_(0,2*e)+1}")
    a(f"s_add_u32 s{sTag32}, s{sR}, 1")
    c("weight addresses: wo/w2 (2g + (c>>3))*896 + (16w + (c&7))*16 (+128 for the second column pass, out of range for wave 3); w1 (112w + 2g + (c>>3))*3584 + (c&7)*16")
    a(f"v_lshrrev_b32 v{T[0]}, 4, v{vL}", f"v_bfe_u32 v{T[1]}, v{vL}, 3, 1", f"v_lshl_add_u32 v{T[0]}, v{T[0]}, 1, v{T[1]}")
    a(f"v_and_b32 v{T[1]}, 7, v{vL}", f"s_lshl_b32 s{sTmp}, s{sW}, 4", f"v_add_u32 v{T[4]}, s{sTmp}, v{T[1]}", f"v_lshlrev_b32 v{T[4]}, 4, v{T[4]}")
    a(f"s_movk_i32 s{sTmp}, 896", f"v_mad_u32_u24 v{T[2]}, v{T[0]}, s{sTmp}, v{T[4]}")
    a(f"s_cmp_eq_u32 s{sW}, 3", f"s_cselect_b32 s{sTmp}, 0x10000000, 0", f"s_add_u32 s{sTmp}, s{sTmp}, 128", f"v_add_u32 v{T[4]}, s{sTmp}, v{T[2]}")
    a(f"s_mul_i32 s{sTmp}, s{sW}, 112", f"v_add_u32 v{T[0]}, s{sTmp}, v{T[0]}", f"v_lshlrev_b32 v{T[1]}, 4, v{T[1]}", f"s_movk_i32 s{sTmp}, 3584", f"v_mad_u32_u24 v{T[3]}, v{T[0]}, s{sTmp}, v{T[1]}")

    if BPF and BAT < 0: bulk()
    c("---- K pass")
    lanemap = [None]
    def kreduce(n):
        regs = [(ACC+j, [j]*16) for j in range(16)]
        a("s_nop 2")
        def lvl(regs, ctrl, m0, m1, sel):
            out = []
            for (r0, l0), (r1, l1) in zip(regs[0::2], regs[1::2]):
                a(f"v_add_f32_dpp v{r0}, v{r0}, v{r0} {ctrl} row_mask:0xf bank_mask:{m0}")
                out.append((r0, [l0[i] if sel(i) == 0 else l1[i] for i in range(16)]))
            for (r0, l0), (r1, l1) in zip(regs[0::2], regs[1::2]):
                a(f"v_add_f32_dpp v{r0}, v{r1}, v{r1} {ctrl} row_mask:0xf bank_mask:{m1}")
            return out
        regs = lvl(regs, "row_mirror", "0x3", "0xc", lambda i: i >> 3)
        tick()
        regs = lvl(regs, "row_half_mirror", "0x5", "0xa", lambda i: (i >> 2) & 1)
        for qp in ("[1,0,3,2]", "[2,3,0,1]"):
            for r, _ in regs: a(f"v_add_f32_dpp v{r}, v{r}, v{r} quad_perm:{qp} row_mask:0xf bank_mask:0xf")
        a("s_mov_b32 vcc_lo, 0xaaaaaaaa", "s_mov_b32 vcc_hi, 0xaaaaaaaa")
        a(f"v_cndmask_b32 v{regs[0][0]}, v{regs[0][0]}, v{regs[1][0]}, vcc", f"v_cndmask_b32 v{regs[2][0]}, v{regs[2][0]}, v{regs[3][0]}, vcc")
        a("s_mov_b32 vcc_lo, 0xcccccccc", "s_mov_b32 vcc_hi, 0xcccccccc", f"v_cndmask_b32 v{PH+n}, v{regs[0][0]}, v{regs[2][0]}, vcc")
        lanemap[0] = [regs[i & 3][1][i] for i in range(16)]
    wl = []
    def vneed(r): return max([-1] + [u for u in range(2*NST, NS) if hdst(u)[1] == r])
    def smov(v): return f"s_movk_i32 s{sTmp}, {v}" if v < 32768 else f"s_mov_b32 s{sTmp}, {v}"
    for jj in range(7):
        for L in range(2):
            r = W1R + 8*jj + 4*L
            wl.append((smov(3584*(16*jj + 8*L)), f"buffer_load_dwordx4 v[{r}:{r+3}], v{T[3]}, s[{sW1}:{sW1+3}], s{sTmp} offen{WPOL}", vneed(r)))
    for nj, rf, base, sr in ((4, "v", W2R, sW2), (16, "a", 0, sWO)):
        for jj in range(nj):
            for L in range(2):
                for ps in range(2):
                    r = base + (jj*2+ps)*8 + 4*L
                    need = vneed(r) if rf == "v" else (r//4 if r//4 < 2*NST else -1)
                    wl.append((smov(896*(16*jj + 8*L)), f"buffer_load_dwordx4 {rf}[{r}:{r+3}], v{T[2+2*ps]}, s[{sr}:{sr+3}], s{sTmp} offen{WPOL}", need))
    if WOF: wl = wl[30:] + wl[:30]
    def kcons(u):
        acc = ACC + (u >> 1) % 16; hf = u & 1
        g.wait(f"u{u}", nop=False)
        r, d = hdst(u)
        if r == "a":
            for e in range(4): a(f"v_accvgpr_read_b32 v{D0+4*hf+e}, a{d+e}")
            d = D0 + 4*hf
        for e in range(4): a(f"v_dot2_f32_bf16 v{acc}, v{d+e}, v{Q+4*hf+e}, {'0' if e == 0 and hf == 0 else f'v{acc}'}")
        if u % 32 == 31: kreduce(u // 32)
    st = dict(con=0, wc=0.0, n=0)
    def tick():
        u = iss[0]; depth = DH if u < 256 else DV
        if not (u - 16 < st["con"] or u - 16 < NS): return False
        g.wait(f"u{u-depth}", nop=False)
        hissue(); st["n"] += 1
        if st["n"] > WST: st["wc"] += 1.0/WEV
        if wl and st["wc"] >= 1:
            k = next((k for k, w in enumerate(wl) if st["con"] > w[2]), None)
            if k is not None:
                s0, ld, _ = wl.pop(k); a(s0); g.vm(ld, "w"); st["wc"] -= 1
        return True
    def run(cons, end):
        while st["con"] < end:
            depth = DH if iss[0] < 256 else DV
            can = tick() if iss[0] - st["con"] <= depth or st["con"] < NS + 16 else False
            n = 0
            while st["con"] < end and n < RCU and iss[0] - st["con"] > depth:
                u = st["con"]; st["con"] += 1; cons(u); n += 1
            assert can or n
    run(kcons, 256)
    inv = [lanemap[0].index(j) for j in range(16)]
    c("---- softmax numerators of this wave's 512 keys: scores rounded to bf16 as in the reference, true max, p = hi + lo in bf16")
    MC, LS = ACC, ACC+1
    for n in range(8): bfr(PH+n)
    a(f"v_max3_f32 v{MC}, v{PH}, v{PH+1}, v{PH+2}", f"v_max3_f32 v{MC}, v{MC}, v{PH+3}, v{PH+4}", f"v_max3_f32 v{MC}, v{MC}, v{PH+5}, v{PH+6}", f"v_max_f32 v{MC}, v{MC}, v{PH+7}")
    allred("v_max_f32", [MC], [T[0]]); tick()
    a(f"v_mul_f32 v{MC}, s{sC}, v{MC}")
    for n in range(8): a(f"v_fma_f32 v{PH+n}, v{PH+n}, s{sC}, -v{MC}")
    for n in range(8): a(f"v_exp_f32 v{PH+n}, v{PH+n}")
    a(f"v_add_f32 v{LS}, v{PH}, v{PH+1}")
    for n in range(2, 8): a(f"v_add_f32 v{LS}, v{LS}, v{PH+n}")
    for n in range(8):
        a(f"v_cvt_pk_bf16_f32 v{T[0]}, v{PH+n}, v{PH+n}", f"v_and_b32 v{T[1]}, s{sHI}, v{T[0]}", f"v_sub_f32 v{T[1]}, v{PH+n}, v{T[1]}")
        a(f"v_cvt_pk_bf16_f32 v{PL+n}, v{T[1]}, v{T[1]}", f"v_mov_b32 v{PH+n}, v{T[0]}")
    tick(); allred("v_add_f32", [LS], [T[0]])
    OPo, MLo, HBo, STo, APo = 0, 5120, 5248, 7296, 7424
    TAGV, F0, F2, MW, LW, HD = ACC+5, ACC, ACC+12, ACC+2, ACC+3, ACC+6
    FR = (F0, F0+1, F2, F2+1)
    a(f"s_lshl_b32 s{sTmp}, s{sW}, 3", f"v_mov_b32 v{T[0]}, s{sTmp}", f"ds_write_b64 v{T[0]}, v[{MC}:{MC+1}] offset:{MLo}")
    a(f"s_and_b32 s{sTmp}, s{sTag32}, 0xff", f"v_mov_b32 v{TAGV}, s{sTmp}")
    for e in range(8): a(f"v_mov_b32 v{D0+e}, 0")
    TQ = list(range(Q, Q+8))
    def xch_publish():
        c("---- workgroup (max, sum) -> header for the other key half")
        ML = TQ[0]; tick()
        a(f"v_mov_b32 v{HD}, 0", "s_waitcnt lgkmcnt(0)", "s_barrier")
        a(f"ds_read_b128 v[{ML}:{ML+3}], v{HD} offset:{MLo}", f"ds_read_b128 v[{ML+4}:{ML+7}], v{HD} offset:{MLo+16}", "s_waitcnt lgkmcnt(0)")
        a(f"v_max3_f32 v{MW}, v{ML}, v{ML+2}, v{ML+4}", f"v_max_f32 v{MW}, v{MW}, v{ML+6}", f"v_and_b32 v{MW}, s{sTM}, v{MW}")
        for w in range(4): a(f"v_sub_f32 v{FR[w]}, v{ML+2*w}, v{MW}")
        for w in range(4): a(f"v_exp_f32 v{FR[w]}, v{FR[w]}")
        a(f"v_mul_f32 v{LW}, v{FR[0]}, v{ML+1}")
        for w in range(1, 4): a(f"v_fmac_f32 v{LW}, v{FR[w]}, v{ML+2*w+1}")
        a(f"v_and_b32 v{LW}, s{sTM}, v{LW}", f"s_cmp_lg_u32 s{sW}, 0", "s_cbranch_scc1 L_nohdr")
        a(f"v_or_b32 v{TQ[0]}, v{MW}, v{TAGV}", f"v_or_b32 v{TQ[1]}, v{LW}, v{TAGV}", f"v_mov_b32 v{TQ[2]}, s{sTag32}", f"v_mov_b32 v{TQ[3]}, s{sTag32}")
        a(f"s_lshl_b32 s{sTmp}, s{sI}, 7", f"s_add_u32 s{sTmp}, s{sTmp}, {HOFF}", "s_mov_b64 exec, 1")
        a(f"buffer_store_dwordx4 v[{TQ[0]}:{TQ[3]}], v{HD}, s[{sWS}:{sWS+3}], s{sTmp} offen sc1", "s_mov_b64 exec, -1", "L_nohdr:")
    def xch_load(track=True):
        a(f"s_xor_b32 s{sTmp}, s{sI}, 1", f"s_lshl_b32 s{sTmp}, s{sTmp}, 7", f"s_add_u32 s{sTmp}, s{sTmp}, {HOFF}", f"v_mov_b32 v{TQ[0]}, 0")
        x = f"buffer_load_dwordx4 v[{HD}:{HD+3}], v{TQ[0]}, s[{sWS}:{sWS+3}], s{sTmp} offen sc1"
        g.vm(x, "hd") if track else a(x)
    def xch_finish():
        c("---- per-wave factors exp2(max_w - max) / sum over both key halves")
        g.wait("hd", nop=False)
        a(f"s_mov_b32 s{sSpin}, 0", "L_xchk:")
        a(f"v_xor_b32 v{TQ[1]}, v{HD}, v{TAGV}", f"v_bitop3_b32 v{TQ[1]}, v{TQ[1]}, v{HD+1}, v{TAGV} bitop3:0xf6", f"v_and_b32 v{TQ[1]}, 0xff, v{TQ[1]}")
        a(f"v_xor_b32 v{TQ[2]}, s{sTag32}, v{HD+2}", f"v_xor_b32 v{TQ[3]}, s{sTag32}, v{HD+3}", f"v_or3_b32 v{TQ[1]}, v{TQ[1]}, v{TQ[2]}, v{TQ[3]}", f"v_cmp_ne_u32 vcc, 0, v{TQ[1]}", "s_cbranch_vccz L_xok")
        a(f"s_add_u32 s{sSpin}, s{sSpin}, 1", f"s_cmp_ge_u32 s{sSpin}, 0x40000", "s_cbranch_scc1 L_xok")
        xch_load(False)
        a("s_waitcnt vmcnt(0)", "s_branch L_xchk", "L_xok:")
        a(f"v_and_b32 v{HD}, s{sTM}, v{HD}", f"v_and_b32 v{HD+1}, s{sTM}, v{HD+1}", f"v_max_f32 v{TQ[1]}, v{HD}, v{MW}")
        a(f"v_sub_f32 v{HD}, v{HD}, v{TQ[1]}", f"v_sub_f32 v{MW}, v{MW}, v{TQ[1]}", f"v_exp_f32 v{HD}, v{HD}", f"v_exp_f32 v{MW}, v{MW}", "s_nop 0")
        a(f"v_mul_f32 v{HD}, v{HD}, v{HD+1}", f"v_mul_f32 v{LW}, v{MW}, v{LW}", f"v_add_f32 v{LW}, v{LW}, v{HD}", f"v_rcp_f32 v{LW}, v{LW}", "s_nop 0", f"v_mul_f32 v{MW}, v{MW}, v{LW}")
        for r in FR: a(f"v_mul_f32 v{r}, v{r}, v{MW}")
        tick()
        c("workgroup classes that tend to finish late switch to one more load in flight a few blocks early (speed only)")
        tbl = sum(x << (4*k) for k, x in enumerate(XT))
        a(f"s_and_b32 s{sTmp}, s2, 7", f"s_lshl_b32 s{sTmp}, s{sTmp}, 2", f"s_lshr_b32 s{sTmp}, {hex(tbl)}, s{sTmp}", f"s_and_b32 s{sTmp}, s{sTmp}, 7", f"s_sub_u32 s{sEnd1}, 7, s{sTmp}")
    c("---- V pass: rows 0-7 of the tile take p_hi, rows 8-15 p_lo")
    vb = [sB0]
    def vissue(uu):
        d = RG + 4*(uu % 16)
        if not uu & 1: a(f"s_xor_b32 s{sOff}, s{vb[0] if uu < 32 else sB1}, {hex(perm_t((uu >> 1) & 15))}")
        a(f"buffer_load_dwordx4 v[{d}:{d+3}], v{vKV}, s[{sV}:{sV+3}], s{sOff} offen{' offset:256' if uu & 1 else ''} nt")
    def vstep(j, last, depth):
        A = AB + 4*(j & 1)
        abuild(A, PH+NP, inv[j], PL+NP)
        for hf in range(2):
            u = 2*j + hf
            a(f"s_waitcnt vmcnt({min(depth-1, 31-u) if last else depth-1})")
            if not (last and u + depth >= 32): vissue(u + depth)
            elif hf == 0: a("s_nop 0")
            mfma(D0 + 4*hf, A, RG + 4*(u % 16))
    def vcons(uu):
        u = uu - 256; j = (u >> 1) & 15; A = AB + 4*(j & 1)
        if not u & 1: abuild(A, PH + (u >> 5), inv[j], PL + (u >> 5)); a("s_nop 0"); g.wait(f"u{uu}")
        else: g.wait(f"u{uu}", nop=False)
        mfma(D0 + 4*(u & 1), A, RG + 4*(uu % 16))
    for x, fn in zip(XP, (xch_publish, xch_load, xch_finish)): run(vcons, 256 + x); fn()
    run(vcons, 256 + 32*NP)
    assert not wl, len(wl)
    assert iss[0] == 256 + 32*NP + DV and g.q[-DV:] == [f"u{256+32*NP+k}" for k in range(DV)]
    def vloop(lab, depth, end):
        a(f"s_cmp_ge_u32 s{sCnt}, {end}", f"s_cbranch_scc1 {lab}_skip", f"{lab}:")
        for j in range(16): vstep(j, False, depth)
        for k in range(NP, 7): a(f"v_mov_b32 v{PH+k}, v{PH+k+1}", f"v_mov_b32 v{PL+k}, v{PL+k+1}")
        a(f"s_mov_b32 s{sB0}, s{sB1}", f"s_add_u32 s{sTmp2}, s{sCnt}, 2", f"s_mov_b32 s{sB1}, s{sRot}")
        for k in range(3): a(f"s_bitcmp1_b32 s{sTmp2}, {k}", f"s_cselect_b32 s{sTmp}, {1 << PW[8+k]}, 0", f"s_xor_b32 s{sB1}, s{sB1}, s{sTmp}")
        a(f"s_add_u32 s{sCnt}, s{sCnt}, 1", f"s_cmp_lt_u32 s{sCnt}, {end}", f"s_cbranch_scc1 {lab}", f"{lab}_skip:")
    a(f"s_mov_b32 s{sCnt}, {NP}", f"s_xor_b32 s{sB0}, s{sRot}, {hex(perm_t(16*NP))}", f"s_xor_b32 s{sB1}, s{sRot}, {hex(perm_t(16*NP+16))}")
    vloop("L_vloop", DV, f"s{sEnd1}")
    for uu in range(DV, D2): vissue(uu)
    vloop("L_vloop2", D2, 7)
    a(f"s_mov_b32 s{sRot}, s{sB0}"); vb[0] = sRot
    for uu in range(D2, DE): vissue(uu)

    c("---- epilogue addresses, biases and x slice, in the shadow of the last V block")
    aOW, aOR, aPUB, aF0, SM, SIX, aG, XS = ACC+2, ACC+3, ACC+4, 71, ACC+6, ACC+10, ACC+11, ACC+14
    B1V, B2V, aHA, aAW, aAR, aF = Q, Q+2, Q+4, Q+5, Q+6, Q+7
    aG7, TG7, aBP, aBF, TGF, aF1 = PH+4, PH+6, PL+4, PL+5, PL+6, 70
    tg, tc, t2, t3, aT = T[0], T[1], T[2], T[3], T[4]
    a(f"v_lshrrev_b32 v{tg}, 4, v{vL}", f"v_and_b32 v{tc}, 15, v{vL}")
    a(f"v_bfe_u32 v{t2}, v{vL}, 1, 2", f"v_and_b32 v{t3}, 1, v{vL}", f"v_lshl_add_u32 v{t2}, v{t2}, 1, v{t3}", f"v_bfe_u32 v{t3}, v{vL}, 4, 1", f"v_lshl_add_u32 v{t2}, v{t2}, 1, v{t3}")
    a(f"v_mul_u32_u24 v{aOW}, 80, v{t2}", f"v_lshrrev_b32 v{t2}, 5, v{vL}", f"v_bfe_u32 v{t3}, v{vL}, 3, 1", f"v_lshl_add_u32 v{t2}, v{t2}, 1, v{t3}", f"v_lshl_add_u32 v{aOW}, v{t2}, 3, v{aOW}")
    a(f"s_mul_i32 s{sTmp}, s{sW}, 1280", f"v_add_u32 v{aOW}, s{sTmp}, v{aOW}")
    a(f"v_and_b32 v{t2}, 3, v{vL}", f"v_lshl_add_u32 v{t2}, v{t2}, 2, v{tg}", f"v_mul_u32_u24 v{aOR}, 80, v{t2}", f"v_lshl_add_u32 v{aOR}, v{t3}, 5, v{aOR}")
    a(f"v_lshlrev_b32 v{t2}, 2, v{t2}", f"v_add_u32 v{aT}, v{t2}, v{t3}", f"s_mul_i32 s{sTmp}, s{sW}, 112", f"v_add_u32 v{aHA}, s{sTmp}, v{aT}", f"v_lshlrev_b32 v{aHA}, 2, v{aHA}", f"v_add_u32 v{aHA}, {HBo}, v{aHA}")
    a(f"v_lshrrev_b32 v{aAR}, 3, v{aT}", f"v_lshl_add_u32 v{aAR}, v{aT}, 1, v{aAR}", f"v_lshlrev_b32 v{aAR}, 4, v{aAR}", f"s_lshl_b32 s{sTmp}, s{sF}, 6", f"v_add_u32 v{aT}, s{sTmp}, v{aT}", f"v_lshlrev_b32 v{aT}, 1, v{aT}")
    a(f"global_load_ushort v{B1V}, v{aT}, s[50:51] nt", f"global_load_ushort v{B1V+1}, v{aT}, s[50:51] offset:4 nt")
    a(f"v_and_b32 v{t2}, 7, v{vL}", f"v_bfe_u32 v{aAW}, v{vL}, 4, 1", f"v_lshl_add_u32 v{aAW}, v{t2}, 1, v{aAW}", f"v_lshlrev_b32 v{aAW}, 7, v{aAW}", f"v_lshl_add_u32 v{aAW}, v{t3}, 2, v{aAW}", f"v_lshl_add_u32 v{aAW}, v{t2}, 4, v{aAW}")
    a(f"s_lshl_b32 s{sTmp}, s{sW}, 3", f"v_add_u32 v{aAW}, s{sTmp}, v{aAW}")
    a(f"v_lshrrev_b32 v{t2}, 5, v{vL}", f"v_lshlrev_b32 v{aPUB}, 8, v{t2}", f"v_lshl_add_u32 v{aPUB}, v{tc}, 5, v{aPUB}", f"v_and_b32 v{t3}, 16, v{vL}", f"v_add_u32 v{aPUB}, v{aPUB}, v{t3}")
    a(f"s_lshl_b32 s{sTmp}, s{sW}, 9", f"v_add_u32 v{aPUB}, s{sTmp}, v{aPUB}", f"s_cmp_eq_u32 s{sW}, 3", f"s_cselect_b32 s{sTmp2}, 15, 31")
    a(f"v_and_b32 v{t3}, 31, v{vL}", f"v_min_u32 v{t3}, s{sTmp2}, v{t3}", f"v_lshlrev_b32 v{aG}, 4, v{t3}", f"v_lshl_add_u32 v{aG}, v{t2}, 15, v{aG}", f"v_add_u32 v{aG}, s{sTmp}, v{aG}")
    c("this workgroup's own partials are taken from registers: their lanes read out of range (zero) and expect tag 0")
    a(f"v_lshrrev_b32 v{T[5]}, 4, v{t3}", f"v_and_b32 v{T[6]}, 1, v{t3}", f"v_lshl_add_u32 v{T[5]}, v{T[5]}, 1, v{T[6]}", f"v_bfe_u32 v{T[6]}, v{t3}, 1, 3", f"v_lshl_add_u32 v{T[5]}, v{T[5]}, 4, v{T[6]}", f"v_lshlrev_b32 v{aBP}, 2, v{T[5]}")
    a(f"s_cmp_lt_u32 s{sJ}, 16", "s_cselect_b32 vcc_lo, -1, 0", "s_cselect_b32 vcc_hi, 0, -1", f"v_mov_b32 v{T[5]}, 0x10000000")
    a(f"v_cndmask_b32 v{T[5]}, v{aG}, v{T[5]}, vcc", f"v_cndmask_b32 v{T[6]}, v{TAGV}, 0, vcc", f"s_bitcmp1_b32 s{sJ}, 0", "s_cselect_b64 vcc, -1, 0")
    a(f"v_cndmask_b32 v{aG7}, v{T[5]}, v{aG}, vcc", f"v_cndmask_b32 v{aG7+1}, v{aG}, v{T[5]}, vcc", f"v_cndmask_b32 v{TG7}, v{T[6]}, v{TAGV}, vcc", f"v_cndmask_b32 v{TG7+1}, v{TAGV}, v{T[6]}, vcc")
    a(f"s_lshl_b32 s{sTmp}, s{sW}, 8", f"v_lshlrev_b32 v{t3}, 3, v{t3}", f"v_add_u32 v{aF}, s{sTmp}, v{t3}")
    a(f"buffer_load_dwordx2 v[{XS}:{XS+1}], v{aF}, s[{sX}:{sX+3}], 0 offen nt", f"v_lshlrev_b32 v{aF}, 1, v{aF}")
    a(f"v_and_b32 v{t3}, 3, v{vL}", f"v_lshlrev_b32 v{t3}, 3, v{t3}", f"s_lshl_b32 s{sTmp}, s{sF}, 5", f"v_add_u32 v{t3}, s{sTmp}, v{t3}")
    a(f"global_load_dwordx2 v[{B2V}:{B2V+1}], v{t3}, s[54:55] nt")
    c("sparse-MFMA one-hot masks and index")
    a(f"v_bfe_u32 v{t2}, v{vL}, 2, 1", f"v_cmp_eq_u32 vcc, 0, v{t2}", f"v_mov_b32 v{t3}, 0xffff", f"v_and_b32 v{SIX}, 3, v{vL}")
    a(f"v_cndmask_b32 v{SM}, 0, v{t3}, vcc", f"v_cndmask_b32 v{SM+1}, v{t3}, 0, vcc", f"v_mul_u32_u24 v{SIX}, 0x5555, v{SIX}", f"v_lshlrev_b32 v{SM+2}, 16, v{SM}", f"v_lshlrev_b32 v{SM+3}, 16, v{SM+1}")
    a(f"s_cmp_eq_u32 s{sW}, 3", f"s_cselect_b32 s{sPX}, 0, 0x00ff00ff", f"s_cselect_b32 s{sEX}, 0xffff, -1", f"s_mov_b32 s{sIN}, {hex(f2u(1.0/128))}", f"s_cselect_b32 s{sIN}, {hex(f2u(1.0/64))}, s{sIN}")
    a(f"s_bfe_u32 s{sRU}, s{sJ}, 0x30001", f"s_lshl_b32 s{sGB}, s{sB}, 16", f"s_lshl_b32 s{sPB}, s{sJ}, 11", f"s_add_u32 s{sPB}, s{sPB}, s{sGB}")
    a(f"s_add_u32 s{sPF}, s{sPB}, {FOFF}", f"s_add_u32 s{sPB}, s{sPB}, {XOFF}", f"s_lshl_b32 s{sFB}, s{sF}, 6", f"s_add_u32 s{sFB}, s{sFB}, s{sGB}", f"s_add_u32 s{sFB}, s{sFB}, {FOFF}", f"s_add_u32 s{sGB}, s{sGB}, {XOFF}")
    for k in range(8): a(f"s_add_u32 s{sU+k}, s{sRU}, {k+1}", f"s_and_b32 s{sU+k}, s{sU+k}, 7", f"s_lshl_b32 s{sU+k}, s{sU+k}, 12", f"s_add_u32 s{sU+k}, s{sU+k}, s{sGB}")
    a(f"v_lshrrev_b32 v{T[0]}, 2, v{vL}", f"v_and_b32 v{T[1]}, 3, v{vL}", f"v_lshlrev_b32 v{T[1]}, 4, v{T[1]}", f"v_add_u32 v{T[2]}, 16, v{T[0]}", f"v_min_u32 v{T[2]}, 27, v{T[2]}")
    a(f"v_lshl_add_u32 v{aF0}, v{T[0]}, 11, v{T[1]}", f"v_lshl_add_u32 v{aF1}, v{T[2]}, 11, v{T[1]}", f"v_mov_b32 v{T[3]}, 0x10000000")
    a(f"v_cmp_eq_u32 vcc, s{sJ}, v{T[0]}", f"v_and_b32 v{T[5]}, 1, v{vL}", f"v_bfe_u32 v{T[6]}, v{vL}, 1, 1")
    a(f"v_cndmask_b32 v{aF0}, v{aF0}, v{T[3]}, vcc", f"v_cndmask_b32 v{TGF}, v{TAGV}, 0, vcc")
    a(f"v_cmp_eq_u32 vcc, s{sJ}, v{T[2]}", f"v_lshl_add_u32 v{T[5]}, v{T[5]}, 4, v{T[6]}", f"s_and_b32 s{sTmp}, s{sJ}, 3")
    a(f"v_cndmask_b32 v{aF1}, v{aF1}, v{T[3]}, vcc", f"v_cndmask_b32 v{TGF+1}, v{TAGV}, 0, vcc")
    a(f"s_lshl_b32 s{sTmp}, s{sTmp}, 1", f"s_bfe_u32 s{sTmp2}, s{sJ}, 0x10002", f"s_lshl_b32 s{sTmp2}, s{sTmp2}, 5", f"s_add_u32 s{sTmp}, s{sTmp}, s{sTmp2}")
    sFW = sR
    a(f"v_add_u32 v{aBF}, s{sTmp}, v{T[5]}", f"v_lshlrev_b32 v{aBF}, 2, v{aBF}", f"s_lshr_b32 s{sFW}, s{sJ}, 3")
    c("pull this wave's own hand-off lines on die ahead of time (values unused)")
    a("s_mov_b32 exec_lo, 0x00110011", f"s_and_b32 exec_hi, s{sPX}, 0x00110011")
    a(f"buffer_load_dword v{T[7]}, v{aPUB}, s[{sWS}:{sWS+3}], s{sPB} offen sc1", f"buffer_load_dword v{T[7]}, v{aPUB}, s[{sWS}:{sWS+3}], s{sPF} offen sc1", "s_mov_b64 exec, -1")
    for j in range(16): vstep(j, True, DE)

    c("---- o partial (hi + lo rows) -> LDS -> normalised sum of the four waves, bf16")
    a("s_nop 7")
    for t in range(4): a(f"v_permlane32_swap_b32 v{D0+t}, v{D1+t}")
    for t, r in enumerate((0, 2, 1, 3)): a(f"v_add_f32 v{AB+r}, v{D0+t}, v{D1+t}")
    a(f"ds_write_b64 v{aOW}, v[{AB}:{AB+1}] offset:{OPo}", f"ds_write_b64 v{aOW}, v[{AB+2}:{AB+3}] offset:{OPo+32}", "s_waitcnt lgkmcnt(0)", "s_barrier")
    for w in range(4):
        for hh in range(2): a(f"ds_read_b128 v[{RG+8*w+4*hh}:{RG+8*w+4*hh+3}], v{aOR} offset:{OPo + w*1280 + 16*hh}")
    for e in range(8): a(f"v_mov_b32 v{D0+e}, 0")
    for w in range(4):
        a(f"s_waitcnt lgkmcnt({6-2*w})")
        Fp = (F0, F0, F2, F2)[w]; o = w & 1
        for k in range(4):
            r = RG + 2*k
            if w == 0: a(f"v_pk_mul_f32 v[{r}:{r+1}], v[{r}:{r+1}], v[{Fp}:{Fp+1}] op_sel_hi:[1,0]")
            else: a(f"v_pk_fma_f32 v[{r}:{r+1}], v[{r+8*w}:{r+8*w+1}], v[{Fp}:{Fp+1}], v[{r}:{r+1}] op_sel:[0,{o},0] op_sel_hi:[1,{o},1]")
    S = PL
    for u in range(4): a(f"v_cvt_pk_bf16_f32 v{S+u}, v{RG+2*u}, v{RG+2*u+1}")
    def sbuild(dst, n, ts):
        for t in ts: a(f"v_and_b32_dpp v{dst+t}, v{S + (n >> 2)}, v{SM+t} quad_perm:[{n&3},{n&3},{n&3},{n&3}] row_mask:0xf bank_mask:0xf")
    def smf(d, A, B, br): a(f"v_smfmac_f32_16x16x64_bf16 v[{d}:{d+3}], v[{A}:{A+3}], {br}[{B}:{B+7}], v{SIX}")
    BUF = [AB, AB+4, PH]
    def proj(nj, breg, br):
        sbuild(BUF[0], 0, range(4)); sbuild(BUF[1], 1, range(4))
        for jj in range(nj):
            A, nA = BUF[jj % 3], BUF[(jj+2) % 3]
            smf(D0, A, breg + (jj*2)*8, br)
            if jj + 2 < nj: sbuild(nA, jj+2, (0, 1))
            smf(D1, A, breg + (jj*2+1)*8, br)
            if jj + 2 < nj: sbuild(nA, jj+2, (2, 3))
    def publish(so):
        a("s_nop 7")
        for t in range(4): a(f"v_permlane32_swap_b32 v{D0+t}, v{D1+t}")
        for t in range(4): a(f"v_add_f32_dpp v{D0+t}, v{D1+t}, v{D0+t} row_ror:8 row_mask:0xf bank_mask:0xf")
        for t in range(4): a(f"v_bfi_b32 v{AB+t}, s{sTM}, v{D0+t}, v{TAGV}")
        a("s_mov_b32 exec_lo, 0x00ff00ff", f"s_mov_b32 exec_hi, s{sPX}")
        a(f"buffer_store_dwordx4 v[{AB}:{AB+3}], v{aPUB}, s[{sWS}:{sWS+3}], s{so} offen sc1", "s_mov_b64 exec, -1")
    c("---- y partial = o @ wo[head]: wave w owns columns 128w..128w+127, 16 rows x 64 columns per sparse MFMA")
    proj(16, 0, "a")
    publish(sPB)
    a(f"s_cmp_ge_u32 s{sJ}, 28", "s_cbranch_scc1 L_end")
    c("---- hand-off X: sum the 32 partials of this batch (8 slots of 4 producers); lanes 32-63 start from x")
    GA, CK, R2 = D0, T[1], RG+32
    def gissue(r, so, own=False):
        a(f"buffer_load_dwordx4 v[{r}:{r+3}], v{aG7 if own else aG}, s[{sWS}:{sWS+3}], s{so} offen sc1")
        a(f"buffer_load_dwordx4 v[{r+4}:{r+7}], v{aG7+1 if own else aG}, s[{sWS}:{sWS+3}], s{so} offen offset:2048 sc1")
    def tagchk(r, ta=TAGV, tb=TAGV):
        a(f"v_xor_b32 v{CK}, v{r}, v{ta}", f"v_xor_b32 v{T[2]}, v{r+4}, v{tb}")
        a(f"v_bitop3_b32 v{CK}, v{CK}, v{r+2}, v{ta} bitop3:0xf6", f"v_bitop3_b32 v{T[2]}, v{T[2]}, v{r+6}, v{tb} bitop3:0xf6")
        a(f"v_bitop3_b32 v{CK}, v{CK}, v{T[2]}, s{sTM} bitop3:0x54", f"v_cmp_ne_u32 vcc, 0, v{CK}")
    pa = lambda x, y, z=None: f"v_pk_add_f32 v[{x}:{x+1}], v[{x if z is None else z}:{(x if z is None else z)+1}], v[{y}:{y+1}]"
    def gacc(r, L, k):
        tagchk(r, TG7, TG7+1) if k == 7 else tagchk(r)
        a(pa(r, r+4), pa(r+2, r+6), f"s_cbranch_vccnz {L}", pa(GA, r), pa(GA+2, r+2))
        if k is not None: a(f"s_bitset0_b32 s{sDone}, {k}")
    for e in range(4): a(f"ds_bpermute_b32 v{GA+e}, v{aBP}, v{AB+e}")
    for k in range(8): gissue(RG+8*k, sU+k, k == 7)
    a(f"s_movk_i32 s{sDone}, 0xff", f"s_mov_b32 s{sSpin}, 0", "s_waitcnt lgkmcnt(0)", "s_mov_b32 exec_lo, 0")
    unpack(GA, XS, 2)
    a("s_mov_b32 exec_lo, -1")
    for k in range(8):
        a(f"s_waitcnt vmcnt({14-2*k})"); gacc(RG+8*k, f"L_g0_{k}", k); a(f"L_g0_{k}:")
    a(f"s_cmp_eq_u32 s{sDone}, 0", "s_cbranch_scc1 L_gdone")
    for k in range(8):
        a(f"s_bitcmp1_b32 s{sDone}, {k}", f"s_cbranch_scc0 L_g1_{k}"); gissue(RG+8*k, sU+k, k == 7); a(f"L_g1_{k}:")
    a("L_gtop:", "s_waitcnt vmcnt(0)")
    for k in range(8):
        a(f"s_bitcmp1_b32 s{sDone}, {k}", f"s_cbranch_scc0 L_gb_{k}"); gacc(RG+8*k, f"L_gf_{k}", k); a(f"L_gb_{k}:")
    a(f"s_bcnt1_i32_b32 s{sTmp}, s{sDone}", "s_cbranch_scc0 L_gdone")
    a(f"s_bitcmp1_b32 s{sDone}, 7", "s_cbranch_scc1 L_gmany", f"s_cmp_eq_u32 s{sTmp}, 1", "s_cbranch_scc1 L_gone", "L_gmany:")
    a(f"s_add_u32 s{sSpin}, s{sSpin}, 1", f"s_cmp_lt_u32 s{sSpin}, 0x40000", "s_cbranch_scc1 L_gtop", "s_branch L_gdone")
    for k in range(8):
        a(f"L_gf_{k}:"); gissue(RG+8*k, sU+k, k == 7); a(f"s_branch L_gb_{k}")
    a("L_gone:")
    a(f"s_ff1_i32_b32 s{sTmp2}, s{sDone}", f"s_add_u32 s{sTmp2}, s{sTmp2}, s{sRU}", f"s_add_u32 s{sTmp2}, s{sTmp2}, 1", f"s_and_b32 s{sTmp2}, s{sTmp2}, 7", f"s_lshl_b32 s{sTmp2}, s{sTmp2}, 12", f"s_add_u32 s{sTmp2}, s{sTmp2}, s{sGB}")
    a("L_gone1:"); gissue(RG, sTmp2)
    a(f"s_add_u32 s{sSpin}, s{sSpin}, 1", f"s_cmp_ge_u32 s{sSpin}, 0x40000", "s_cbranch_scc1 L_gdone", "s_waitcnt vmcnt(0)")
    gacc(RG, "L_gone1", None)
    a("L_gdone:")
    c("---- h slice (fp32) and its mean / centred sum of squares (pivot = first element)")
    S1, S2, H4, XF = R2+10, R2+11, R2+4, R2
    for e in range(4): a(f"v_mov_b32 v{GA+4+e}, v{GA+e}")
    a(f"v_mov_b32 v{S1}, 0", f"v_mov_b32 v{S2}, 0")
    for e in range(4): a(f"v_permlane32_swap_b32 v{GA+4+e}, v{GA+e}")
    a(pa(GA, GA+4), pa(GA+2, GA+6))
    a(f"s_lshl_b32 s{sCnt}, s{sW}, 3", f"v_readlane_b32 s{sTmp2}, v{GA}, 0", f"ds_write_b128 v{aF}, v[{GA}:{GA+3}] offset:{HBo}", f"s_mov_b32 exec_lo, s{sEX}")
    neg = "op_sel_hi:[1,0] neg_lo:[0,1] neg_hi:[0,1]"
    a(f"v_pk_add_f32 v[{H4}:{H4+1}], v[{GA}:{GA+1}], s[{sTmp2}:{sTmp2+1}] {neg}", f"v_pk_add_f32 v[{H4+2}:{H4+3}], v[{GA+2}:{GA+3}], s[{sTmp2}:{sTmp2+1}] {neg}")
    a(f"v_pk_mul_f32 v[{XF}:{XF+1}], v[{H4}:{H4+1}], v[{H4}:{H4+1}]", pa(XF+2, H4+2, H4), f"v_pk_fma_f32 v[{XF}:{XF+1}], v[{H4+2}:{H4+3}], v[{H4+2}:{H4+3}], v[{XF}:{XF+1}]")
    a(f"v_add_f32 v{S1}, v{XF+2}, v{XF+3}", f"v_add_f32 v{S2}, v{XF}, v{XF+1}", "s_mov_b32 exec_lo, -1")
    fill = [f"v_mov_b32 v{T[0]}, s{sCnt}", f"v_mov_b32 v{T[1]}, 0", f"v_mov_b32 v{D0}, 0", f"v_mov_b32 v{D0+1}, 0", f"v_mov_b32 v{D0+2}, 0"]
    for ctl in ("row_ror:8 row_mask:0xf", "row_ror:4 row_mask:0xf", "row_ror:2 row_mask:0xf", "row_ror:1 row_mask:0xf", "row_bcast:15 row_mask:0x2"):
        a(fill.pop(0))
        for r in (S1, S2): a(f"v_add_f32_dpp v{r}, v{r}, v{r} {ctl} bank_mask:0xf")
    a(f"v_mul_f32 v{XF}, s{sIN}, v{S1}", f"v_mov_b32 v{D0+3}, 0", f"v_fma_f32 v{S2}, -v{XF}, v{S1}, v{S2}", f"v_add_f32 v{S1}, s{sTmp2}, v{XF}")
    a("s_mov_b32 exec_lo, 0x10000", "s_mov_b32 exec_hi, 0", f"ds_write_b64 v{T[0]}, v[{S1}:{S1+1}] offset:{STo}", "s_mov_b64 exec, -1", "s_waitcnt lgkmcnt(0)", "s_barrier")
    c("---- combine the four slices (128,128,128,64 columns) into mean and variance of h")
    ST, E, MU, RS = R2, R2+16, T[4], T[6]
    a(f"ds_read_b128 v[{ST}:{ST+3}], v{T[1]} offset:{STo}", f"ds_read_b128 v[{ST+4}:{ST+7}], v{T[1]} offset:{STo+16}")
    a(f"ds_read2_b32 v[{E}:{E+1}], v{aHA} offset0:0 offset1:2", f"ds_read2_b32 v[{E+2}:{E+3}], v{aHA} offset0:64 offset1:66", "s_waitcnt lgkmcnt(2)")
    a(f"v_add_f32 v{MU}, v{ST}, v{ST+2}", f"v_fma_f32 v{T[5]}, v{ST+6}, 0.5, v{ST+4}", f"v_add_f32 v{RS}, v{ST+1}, v{ST+3}", f"v_add_f32 v{MU}, v{MU}, v{T[5]}", f"v_add_f32 v{T[7]}, v{ST+5}, v{ST+7}")
    a(f"v_mul_f32 v{MU}, {hex(f2u(2.0/7))}, v{MU}", f"v_add_f32 v{RS}, v{RS}, v{T[7]}")
    for w in range(4): a(f"v_sub_f32 v{ST+2*w}, v{ST+2*w}, v{MU}")
    a(f"v_mul_f32 v{T[5]}, v{ST+6}, v{ST+6}", f"v_mul_f32 v{T[7]}, v{ST}, v{ST}", f"v_mul_f32 v{RS}, {inv448}, v{RS}")
    a(f"v_fmac_f32 v{T[7]}, v{ST+2}, v{ST+2}", f"v_fmac_f32 v{RS}, {hex(f2u(1.0/7))}, v{T[5]}", f"v_fmac_f32 v{T[7]}, v{ST+4}, v{ST+4}", "s_waitcnt lgkmcnt(0)")
    a(f"v_pk_add_f32 v[{E}:{E+1}], v[{E}:{E+1}], v[{MU}:{MU+1}] {neg}", f"v_fmac_f32 v{RS}, {hex(f2u(2.0/7))}, v{T[7]}")
    c("both layer norms: z1 = (h-mu)/sqrt(var+eps) has mean 0 and variance var/(var+eps), hence")
    c("LN(z1) = z1/sqrt(var/(var+eps) + eps) = (h-mu)/sqrt(var + eps*(var+eps))")
    a(f"v_pk_add_f32 v[{E+2}:{E+3}], v[{E+2}:{E+3}], v[{MU}:{MU+1}] {neg}", f"v_add_f32 v{T[5]}, {eps}, v{RS}", f"v_fmac_f32 v{RS}, {eps}, v{T[5]}", f"v_rsq_f32 v{RS}, v{RS}", "s_nop 0")
    a(f"v_pk_mul_f32 v[{E}:{E+1}], v[{E}:{E+1}], v[{RS}:{RS+1}] op_sel_hi:[1,0]", f"v_pk_mul_f32 v[{E+2}:{E+3}], v[{E+2}:{E+3}], v[{RS}:{RS+1}] op_sel_hi:[1,0]")
    a(f"v_cvt_pk_bf16_f32 v{S}, v{E}, v{E+1}", f"v_cvt_pk_bf16_f32 v{S+1}, v{E+2}, v{E+3}", "s_nop 0")
    c("---- w1 slice: wave w takes rows 112w..112w+111, partials summed through LDS")
    sbuild(AB, 0, range(4))
    for jj in range(7):
        nA = AB + 4*((jj+1) & 1)
        if jj < 6: sbuild(nA, jj+1, (0, 1))
        else: a("s_nop 1")
        smf(D0, AB + 4*(jj & 1), W1R + 8*jj, "v")
        if jj < 6: sbuild(nA, jj+1, (2, 3))
    a(f"v_lshlrev_b32 v{B1V}, 16, v{B1V}", f"v_lshlrev_b32 v{B1V+1}, 16, v{B1V+1}", "s_mov_b32 exec_lo, 0x00ff00ff", "s_mov_b32 exec_hi, 0xff00ff00", "s_nop 3")
    for t in range(4): a(f"ds_write_b32 v{aAW}, v{D0+t} offset:{APo + 32*t}")
    a("s_mov_b64 exec, -1", "s_waitcnt lgkmcnt(0)", "s_barrier")
    for k in range(4): a(f"ds_read_b128 v[{R2+4*k}:{R2+4*k+3}], v{aAR} offset:{APo + 64*(k >> 1) + 16*(k & 1)}")
    for e in range(8): a(f"v_mov_b32 v{D0+e}, 0")
    G2, U2 = T[4], T[6]
    for x in range(2):
        r = R2 + 8*x
        a(f"s_waitcnt lgkmcnt({2-2*x})", pa(r, r+2), pa(r+4, r+6), pa(r, r+4), f"v_add_f32 v{G2+x}, v{r}, v{r+1}")
    c("GELU(tanh form): 0.5 a (1 + tanh u) = a / (1 + exp(-2u)), u = sqrt(2/pi) (a + 0.044715 a^3)")
    beta, kap = 0.7978845608028654, 0.044715
    a(pa(G2, B1V), f"v_pk_mul_f32 v[{U2}:{U2+1}], v[{G2}:{G2+1}], v[{G2}:{G2+1}]")
    for x in range(2): a(f"v_mul_f32 v{U2+x}, {hex(f2u(kap))}, v{U2+x}")
    a(f"v_pk_fma_f32 v[{U2}:{U2+1}], v[{U2}:{U2+1}], v[{G2}:{G2+1}], v[{G2}:{G2+1}]")
    for x in range(2): a(f"v_mul_f32 v{U2+x}, {hex(f2u(-2*beta*math.log2(math.e)))}, v{U2+x}")
    for x in range(2): a(f"v_exp_f32 v{U2+x}, v{U2+x}")
    a("s_nop 0")
    for x in range(2): a(f"v_add_f32 v{U2+x}, 1.0, v{U2+x}")
    for x in range(2): a(f"v_rcp_f32 v{U2+x}, v{U2+x}")
    a("s_nop 0", f"v_pk_mul_f32 v[{G2}:{G2+1}], v[{G2}:{G2+1}], v[{U2}:{U2+1}]", f"v_cvt_pk_bf16_f32 v{S}, v{G2}, v{G2+1}", "s_nop 1")
    c("---- w2 slice, hand-off F")
    proj(4, W2R, "v")
    publish(sPF)
    c("---- the wave that holds columns 16j..16j+15 sums the 28 partials, adds b2 and h, stores the output")
    a(f"s_cmp_lg_u32 s{sW}, s{sFW}", "s_cbranch_scc1 L_end")
    FA, FB, FH, FO, aO = R2, R2+8, R2+12, R2+20, T[4]
    def fissue():
        a(f"buffer_load_dwordx4 v[{FA}:{FA+3}], v{aF0}, s[{sWS}:{sWS+3}], s{sFB} offen sc1", f"buffer_load_dwordx4 v[{FA+4}:{FA+7}], v{aF1}, s[{sWS}:{sWS+3}], s{sFB} offen sc1")
    fissue()
    for e in range(4): a(f"ds_bpermute_b32 v{FO+e}, v{aBF}, v{AB+e}")
    a(f"s_lshl_b32 s{sTmp}, s{sJ}, 5", f"v_and_b32 v{aO}, 3, v{vL}", f"v_lshlrev_b32 v{aO}, 3, v{aO}", f"v_add_lshl_u32 v{T[5]}, s{sTmp}, v{aO}, 1", f"ds_read_b128 v[{FH}:{FH+3}], v{T[5]} offset:{HBo}")
    unpack(FB, B2V, 2)
    a(f"s_mul_i32 s{sCnt}, s{sB}, 896", f"s_add_u32 s{sCnt}, s{sCnt}, s{sTmp}")
    srd(sX, 56, None, 3584*2)
    a(f"s_mov_b32 s{sSpin}, 0", "s_waitcnt lgkmcnt(0)", pa(FO, FB), pa(FO+2, FB+2), pa(FB, FH, FO), pa(FB+2, FH+2, FO+2), "s_branch L_fchk", "L_fpoll:")
    fissue()
    a(f"s_add_u32 s{sSpin}, s{sSpin}, 1", f"s_cmp_ge_u32 s{sSpin}, 0x40000", "s_cbranch_scc1 L_fdone", "L_fchk:", "s_waitcnt vmcnt(0)")
    tagchk(FA, TGF, TGF+1)
    a("s_mov_b32 exec_hi, 0xffff", pa(FA, FA+4), pa(FA+2, FA+6), "s_mov_b32 exec_hi, -1", "s_cbranch_vccnz L_fpoll", "L_fdone:")
    for rot in (4, 8):
        for e in range(4): a(f"v_add_f32_dpp v{FA+e}, v{FA+e}, v{FA+e} row_ror:{rot} row_mask:0xf bank_mask:0xf")
    for sw in ("v_permlane16_swap_b32", "v_permlane32_swap_b32"):
        for e in range(4): a(f"v_mov_b32 v{FA+4+e}, v{FA+e}")
        for e in range(4): a(f"{sw} v{FA+4+e}, v{FA+e}")
        a(pa(FA, FA+4), pa(FA+2, FA+6))
    a(pa(FA, FB), pa(FA+2, FB+2), f"v_cvt_pk_bf16_f32 v{FA}, v{FA}, v{FA+1}", f"v_cvt_pk_bf16_f32 v{FA+1}, v{FA+2}, v{FA+3}", "s_mov_b64 exec, 15")
    a(f"buffer_store_dwordx2 v[{FA}:{FA+1}], v{aO}, s[{sX}:{sX+3}], s{sCnt} offen")
    c("every reader of this batch's epoch word has published by now: advance it")
    a(f"s_cmp_lg_u32 s{sJ}, 0", "s_cbranch_scc1 L_end")
    a(f"s_lshl_b32 s{sTmp}, s{sB}, 7", f"v_mov_b32 v{T[5]}, s{sTag32}", "s_mov_b64 exec, 1", f"buffer_store_dword v{T[5]}, v{aO}, s[{sWS}:{sWS+3}], s{sTmp} offen")
    a("L_end:", "s_endpgm")
    a('.section .rodata,"a"', ".p2align 6", f".amdhsa_kernel {NAME}_kernel")
    for x in ("next_free_vgpr 512", "next_free_sgpr 102", "accum_offset 256", "group_segment_fixed_size 0", "kernarg_size 104", "user_sgpr_count 2",
              "user_sgpr_kernarg_segment_ptr 1", "system_sgpr_workgroup_id_x 1", "float_denorm_mode_32 3"): g.o.append("  .amdhsa_" + x)
    a(".end_amdhsa_kernel")
    return "\n".join(g.o) + "\n"

if __name__ == "__main__":
    kw = dict(x.split("=") for x in sys.argv[2:])
    open(sys.argv[1], "w").write(gen(**{k: eval(v) for k, v in kw.items()}))
```

```python
import sys, struct, math
NAME = "sequential_preLN__mha_block_cached__mixer_channel_mlp__decode"
def f2u(x): return struct.unpack("<I", struct.pack("<f", x))[0]

class G:
    def __init__(s): s.o = []; s.q = []; s.lab = 0
    def __call__(s, *xs): s.o.extend("    " + x if not x.endswith(":") and not x.startswith((".", ";")) else x for x in xs)
    def vm(s, text, tag): s(text); s.q.append(tag)
    def wait(s, tag, nop=True):
        if tag not in s.q:
            if nop: s("s_nop 0")
            return
        idx = max(i for i, t in enumerate(s.q) if t == tag)
        n = len(s.q) - 1 - idx; assert n <= 63
        s(f"s_waitcnt vmcnt({n})"); s.q = s.q[idx+1:]
    def label(s, p): s.lab += 1; return f"{p}_{s.lab}"

HEADER = """\
;
"""

def gen(NST=32, NX=24, DQ=3, K0=4, DH=6, DV=6, D2=8, DE=15, HPF=0, XPF=1, RCU=7, WEV=2.3, NP=3, BPF=7, QPF=0, WOF=0, WST=0, BAT=0, QAT=0, QS=0, QROW=1, QPOL='', WPOL='', BPOL='', XP=(16, 56, 84),
        PW=(11, 13, 12, 16, 10, 9, 15, 18, 14, 17, 19), PHS=((14, 4), (17, 1), (19, 132)), XT=(0, 1, 2, 3, 3, 4, 2, 1)):
    g = G(); a = g
    def c(t): a("; " + t)
    def perm_t(t): return sum(((t >> k) & 1) << PW[4+k] for k in range(7))
    ROFF, HOFF, XOFF, FOFF = 0x0, 0x8000, 0x10000, 0x100000
    vL, vKV = 0, 1
    T = list(range(2, 10))
    MK, Q, PH, PL, ACC, D0, D1, AB = 10, 14, 22, 30, 38, 54, 58, 62
    X8 = AB
    RG, W1R, W2R, WQR = 72, 136, 192, 136
    sK, sV, sWQ, sWO, sW1, sW2, sX, sWS = 4, 8, 12, 16, 20, 24, 28, 32
    sW, sI, sH, sB, sJ, sF, sOff, sRot, sCnt, sTmp, sTmp2, sR, sTag32, sC, sHI, sTM = range(62, 78)
    sPX, sGB, sU, sRU, sFB, sSpin, sPB, sPF, sDone, sEX, sIN = 78, 79, 80, 88, 89, 90, 91, 92, 93, 94, 95
    sB1, sB0, sEnd1 = 83, 84, 85

    a("; @launch grid=(256,1,1) block=(256,1,1) lds=16384")
    g.o.append(HEADER.rstrip("\n"))
    a('.amdgcn_target "amdgcn-amd-amdhsa--gfx950"', ".text", f".globl {NAME}_kernel", ".p2align 8", f".type {NAME}_kernel,@function", f"{NAME}_kernel:")
    a("s_cmp_ge_u32 s2, 256", "s_cbranch_scc1 L_end")
    a("s_load_dwordx16 s[36:51], s[0:1], 0", "s_load_dwordx8 s[52:59], s[0:1], 64", "s_load_dwordx2 s[60:61], s[0:1], 96")
    a(f"v_lshrrev_b32 v{T[0]}, 6, v0", f"v_and_b32 v{vL}, 63, v0", f"v_readfirstlane_b32 s{sW}, v{T[0]}")
    c("i = (wg&7)*32 + (wg>>3): workgroups that share a head's weights tend to share an L2.  h = i>>4, b = (i>>1)&7, j = 2h + (i&1)")
    a(f"s_and_b32 s{sI}, s2, 7", f"s_lshl_b32 s{sI}, s{sI}, 5", f"s_lshr_b32 s{sTmp}, s2, 3", f"s_add_u32 s{sI}, s{sI}, s{sTmp}")
    a(f"s_lshr_b32 s{sH}, s{sI}, 4", f"s_bfe_u32 s{sB}, s{sI}, 0x30001", f"s_and_b32 s{sTmp}, s{sI}, 1")
    a(f"s_lshl_b32 s{sJ}, s{sH}, 1", f"s_add_u32 s{sJ}, s{sJ}, s{sTmp}")
    c("lane l = (g = l>>4, c = l&15) reads 16 B at column c of the row picked by g, the wave and the step")
    a(f"v_lshrrev_b32 v{T[0]}, 4, v{vL}", f"v_and_b32 v{T[1]}, 15, v{vL}", f"v_lshlrev_b32 v{T[2]}, 4, v{T[1]}")
    a(f"v_and_b32 v{T[3]}, 1, v{T[0]}", f"v_lshl_add_u32 v{vKV}, v{T[3]}, {PW[0]}, v{T[2]}", f"v_lshrrev_b32 v{T[3]}, 1, v{T[0]}", f"v_lshl_add_u32 v{vKV}, v{T[3]}, {PW[1]}, v{vKV}")
    a(f"s_and_b32 s{sTmp}, s{sW}, 1", f"s_lshl_b32 s{sTmp}, s{sTmp}, {PW[2]}", f"s_lshr_b32 s{sTmp2}, s{sW}, 1", f"s_lshl_b32 s{sTmp2}, s{sTmp2}, {PW[3]}", f"s_or_b32 s{sTmp}, s{sTmp}, s{sTmp2}")
    a(f"v_add_u32 v{vKV}, s{sTmp}, v{vKV}")
    c("wq rows of step j: 112w + 16(j>>2) + (j&3) + 4g ; x gather for the same rows")
    a(f"s_mul_i32 s{sTmp}, s{sW}, {112*8192}", f"v_lshl_add_u32 v{T[3]}, v{T[0]}, {15 if QROW else 13}, v{T[2]}", f"v_add_u32 v{T[3]}, s{sTmp}, v{T[3]}")
    if QROW: a(f"v_lshrrev_b32 v{T[5]}, 2, v{T[1]}", f"v_lshl_add_u32 v{T[5]}, v{T[5]}, 2, v{T[0]}", f"v_and_b32 v{T[4]}, 3, v{T[1]}", f"v_lshl_add_u32 v{T[5]}, v{T[5]}, 2, v{T[4]}")
    else: a(f"v_lshl_add_u32 v{T[5]}, v{T[1]}, 2, v{T[0]}")
    a(f"v_lshlrev_b32 v{T[4]}, 4, v{vL}", f"s_mul_i32 s{sTmp}, s{sW}, 112", f"v_add_u32 v{T[5]}, s{sTmp}, v{T[5]}", f"v_lshlrev_b32 v{T[5]}, 1, v{T[5]}")
    c("K/V chunk = (32b + j) MiB; the walk through it starts at a workgroup-specific phase")
    a(f"s_lshl_b32 s{sTmp2}, s{sB}, 5", f"s_add_u32 s{sTmp2}, s{sTmp2}, s{sJ}", f"s_lshl_b32 s{sTmp2}, s{sTmp2}, 20", f"s_mov_b32 s{sRot}, 0")
    for k, m in PHS:
        if m & (m-1) == 0: a(f"s_bitcmp1_b32 s{sI}, {m.bit_length()-1}")
        else: a(f"s_and_b32 s{sTmp}, s{sI}, {m}", f"s_bcnt1_i32_b32 s{sTmp}, s{sTmp}", f"s_bitcmp1_b32 s{sTmp}, 0")
        a(f"s_cselect_b32 s{sTmp}, {1 << k}, 0", f"s_xor_b32 s{sRot}, s{sRot}, s{sTmp}")
    a(f"s_mov_b32 s{sK+2}, {1 << 20}", f"s_mov_b32 s{sK+3}, 0x20000", "s_waitcnt lgkmcnt(0)")
    a(f"s_add_u32 s{sK}, s38, s{sTmp2}", f"s_addc_u32 s{sK+1}, s39, 0", f"s_and_b32 s{sK+1}, s{sK+1}, 0xffff")
    iss = [0]
    NS = 2*NST + NX
    def hdst(u):
        if u < 2*NST: return ("a", 4*u)
        if u < NS: return ("v", 256 - 4*(NS - u))
        return ("v", RG + 4*(u % 16))
    def hissue():
        u = iss[0]; iss[0] += 1
        r, d = hdst(u); srdn = sK if u < 256 else sV
        if not u & 1: a(f"s_xor_b32 s{sOff}, s{sRot}, {hex(perm_t((u >> 1) & 127))}")
        g.vm(f"buffer_load_dwordx4 {r}[{d}:{d+3}], v{vKV}, s[{srdn}:{srdn+3}], s{sOff} offen{' offset:256' if u & 1 else ''} nt", f"u{u}")
    for _ in range(K0): hissue()
    def srd(s, lo, off, nrec):
        if off is None: a(f"s_mov_b32 s{s}, s{lo}", f"s_and_b32 s{s+1}, s{lo+1}, 0xffff")
        else: a(f"s_add_u32 s{s}, s{lo}, s{off}", f"s_addc_u32 s{s+1}, s{lo+1}, 0", f"s_and_b32 s{s+1}, s{s+1}, 0xffff")
        a(f"s_mov_b32 s{s+2}, {nrec}", f"s_mov_b32 s{s+3}, 0x20000")
    a(f"s_min_u32 s{sF}, s{sJ}, 27", f"s_mul_i32 s{sTmp}, s{sB}, 896")
    srd(sX, 36, sTmp, 896)
    g.vm(f"buffer_load_dwordx4 v[{X8}:{X8+3}], v{T[4]}, s[{sX}:{sX+3}], 0 offen nt", "x")
    g.vm(f"buffer_load_ushort v{PH}, v{T[5]}, s[{sX}:{sX+3}], 0 offen nt", "x")
    g.vm(f"buffer_load_ushort v{PH+1}, v{T[5]}, s[{sX}:{sX+3}], 0 offen offset:128 nt", "x")
    a(f"s_lshl_b32 s{sTmp}, s{sH}, 9")
    srd(sWQ, 42, sTmp, 0)
    a(f"s_sub_u32 s{sWQ+2}, {448*8192}, s{sTmp}")
    def qbulk():
        c("bulk L2 prefetch of the two heads' wq columns, 4 rows x 1 KiB (one DRAM row group) per wave (values unused)")
        a(f"s_and_b32 s96, s{sI}, 31", f"s_add_u32 s96, s96, {QS}", "s_lshr_b32 s97, s96, 2", "s_lshl_b32 s97, s97, 4", "s_and_b32 s98, s96, 3", "s_add_u32 s97, s97, s98")
        a(f"s_mul_i32 s98, s{sW}, 112", "s_add_u32 s97, s97, s98", "s_lshl_b32 s97, s97, 13", "s_cmp_ge_u32 s96, 28", "s_cselect_b32 s97, 0x10000000, s97")
        a(f"s_and_b32 s96, s{sH}, 1", "s_lshl_b32 s96, s96, 9", f"v_lshrrev_b32 v{T[6]}, 3, v{vL}", f"v_and_b32 v{T[5]}, 7, v{vL}")
        a(f"v_lshlrev_b32 v{T[5]}, 7, v{T[5]}", f"v_lshl_add_u32 v{T[6]}, v{T[6]}, 15, v{T[5]}")
        a(f"s_sub_u32 s{sWO}, s{sWQ}, s96", f"s_subb_u32 s{sWO+1}, s{sWQ+1}, 0", f"s_add_u32 s{sWO+2}, s{sWQ+2}, s96", f"s_mov_b32 s{sWO+3}, 0x20000", "s_mov_b32 exec_hi, 0")
        g.vm(f"buffer_load_dword v70, v{T[6]}, s[{sWO}:{sWO+3}], s97 offen", "pf")
        a("s_mov_b32 exec_hi, -1")
    def bulk():
        c("bulk L2 prefetch of the wo / w2 / w1 lines used by the 32 workgroups of this group, one unit of whole DRAM rows per wave (values unused)")
        a(f"s_and_b32 s96, s{sI}, 31", "s_lshl_b32 s96, s96, 2", f"s_add_u32 s96, s96, s{sW}", f"s_lshr_b32 s97, s{sI}, 5", f"s_mov_b32 s{sW2+3}, 0x20000")
        a("s_cmp_ge_u32 s96, 96", "s_cbranch_scc1 L_bw1", "s_cmp_ge_u32 s96, 64", "s_cbranch_scc1 L_bw2")
        c("wo: 14 blocks of 32 KiB x 4 lines")
        a(f"s_mov_b32 s{sW2}, s44", f"s_and_b32 s{sW2+1}, s45, 0xffff", f"s_mul_i32 s98, s97, {14*32768}", f"s_add_u32 s{sW2+2}, s98, {14*32768 if BPF & 1 else 0}", "s_lshl_b32 s96, s96, 9", "s_add_u32 s98, s98, s96")
        a(f"v_lshrrev_b32 v{T[5]}, 2, v{vL}", f"v_and_b32 v{T[6]}, 3, v{vL}", f"v_lshlrev_b32 v{T[5]}, 15, v{T[5]}", "s_branch L_bgo", "L_bw2:")
        c("w2: 7 blocks x 8 lines")
        a(f"s_mov_b32 s{sW2}, s52", f"s_and_b32 s{sW2+1}, s53, 0xffff", f"s_mul_i32 s98, s97, {7*32768}", f"s_add_u32 s{sW2+2}, s98, {7*32768 if BPF & 2 else 0}", f"s_min_u32 s{sW2+2}, s{sW2+2}, {1792*896}")
        a("s_sub_u32 s96, s96, 64", "s_lshl_b32 s96, s96, 10", "s_add_u32 s98, s98, s96")
        a(f"v_lshrrev_b32 v{T[5]}, 3, v{vL}", f"v_and_b32 v{T[6]}, 7, v{vL}", f"v_lshlrev_b32 v{T[5]}, 15, v{T[5]}", "s_branch L_bgo", "L_bw1:")
        c("w1: 16 rows x 4 lines")
        a(f"s_mov_b32 s{sW2}, s48", f"s_and_b32 s{sW2+1}, s49, 0xffff", "s_cmp_eq_u32 s97, 7", f"s_cselect_b32 s{sW2+2}, 0, {448*3584 if BPF & 4 else 0}")
        a("s_sub_u32 s96, s96, 96", f"s_mul_i32 s98, s96, {16*3584}", "s_lshl_b32 s97, s97, 9", "s_add_u32 s98, s98, s97")
        a(f"v_lshrrev_b32 v{T[5]}, 2, v{vL}", f"v_and_b32 v{T[6]}, 3, v{vL}", f"v_mul_u32_u24 v{T[5]}, 3584, v{T[5]}", "L_bgo:")
        a(f"v_lshl_add_u32 v{T[5]}, v{T[6]}, 7, v{T[5]}")
        g.vm(f"buffer_load_dword v71, v{T[5]}, s[{sW2}:{sW2+3}], s98 offen{BPOL}", "pf")
        if HPF:
            c("the hand-off lines come on die in the same burst: 4 lines of X, 4 of F, 1 header line per wave (values unused)")
            srd(sWS, 60, None, 0x200000)
            a(f"s_lshl_b32 s96, s{sI}, 2", f"s_add_u32 s96, s96, s{sW}", "s_lshl_b32 s97, s96, 9", "s_lshl_b32 s96, s96, 5")
            a(f"v_and_b32 v{T[5]}, 3, v{vL}", f"v_lshlrev_b32 v{T[5]}, 7, v{T[5]}", f"v_add_u32 v{T[5]}, s97, v{T[5]}", f"v_bfe_u32 v{T[6]}, v{vL}, 2, 1", f"v_mul_u32_u24 v{T[6]}, {hex(FOFF - XOFF)}, v{T[6]}")
            a(f"s_add_u32 s96, s96, {HOFF}", f"s_mov_b32 s97, {XOFF}", f"v_add3_u32 v{T[5]}, v{T[5]}, v{T[6]}, s97", f"v_writelane_b32 v{T[5]}, s96, 8", "s_mov_b64 exec, 0x1ff")
            g.vm(f"buffer_load_dword v70, v{T[5]}, s[{sWS}:{sWS+3}], 0 offen{' sc1' if HPF == 2 else ''}", "pf")
            a("s_mov_b64 exec, -1")
    def qload(j):
        dst = WQR + 8*(j % DQ)
        a(f"s_mov_b32 s{sTmp}, {(16*(j >> 2) + (j & 3))*8192 if QROW else j*32768}")
        g.vm(f"buffer_load_dwordx4 v[{dst}:{dst+3}], v{T[3]}, s[{sWQ}:{sWQ+3}], s{sTmp} offen{QPOL}", f"q{j}a")
        g.vm(f"buffer_load_dwordx4 v[{dst+4}:{dst+7}], v{T[3]}, s[{sWQ}:{sWQ+3}], s{sTmp} offen offset:256{QPOL}", f"q{j}b")
    def kstage_upto(n):
        while iss[0] < n: hissue()
    def quota(j): return min(NS, K0 + math.ceil((j+1)*(NS-K0)/28))
    if QPF and QAT < 0: qbulk()
    for j in range(DQ):
        qload(j); kstage_upto(quota(j))
        if QPF and QAT == j: qbulk()
        if BPF and BAT == j: bulk()
        if j == 1:
            srd(sV, 40, sTmp2, 1 << 20)
            a(f"s_lshl_b32 s{sTmp}, s{sB}, 7", f"s_load_dword s{sR}, s[60:61], s{sTmp}")
    c("one-hot masks of the MFMA A operand: row i keeps element i&7 of its 8-element group")
    a(f"s_mov_b32 s{sHI}, 0xffff0000", f"s_mov_b32 s{sTM}, 0xffffff00", f"s_mov_b32 s{sC}, {hex(f2u(math.log2(math.e)/16))}")
    a(f"v_and_b32 v{T[6]}, 1, v{vL}", f"v_lshlrev_b32 v{T[6]}, 4, v{T[6]}", f"v_mov_b32 v{T[2]}, 0xffff", f"v_lshlrev_b32 v{T[2]}, v{T[6]}, v{T[2]}", f"v_bfe_u32 v{T[6]}, v{vL}, 1, 2")
    for t in range(4): a(f"v_cmp_eq_u32 vcc, {t}, v{T[6]}", "s_nop 1", f"v_cndmask_b32 v{MK+t}, 0, v{T[2]}, vcc")

    def allred(op, regs, tmp):
        for rot in (8, 4, 2, 1):
            a(f"s_nop {2-len(regs)}")
            for r in regs: a(f"{op}_dpp v{r}, v{r}, v{r} row_ror:{rot} row_mask:0xf bank_mask:0xf")
        for sw in ("v_permlane16_swap_b32", "v_permlane32_swap_b32"):
            for r, t in zip(regs, tmp): a(f"v_mov_b32 v{t}, v{r}")
            a("s_nop 1")
            for r, t in zip(regs, tmp): a(f"{sw} v{t}, v{r}")
            a("s_nop 1")
            for r, t in zip(regs, tmp): a(f"{op} v{r}, v{r}, v{t}")
    def bfr(r): a(f"v_cvt_pk_bf16_f32 v{r}, v{r}, v{r}", f"v_and_b32 v{r}, s{sHI}, v{r}")
    def unpack(dst, src, n):
        for k in range(n): a(f"v_lshlrev_b32 v{dst+2*k}, 16, v{src+k}", f"v_and_b32 v{dst+2*k+1}, s{sHI}, v{src+k}")
    def abuild(dst, src, lane, src2=None):
        for t in range(4): a(f"v_and_b32_dpp v{dst+t}, v{src}, v{MK+t} row_newbcast:{lane} row_mask:0xf bank_mask:{'0xf' if src2 is None else '0x3'}")
        if src2 is not None:
            for t in range(4): a(f"v_and_b32_dpp v{dst+t}, v{src2}, v{MK+t} row_newbcast:{lane} row_mask:0xf bank_mask:0xc")
    def mfma(d, A, B, zero=False): a(f"v_mfma_f32_16x16x32_bf16 v[{d}:{d+3}], v[{A}:{A+3}], v[{B}:{B+3}], {'0' if zero else f'v[{d}:{d+3}]'}")

    c("---- LN(x[b]) with the reference's bf16 rounding points; variance around a pivot element")
    g.wait("x")
    mu, rs, t0, t1 = ACC+8, ACC+9, ACC+10, ACC+11
    unpack(ACC, X8, 4)
    a(f"v_lshlrev_b32 v{PH}, 16, v{PH}", f"v_lshlrev_b32 v{PH+1}, 16, v{PH+1}")
    a(f"v_readlane_b32 s{sTmp}, v{ACC}, 0", f"v_mov_b32 v{mu}, 0", f"v_mov_b32 v{rs}, 0", "s_mov_b32 exec_hi, 0x00ffffff")
    for k in range(8): a(f"v_subrev_f32 v{t0}, s{sTmp}, v{ACC+k}", f"v_add_f32 v{mu}, v{mu}, v{t0}", f"v_fmac_f32 v{rs}, v{t0}, v{t0}")
    a("s_mov_b32 exec_hi, -1")
    allred("v_add_f32", [mu, rs], [t0, t1])
    inv448, eps = hex(f2u(1.0/448)), hex(f2u(1e-5))
    a(f"v_mul_f32 v{mu}, {inv448}, v{mu}", f"v_mul_f32 v{rs}, {inv448}, v{rs}")
    a(f"v_fma_f32 v{rs}, -v{mu}, v{mu}, v{rs}", f"v_add_f32 v{mu}, s{sTmp}, v{mu}", f"v_max_f32 v{rs}, 0, v{rs}")
    bfr(mu); bfr(rs); a(f"v_add_f32 v{rs}, {eps}, v{rs}"); bfr(rs)
    a(f"v_sqrt_f32 v{rs}, v{rs}", "s_nop 0"); bfr(rs); a(f"v_rcp_f32 v{rs}, v{rs}", "s_nop 0")
    for r in (PH, PH+1):
        a(f"v_sub_f32 v{r}, v{r}, v{mu}"); bfr(r); a(f"v_mul_f32 v{r}, v{r}, v{rs}", f"v_cvt_pk_bf16_f32 v{r}, v{r}, v{r}")
    a("s_nop 1")
    c("---- q partial of this wave's 112 rows of wq")
    for j in range(28):
        A = AB + 4*(j & 1); dst = WQR + 8*(j % DQ)
        abuild(A, PH + (j >> 4), j & 15); a("s_nop 0")
        g.wait(f"q{j}a"); mfma(D0, A, dst, j == 0)
        g.wait(f"q{j}b"); mfma(D1, A, dst+4, j == 0)
        if j + DQ < 28: qload(j+DQ); kstage_upto(quota(j+DQ))
        if BPF and BAT == j + DQ: bulk()
    kstage_upto(NS + DH)
    c("---- sum the four partials through LDS, round q to bf16")
    a(f"v_and_b32 v{T[0]}, 15, v{vL}", f"v_lshlrev_b32 v{T[0]}, 5, v{T[0]}", f"v_and_b32 v{T[1]}, 16, v{vL}", f"v_add_u32 v{T[1]}, v{T[0]}, v{T[1]}")
    a(f"s_lshl_b32 s{sTmp}, s{sW}, 10", f"v_add_u32 v{T[1]}, s{sTmp}, v{T[1]}", "s_nop 2")
    a(f"ds_write_b128 v{T[1]}, v[{D0}:{D0+3}]", f"ds_write_b128 v{T[1]}, v[{D1}:{D1+3}] offset:512", "s_waitcnt lgkmcnt(0)", "s_barrier")
    busy = {hdst(u)[1] for u in range(2*NST, iss[0])}
    QG = [r for r in list(range(WQR, 256, 4)) + list(range(RG, RG+64, 4)) if r not in busy][:16]
    assert len(QG) == 16
    for k in range(16): a(f"ds_read_b128 v[{QG[k]}:{QG[k]+3}], v{T[0]} offset:{((k >> 1) & 3)*1024 + (k >> 3)*512 + (k & 1)*16}")
    a(f"s_mul_i32 s{sTmp}, s{sH}, {256*896}"); srd(sWO, 44, sTmp, 256*896)
    a(f"s_lshl_b32 s{sTmp}, s{sF}, 7"); srd(sW1, 48, sTmp, 0); a(f"s_sub_u32 s{sW1+2}, {448*3584}, s{sTmp}")
    a(f"s_mul_i32 s{sTmp}, s{sF}, {64*896}"); srd(sW2, 52, sTmp, 64*896)
    c("workgroups with j >= 28 own no MLP slice: empty descriptors")
    a(f"s_cmp_ge_u32 s{sJ}, 28", f"s_cselect_b32 s{sW1+2}, 0, s{sW1+2}", f"s_cselect_b32 s{sW2+2}, 0, s{sW2+2}")
    if not HPF: srd(sWS, 60, None, 0x200000)
    for hf in range(2):
        a(f"s_waitcnt lgkmcnt({8*(1-hf)})")
        q_ = lambda w, e: QG[(hf*4 + w)*2 + (e >> 2)] + (e & 3)
        pa = lambda x, y: f"v_pk_add_f32 v[{x}:{x+1}], v[{x}:{x+1}], v[{y}:{y+1}]"
        for e in range(0, 8, 2): a(pa(q_(0,e), q_(1,e)), pa(q_(2,e), q_(3,e)))
        for e in range(0, 8, 2): a(pa(q_(0,e), q_(2,e)))
        for e in range(4): a(f"v_cvt_pk_bf16_f32 v{Q+hf*4+e}, v{q_(0,2*e)}, v{q_(0,2*e)+1}")
    a(f"s_add_u32 s{sTag32}, s{sR}, 1")
    c("weight addresses: wo/w2 (2g + (c>>3))*896 + (16w + (c&7))*16 (+128 for the second column pass, out of range for wave 3); w1 (112w + 2g + (c>>3))*3584 + (c&7)*16")
    a(f"v_lshrrev_b32 v{T[0]}, 4, v{vL}", f"v_bfe_u32 v{T[1]}, v{vL}, 3, 1", f"v_lshl_add_u32 v{T[0]}, v{T[0]}, 1, v{T[1]}")
    a(f"v_and_b32 v{T[1]}, 7, v{vL}", f"s_lshl_b32 s{sTmp}, s{sW}, 4", f"v_add_u32 v{T[4]}, s{sTmp}, v{T[1]}", f"v_lshlrev_b32 v{T[4]}, 4, v{T[4]}")
    a(f"s_movk_i32 s{sTmp}, 896", f"v_mad_u32_u24 v{T[2]}, v{T[0]}, s{sTmp}, v{T[4]}")
    a(f"s_cmp_eq_u32 s{sW}, 3", f"s_cselect_b32 s{sTmp}, 0x10000000, 0", f"s_add_u32 s{sTmp}, s{sTmp}, 128", f"v_add_u32 v{T[4]}, s{sTmp}, v{T[2]}")
    a(f"s_mul_i32 s{sTmp}, s{sW}, 112", f"v_add_u32 v{T[0]}, s{sTmp}, v{T[0]}", f"v_lshlrev_b32 v{T[1]}, 4, v{T[1]}", f"s_movk_i32 s{sTmp}, 3584", f"v_mad_u32_u24 v{T[3]}, v{T[0]}, s{sTmp}, v{T[1]}")

    if BPF and BAT < 0: bulk()
    c("---- K pass")
    lanemap = [None]
    def kreduce(n):
        regs = [(ACC+j, [j]*16) for j in range(16)]
        a("s_nop 2")
        def lvl(regs, ctrl, m0, m1, sel):
            out = []
            for (r0, l0), (r1, l1) in zip(regs[0::2], regs[1::2]):
                a(f"v_add_f32_dpp v{r0}, v{r0}, v{r0} {ctrl} row_mask:0xf bank_mask:{m0}")
                out.append((r0, [l0[i] if sel(i) == 0 else l1[i] for i in range(16)]))
            for (r0, l0), (r1, l1) in zip(regs[0::2], regs[1::2]):
                a(f"v_add_f32_dpp v{r0}, v{r1}, v{r1} {ctrl} row_mask:0xf bank_mask:{m1}")
            return out
        regs = lvl(regs, "row_mirror", "0x3", "0xc", lambda i: i >> 3)
        tick()
        regs = lvl(regs, "row_half_mirror", "0x5", "0xa", lambda i: (i >> 2) & 1)
        for qp in ("[1,0,3,2]", "[2,3,0,1]"):
            for r, _ in regs: a(f"v_add_f32_dpp v{r}, v{r}, v{r} quad_perm:{qp} row_mask:0xf bank_mask:0xf")
        a("s_mov_b32 vcc_lo, 0xaaaaaaaa", "s_mov_b32 vcc_hi, 0xaaaaaaaa")
        a(f"v_cndmask_b32 v{regs[0][0]}, v{regs[0][0]}, v{regs[1][0]}, vcc", f"v_cndmask_b32 v{regs[2][0]}, v{regs[2][0]}, v{regs[3][0]}, vcc")
        a("s_mov_b32 vcc_lo, 0xcccccccc", "s_mov_b32 vcc_hi, 0xcccccccc", f"v_cndmask_b32 v{PH+n}, v{regs[0][0]}, v{regs[2][0]}, vcc")
        lanemap[0] = [regs[i & 3][1][i] for i in range(16)]
    wl = []
    def vneed(r): return max([-1] + [u for u in range(2*NST, NS) if hdst(u)[1] == r])
    def smov(v): return f"s_movk_i32 s{sTmp}, {v}" if v < 32768 else f"s_mov_b32 s{sTmp}, {v}"
    for jj in range(7):
        for L in range(2):
            r = W1R + 8*jj + 4*L
            wl.append((smov(3584*(16*jj + 8*L)), f"buffer_load_dwordx4 v[{r}:{r+3}], v{T[3]}, s[{sW1}:{sW1+3}], s{sTmp} offen{WPOL}", vneed(r)))
    for nj, rf, base, sr in ((4, "v", W2R, sW2), (16, "a", 0, sWO)):
        for jj in range(nj):
            for L in range(2):
                for ps in range(2):
                    r = base + (jj*2+ps)*8 + 4*L
                    need = vneed(r) if rf == "v" else (r//4 if r//4 < 2*NST else -1)
                    wl.append((smov(896*(16*jj + 8*L)), f"buffer_load_dwordx4 {rf}[{r}:{r+3}], v{T[2+2*ps]}, s[{sr}:{sr+3}], s{sTmp} offen{WPOL}", need))
    if WOF: wl = wl[30:] + wl[:30]
    def kcons(u):
        acc = ACC + (u >> 1) % 16; hf = u & 1
        g.wait(f"u{u}", nop=False)
        r, d = hdst(u)
        if r == "a":
            for e in range(4): a(f"v_accvgpr_read_b32 v{D0+4*hf+e}, a{d+e}")
            d = D0 + 4*hf
        for e in range(4): a(f"v_dot2_f32_bf16 v{acc}, v{d+e}, v{Q+4*hf+e}, {'0' if e == 0 and hf == 0 else f'v{acc}'}")
        if u % 32 == 31: kreduce(u // 32)
    st = dict(con=0, wc=0.0, n=0)
    def tick():
        u = iss[0]; depth = DH if u < 256 else DV
        if not (u - 16 < st["con"] or u - 16 < NS): return False
        g.wait(f"u{u-depth}", nop=False)
        hissue(); st["n"] += 1
        if st["n"] > WST: st["wc"] += 1.0/WEV
        if wl and st["wc"] >= 1:
            k = next((k for k, w in enumerate(wl) if st["con"] > w[2]), None)
            if k is not None:
                s0, ld, _ = wl.pop(k); a(s0); g.vm(ld, "w"); st["wc"] -= 1
        return True
    def run(cons, end):
        while st["con"] < end:
            depth = DH if iss[0] < 256 else DV
            can = tick() if iss[0] - st["con"] <= depth or st["con"] < NS + 16 else False
            n = 0
            while st["con"] < end and n < RCU and iss[0] - st["con"] > depth:
                u = st["con"]; st["con"] += 1; cons(u); n += 1
            assert can or n
    run(kcons, 256)
    inv = [lanemap[0].index(j) for j in range(16)]
    c("---- softmax numerators of this wave's 512 keys: scores rounded to bf16 as in the reference, true max, p = hi + lo in bf16")
    MC, LS = ACC, ACC+1
    for n in range(8): bfr(PH+n)
    a(f"v_max3_f32 v{MC}, v{PH}, v{PH+1}, v{PH+2}", f"v_max3_f32 v{MC}, v{MC}, v{PH+3}, v{PH+4}", f"v_max3_f32 v{MC}, v{MC}, v{PH+5}, v{PH+6}", f"v_max_f32 v{MC}, v{MC}, v{PH+7}")
    allred("v_max_f32", [MC], [T[0]]); tick()
    a(f"v_mul_f32 v{MC}, s{sC}, v{MC}")
    for n in range(8): a(f"v_fma_f32 v{PH+n}, v{PH+n}, s{sC}, -v{MC}")
    for n in range(8): a(f"v_exp_f32 v{PH+n}, v{PH+n}")
    a(f"v_add_f32 v{LS}, v{PH}, v{PH+1}")
    for n in range(2, 8): a(f"v_add_f32 v{LS}, v{LS}, v{PH+n}")
    for n in range(8):
        a(f"v_cvt_pk_bf16_f32 v{T[0]}, v{PH+n}, v{PH+n}", f"v_and_b32 v{T[1]}, s{sHI}, v{T[0]}", f"v_sub_f32 v{T[1]}, v{PH+n}, v{T[1]}")
        a(f"v_cvt_pk_bf16_f32 v{PL+n}, v{T[1]}, v{T[1]}", f"v_mov_b32 v{PH+n}, v{T[0]}")
    tick(); allred("v_add_f32", [LS], [T[0]])
    OPo, MLo, HBo, STo, APo = 0, 5120, 5248, 7296, 7424
    TAGV, F0, F2, MW, LW, HD = ACC+5, ACC, ACC+12, ACC+2, ACC+3, ACC+6
    FR = (F0, F0+1, F2, F2+1)
    a(f"s_lshl_b32 s{sTmp}, s{sW}, 3", f"v_mov_b32 v{T[0]}, s{sTmp}", f"ds_write_b64 v{T[0]}, v[{MC}:{MC+1}] offset:{MLo}")
    a(f"s_and_b32 s{sTmp}, s{sTag32}, 0xff", f"v_mov_b32 v{TAGV}, s{sTmp}")
    for e in range(8): a(f"v_mov_b32 v{D0+e}, 0")
    TQ = list(range(Q, Q+8))
    def xch_publish():
        c("---- workgroup (max, sum) -> header for the other key half")
        ML = TQ[0]; tick()
        a(f"v_mov_b32 v{HD}, 0", "s_waitcnt lgkmcnt(0)", "s_barrier")
        a(f"ds_read_b128 v[{ML}:{ML+3}], v{HD} offset:{MLo}", f"ds_read_b128 v[{ML+4}:{ML+7}], v{HD} offset:{MLo+16}", "s_waitcnt lgkmcnt(0)")
        a(f"v_max3_f32 v{MW}, v{ML}, v{ML+2}, v{ML+4}", f"v_max_f32 v{MW}, v{MW}, v{ML+6}", f"v_and_b32 v{MW}, s{sTM}, v{MW}")
        for w in range(4): a(f"v_sub_f32 v{FR[w]}, v{ML+2*w}, v{MW}")
        for w in range(4): a(f"v_exp_f32 v{FR[w]}, v{FR[w]}")
        a(f"v_mul_f32 v{LW}, v{FR[0]}, v{ML+1}")
        for w in range(1, 4): a(f"v_fmac_f32 v{LW}, v{FR[w]}, v{ML+2*w+1}")
        a(f"v_and_b32 v{LW}, s{sTM}, v{LW}", f"s_cmp_lg_u32 s{sW}, 0", "s_cbranch_scc1 L_nohdr")
        a(f"v_or_b32 v{TQ[0]}, v{MW}, v{TAGV}", f"v_or_b32 v{TQ[1]}, v{LW}, v{TAGV}", f"v_mov_b32 v{TQ[2]}, s{sTag32}", f"v_mov_b32 v{TQ[3]}, s{sTag32}")
        a(f"s_lshl_b32 s{sTmp}, s{sI}, 7", f"s_add_u32 s{sTmp}, s{sTmp}, {HOFF}", "s_mov_b64 exec, 1")
        a(f"buffer_store_dwordx4 v[{TQ[0]}:{TQ[3]}], v{HD}, s[{sWS}:{sWS+3}], s{sTmp} offen sc1", "s_mov_b64 exec, -1", "L_nohdr:")
    def xch_load(track=True):
        a(f"s_xor_b32 s{sTmp}, s{sI}, 1", f"s_lshl_b32 s{sTmp}, s{sTmp}, 7", f"s_add_u32 s{sTmp}, s{sTmp}, {HOFF}", f"v_mov_b32 v{TQ[0]}, 0")
        x = f"buffer_load_dwordx4 v[{HD}:{HD+3}], v{TQ[0]}, s[{sWS}:{sWS+3}], s{sTmp} offen sc1"
        g.vm(x, "hd") if track else a(x)
    def xch_finish():
        c("---- per-wave factors exp2(max_w - max) / sum over both key halves")
        g.wait("hd", nop=False)
        a(f"s_mov_b32 s{sSpin}, 0", "L_xchk:")
        a(f"v_xor_b32 v{TQ[1]}, v{HD}, v{TAGV}", f"v_bitop3_b32 v{TQ[1]}, v{TQ[1]}, v{HD+1}, v{TAGV} bitop3:0xf6", f"v_and_b32 v{TQ[1]}, 0xff, v{TQ[1]}")
        a(f"v_xor_b32 v{TQ[2]}, s{sTag32}, v{HD+2}", f"v_xor_b32 v{TQ[3]}, s{sTag32}, v{HD+3}", f"v_or3_b32 v{TQ[1]}, v{TQ[1]}, v{TQ[2]}, v{TQ[3]}", f"v_cmp_ne_u32 vcc, 0, v{TQ[1]}", "s_cbranch_vccz L_xok")
        a(f"s_add_u32 s{sSpin}, s{sSpin}, 1", f"s_cmp_ge_u32 s{sSpin}, 0x40000", "s_cbranch_scc1 L_xok")
        xch_load(False)
        a("s_waitcnt vmcnt(0)", "s_branch L_xchk", "L_xok:")
        a(f"v_and_b32 v{HD}, s{sTM}, v{HD}", f"v_and_b32 v{HD+1}, s{sTM}, v{HD+1}", f"v_max_f32 v{TQ[1]}, v{HD}, v{MW}")
        a(f"v_sub_f32 v{HD}, v{HD}, v{TQ[1]}", f"v_sub_f32 v{MW}, v{MW}, v{TQ[1]}", f"v_exp_f32 v{HD}, v{HD}", f"v_exp_f32 v{MW}, v{MW}", "s_nop 0")
        a(f"v_mul_f32 v{HD}, v{HD}, v{HD+1}", f"v_mul_f32 v{LW}, v{MW}, v{LW}", f"v_add_f32 v{LW}, v{LW}, v{HD}", f"v_rcp_f32 v{LW}, v{LW}", "s_nop 0", f"v_mul_f32 v{MW}, v{MW}, v{LW}")
        for r in FR: a(f"v_mul_f32 v{r}, v{r}, v{MW}")
        tick()
        c("workgroup classes that tend to finish late switch to one more load in flight a few blocks early (speed only)")
        tbl = sum(x << (4*k) for k, x in enumerate(XT))
        a(f"s_and_b32 s{sTmp}, s2, 7", f"s_lshl_b32 s{sTmp}, s{sTmp}, 2", f"s_lshr_b32 s{sTmp}, {hex(tbl)}, s{sTmp}", f"s_and_b32 s{sTmp}, s{sTmp}, 7", f"s_sub_u32 s{sEnd1}, 7, s{sTmp}")
    c("---- V pass: rows 0-7 of the tile take p_hi, rows 8-15 p_lo")
    vb = [sB0]
    def vissue(uu):
        d = RG + 4*(uu % 16)
        if not uu & 1: a(f"s_xor_b32 s{sOff}, s{vb[0] if uu < 32 else sB1}, {hex(perm_t((uu >> 1) & 15))}")
        a(f"buffer_load_dwordx4 v[{d}:{d+3}], v{vKV}, s[{sV}:{sV+3}], s{sOff} offen{' offset:256' if uu & 1 else ''} nt")
    def vstep(j, last, depth):
        A = AB + 4*(j & 1)
        abuild(A, PH+NP, inv[j], PL+NP)
        for hf in range(2):
            u = 2*j + hf
            a(f"s_waitcnt vmcnt({min(depth-1, 31-u) if last else depth-1})")
            if not (last and u + depth >= 32): vissue(u + depth)
            elif hf == 0: a("s_nop 0")
            mfma(D0 + 4*hf, A, RG + 4*(u % 16))
    def vcons(uu):
        u = uu - 256; j = (u >> 1) & 15; A = AB + 4*(j & 1)
        if not u & 1: abuild(A, PH + (u >> 5), inv[j], PL + (u >> 5)); a("s_nop 0"); g.wait(f"u{uu}")
        else: g.wait(f"u{uu}", nop=False)
        mfma(D0 + 4*(u & 1), A, RG + 4*(uu % 16))
    for x, fn in zip(XP, (xch_publish, xch_load, xch_finish)): run(vcons, 256 + x); fn()
    run(vcons, 256 + 32*NP)
    assert not wl, len(wl)
    assert iss[0] == 256 + 32*NP + DV and g.q[-DV:] == [f"u{256+32*NP+k}" for k in range(DV)]
    def vloop(lab, depth, end):
        a(f"s_cmp_ge_u32 s{sCnt}, {end}", f"s_cbranch_scc1 {lab}_skip", f"{lab}:")
        for j in range(16): vstep(j, False, depth)
        for k in range(NP, 7): a(f"v_mov_b32 v{PH+k}, v{PH+k+1}", f"v_mov_b32 v{PL+k}, v{PL+k+1}")
        a(f"s_mov_b32 s{sB0}, s{sB1}", f"s_add_u32 s{sTmp2}, s{sCnt}, 2", f"s_mov_b32 s{sB1}, s{sRot}")
        for k in range(3): a(f"s_bitcmp1_b32 s{sTmp2}, {k}", f"s_cselect_b32 s{sTmp}, {1 << PW[8+k]}, 0", f"s_xor_b32 s{sB1}, s{sB1}, s{sTmp}")
        a(f"s_add_u32 s{sCnt}, s{sCnt}, 1", f"s_cmp_lt_u32 s{sCnt}, {end}", f"s_cbranch_scc1 {lab}", f"{lab}_skip:")
    a(f"s_mov_b32 s{sCnt}, {NP}", f"s_xor_b32 s{sB0}, s{sRot}, {hex(perm_t(16*NP))}", f"s_xor_b32 s{sB1}, s{sRot}, {hex(perm_t(16*NP+16))}")
    vloop("L_vloop", DV, f"s{sEnd1}")
    for uu in range(DV, D2): vissue(uu)
    vloop("L_vloop2", D2, 7)
    a(f"s_mov_b32 s{sRot}, s{sB0}"); vb[0] = sRot
    for uu in range(D2, DE): vissue(uu)

    c("---- epilogue addresses, biases and x slice, in the shadow of the last V block")
    aOW, aOR, aPUB, aF0, SM, SIX, aG, XS = ACC+2, ACC+3, ACC+4, 71, ACC+6, ACC+10, ACC+11, ACC+14
    B1V, B2V, aHA, aAW, aAR, aF = Q, Q+2, Q+4, Q+5, Q+6, Q+7
    aG7, TG7, aBP, aBF, TGF, aF1 = PH+4, PH+6, PL+4, PL+5, PL+6, 70
    tg, tc, t2, t3, aT = T[0], T[1], T[2], T[3], T[4]
    a(f"v_lshrrev_b32 v{tg}, 4, v{vL}", f"v_and_b32 v{tc}, 15, v{vL}")
    a(f"v_bfe_u32 v{t2}, v{vL}, 1, 2", f"v_and_b32 v{t3}, 1, v{vL}", f"v_lshl_add_u32 v{t2}, v{t2}, 1, v{t3}", f"v_bfe_u32 v{t3}, v{vL}, 4, 1", f"v_lshl_add_u32 v{t2}, v{t2}, 1, v{t3}")
    a(f"v_mul_u32_u24 v{aOW}, 80, v{t2}", f"v_lshrrev_b32 v{t2}, 5, v{vL}", f"v_bfe_u32 v{t3}, v{vL}, 3, 1", f"v_lshl_add_u32 v{t2}, v{t2}, 1, v{t3}", f"v_lshl_add_u32 v{aOW}, v{t2}, 3, v{aOW}")
    a(f"s_mul_i32 s{sTmp}, s{sW}, 1280", f"v_add_u32 v{aOW}, s{sTmp}, v{aOW}")
    a(f"v_and_b32 v{t2}, 3, v{vL}", f"v_lshl_add_u32 v{t2}, v{t2}, 2, v{tg}", f"v_mul_u32_u24 v{aOR}, 80, v{t2}", f"v_lshl_add_u32 v{aOR}, v{t3}, 5, v{aOR}")
    a(f"v_lshlrev_b32 v{t2}, 2, v{t2}", f"v_add_u32 v{aT}, v{t2}, v{t3}", f"s_mul_i32 s{sTmp}, s{sW}, 112", f"v_add_u32 v{aHA}, s{sTmp}, v{aT}", f"v_lshlrev_b32 v{aHA}, 2, v{aHA}", f"v_add_u32 v{aHA}, {HBo}, v{aHA}")
    a(f"v_lshrrev_b32 v{aAR}, 3, v{aT}", f"v_lshl_add_u32 v{aAR}, v{aT}, 1, v{aAR}", f"v_lshlrev_b32 v{aAR}, 4, v{aAR}", f"s_lshl_b32 s{sTmp}, s{sF}, 6", f"v_add_u32 v{aT}, s{sTmp}, v{aT}", f"v_lshlrev_b32 v{aT}, 1, v{aT}")
    a(f"global_load_ushort v{B1V}, v{aT}, s[50:51] nt", f"global_load_ushort v{B1V+1}, v{aT}, s[50:51] offset:4 nt")
    a(f"v_and_b32 v{t2}, 7, v{vL}", f"v_bfe_u32 v{aAW}, v{vL}, 4, 1", f"v_lshl_add_u32 v{aAW}, v{t2}, 1, v{aAW}", f"v_lshlrev_b32 v{aAW}, 7, v{aAW}", f"v_lshl_add_u32 v{aAW}, v{t3}, 2, v{aAW}", f"v_lshl_add_u32 v{aAW}, v{t2}, 4, v{aAW}")
    a(f"s_lshl_b32 s{sTmp}, s{sW}, 3", f"v_add_u32 v{aAW}, s{sTmp}, v{aAW}")
    a(f"v_lshrrev_b32 v{t2}, 5, v{vL}", f"v_lshlrev_b32 v{aPUB}, 8, v{t2}", f"v_lshl_add_u32 v{aPUB}, v{tc}, 5, v{aPUB}", f"v_and_b32 v{t3}, 16, v{vL}", f"v_add_u32 v{aPUB}, v{aPUB}, v{t3}")
    a(f"s_lshl_b32 s{sTmp}, s{sW}, 9", f"v_add_u32 v{aPUB}, s{sTmp}, v{aPUB}", f"s_cmp_eq_u32 s{sW}, 3", f"s_cselect_b32 s{sTmp2}, 15, 31")
    a(f"v_and_b32 v{t3}, 31, v{vL}", f"v_min_u32 v{t3}, s{sTmp2}, v{t3}", f"v_lshlrev_b32 v{aG}, 4, v{t3}", f"v_lshl_add_u32 v{aG}, v{t2}, 15, v{aG}", f"v_add_u32 v{aG}, s{sTmp}, v{aG}")
    c("this workgroup's own partials are taken from registers: their lanes read out of range (zero) and expect tag 0")
    a(f"v_lshrrev_b32 v{T[5]}, 4, v{t3}", f"v_and_b32 v{T[6]}, 1, v{t3}", f"v_lshl_add_u32 v{T[5]}, v{T[5]}, 1, v{T[6]}", f"v_bfe_u32 v{T[6]}, v{t3}, 1, 3", f"v_lshl_add_u32 v{T[5]}, v{T[5]}, 4, v{T[6]}", f"v_lshlrev_b32 v{aBP}, 2, v{T[5]}")
    a(f"s_cmp_lt_u32 s{sJ}, 16", "s_cselect_b32 vcc_lo, -1, 0", "s_cselect_b32 vcc_hi, 0, -1", f"v_mov_b32 v{T[5]}, 0x10000000")
    a(f"v_cndmask_b32 v{T[5]}, v{aG}, v{T[5]}, vcc", f"v_cndmask_b32 v{T[6]}, v{TAGV}, 0, vcc", f"s_bitcmp1_b32 s{sJ}, 0", "s_cselect_b64 vcc, -1, 0")
    a(f"v_cndmask_b32 v{aG7}, v{T[5]}, v{aG}, vcc", f"v_cndmask_b32 v{aG7+1}, v{aG}, v{T[5]}, vcc", f"v_cndmask_b32 v{TG7}, v{T[6]}, v{TAGV}, vcc", f"v_cndmask_b32 v{TG7+1}, v{TAGV}, v{T[6]}, vcc")
    a(f"s_lshl_b32 s{sTmp}, s{sW}, 8", f"v_lshlrev_b32 v{t3}, 3, v{t3}", f"v_add_u32 v{aF}, s{sTmp}, v{t3}")
    a(f"buffer_load_dwordx2 v[{XS}:{XS+1}], v{aF}, s[{sX}:{sX+3}], 0 offen nt", f"v_lshlrev_b32 v{aF}, 1, v{aF}")
    a(f"v_and_b32 v{t3}, 3, v{vL}", f"v_lshlrev_b32 v{t3}, 3, v{t3}", f"s_lshl_b32 s{sTmp}, s{sF}, 5", f"v_add_u32 v{t3}, s{sTmp}, v{t3}")
    a(f"global_load_dwordx2 v[{B2V}:{B2V+1}], v{t3}, s[54:55] nt")
    c("sparse-MFMA one-hot masks and index")
    a(f"v_bfe_u32 v{t2}, v{vL}, 2, 1", f"v_cmp_eq_u32 vcc, 0, v{t2}", f"v_mov_b32 v{t3}, 0xffff", f"v_and_b32 v{SIX}, 3, v{vL}")
    a(f"v_cndmask_b32 v{SM}, 0, v{t3}, vcc", f"v_cndmask_b32 v{SM+1}, v{t3}, 0, vcc", f"v_mul_u32_u24 v{SIX}, 0x5555, v{SIX}", f"v_lshlrev_b32 v{SM+2}, 16, v{SM}", f"v_lshlrev_b32 v{SM+3}, 16, v{SM+1}")
    a(f"s_cmp_eq_u32 s{sW}, 3", f"s_cselect_b32 s{sPX}, 0, 0x00ff00ff", f"s_cselect_b32 s{sEX}, 0xffff, -1", f"s_mov_b32 s{sIN}, {hex(f2u(1.0/128))}", f"s_cselect_b32 s{sIN}, {hex(f2u(1.0/64))}, s{sIN}")
    a(f"s_bfe_u32 s{sRU}, s{sJ}, 0x30001", f"s_lshl_b32 s{sGB}, s{sB}, 16", f"s_lshl_b32 s{sPB}, s{sJ}, 11", f"s_add_u32 s{sPB}, s{sPB}, s{sGB}")
    a(f"s_add_u32 s{sPF}, s{sPB}, {FOFF}", f"s_add_u32 s{sPB}, s{sPB}, {XOFF}", f"s_lshl_b32 s{sFB}, s{sF}, 6", f"s_add_u32 s{sFB}, s{sFB}, s{sGB}", f"s_add_u32 s{sFB}, s{sFB}, {FOFF}", f"s_add_u32 s{sGB}, s{sGB}, {XOFF}")
    for k in range(8): a(f"s_add_u32 s{sU+k}, s{sRU}, {k+1}", f"s_and_b32 s{sU+k}, s{sU+k}, 7", f"s_lshl_b32 s{sU+k}, s{sU+k}, 12", f"s_add_u32 s{sU+k}, s{sU+k}, s{sGB}")
    a(f"v_lshrrev_b32 v{T[0]}, 2, v{vL}", f"v_and_b32 v{T[1]}, 3, v{vL}", f"v_lshlrev_b32 v{T[1]}, 4, v{T[1]}", f"v_add_u32 v{T[2]}, 16, v{T[0]}", f"v_min_u32 v{T[2]}, 27, v{T[2]}")
    a(f"v_lshl_add_u32 v{aF0}, v{T[0]}, 11, v{T[1]}", f"v_lshl_add_u32 v{aF1}, v{T[2]}, 11, v{T[1]}", f"v_mov_b32 v{T[3]}, 0x10000000")
    a(f"v_cmp_eq_u32 vcc, s{sJ}, v{T[0]}", f"v_and_b32 v{T[5]}, 1, v{vL}", f"v_bfe_u32 v{T[6]}, v{vL}, 1, 1")
    a(f"v_cndmask_b32 v{aF0}, v{aF0}, v{T[3]}, vcc", f"v_cndmask_b32 v{TGF}, v{TAGV}, 0, vcc")
    a(f"v_cmp_eq_u32 vcc, s{sJ}, v{T[2]}", f"v_lshl_add_u32 v{T[5]}, v{T[5]}, 4, v{T[6]}", f"s_and_b32 s{sTmp}, s{sJ}, 3")
    a(f"v_cndmask_b32 v{aF1}, v{aF1}, v{T[3]}, vcc", f"v_cndmask_b32 v{TGF+1}, v{TAGV}, 0, vcc")
    a(f"s_lshl_b32 s{sTmp}, s{sTmp}, 1", f"s_bfe_u32 s{sTmp2}, s{sJ}, 0x10002", f"s_lshl_b32 s{sTmp2}, s{sTmp2}, 5", f"s_add_u32 s{sTmp}, s{sTmp}, s{sTmp2}")
    sFW = sR
    a(f"v_add_u32 v{aBF}, s{sTmp}, v{T[5]}", f"v_lshlrev_b32 v{aBF}, 2, v{aBF}", f"s_lshr_b32 s{sFW}, s{sJ}, 3")
    if XPF:
        c("pull this wave's own hand-off lines on die ahead of time (values unused)")
        a("s_mov_b32 exec_lo, 0x00110011", f"s_and_b32 exec_hi, s{sPX}, 0x00110011")
        a(f"buffer_load_dword v{T[7]}, v{aPUB}, s[{sWS}:{sWS+3}], s{sPB} offen sc1", f"buffer_load_dword v{T[7]}, v{aPUB}, s[{sWS}:{sWS+3}], s{sPF} offen sc1", "s_mov_b64 exec, -1")
    for j in range(16): vstep(j, True, DE)

    c("---- o partial (hi + lo rows) -> LDS -> normalised sum of the four waves, bf16")
    a("s_nop 7")
    for t in range(4): a(f"v_permlane32_swap_b32 v{D0+t}, v{D1+t}")
    for t, r in enumerate((0, 2, 1, 3)): a(f"v_add_f32 v{AB+r}, v{D0+t}, v{D1+t}")
    a(f"ds_write_b64 v{aOW}, v[{AB}:{AB+1}] offset:{OPo}", f"ds_write_b64 v{aOW}, v[{AB+2}:{AB+3}] offset:{OPo+32}", "s_waitcnt lgkmcnt(0)", "s_barrier")
    for w in range(4):
        for hh in range(2): a(f"ds_read_b128 v[{RG+8*w+4*hh}:{RG+8*w+4*hh+3}], v{aOR} offset:{OPo + w*1280 + 16*hh}")
    for e in range(8): a(f"v_mov_b32 v{D0+e}, 0")
    for w in range(4):
        a(f"s_waitcnt lgkmcnt({6-2*w})")
        Fp = (F0, F0, F2, F2)[w]; o = w & 1
        for k in range(4):
            r = RG + 2*k
            if w == 0: a(f"v_pk_mul_f32 v[{r}:{r+1}], v[{r}:{r+1}], v[{Fp}:{Fp+1}] op_sel_hi:[1,0]")
            else: a(f"v_pk_fma_f32 v[{r}:{r+1}], v[{r+8*w}:{r+8*w+1}], v[{Fp}:{Fp+1}], v[{r}:{r+1}] op_sel:[0,{o},0] op_sel_hi:[1,{o},1]")
    S = PL
    for u in range(4): a(f"v_cvt_pk_bf16_f32 v{S+u}, v{RG+2*u}, v{RG+2*u+1}")
    def sbuild(dst, n, ts):
        for t in ts: a(f"v_and_b32_dpp v{dst+t}, v{S + (n >> 2)}, v{SM+t} quad_perm:[{n&3},{n&3},{n&3},{n&3}] row_mask:0xf bank_mask:0xf")
    def smf(d, A, B, br): a(f"v_smfmac_f32_16x16x64_bf16 v[{d}:{d+3}], v[{A}:{A+3}], {br}[{B}:{B+7}], v{SIX}")
    BUF = [AB, AB+4, PH]
    def proj(nj, breg, br):
        sbuild(BUF[0], 0, range(4)); sbuild(BUF[1], 1, range(4))
        for jj in range(nj):
            A, nA = BUF[jj % 3], BUF[(jj+2) % 3]
            smf(D0, A, breg + (jj*2)*8, br)
            if jj + 2 < nj: sbuild(nA, jj+2, (0, 1))
            smf(D1, A, breg + (jj*2+1)*8, br)
            if jj + 2 < nj: sbuild(nA, jj+2, (2, 3))
    def publish(so):
        a("s_nop 7")
        for t in range(4): a(f"v_permlane32_swap_b32 v{D0+t}, v{D1+t}")
        for t in range(4): a(f"v_add_f32_dpp v{D0+t}, v{D1+t}, v{D0+t} row_ror:8 row_mask:0xf bank_mask:0xf")
        for t in range(4): a(f"v_bfi_b32 v{AB+t}, s{sTM}, v{D0+t}, v{TAGV}")
        a("s_mov_b32 exec_lo, 0x00ff00ff", f"s_mov_b32 exec_hi, s{sPX}")
        a(f"buffer_store_dwordx4 v[{AB}:{AB+3}], v{aPUB}, s[{sWS}:{sWS+3}], s{so} offen sc1", "s_mov_b64 exec, -1")
    c("---- y partial = o @ wo[head]: wave w owns columns 128w..128w+127, 16 rows x 64 columns per sparse MFMA")
    proj(16, 0, "a")
    publish(sPB)
    a(f"s_cmp_ge_u32 s{sJ}, 28", "s_cbranch_scc1 L_end")
    c("---- hand-off X: sum the 32 partials of this batch (8 slots of 4 producers); lanes 32-63 start from x")
    GA, CK, R2 = D0, T[1], RG+32
    def gissue(r, so, own=False):
        a(f"buffer_load_dwordx4 v[{r}:{r+3}], v{aG7 if own else aG}, s[{sWS}:{sWS+3}], s{so} offen sc1")
        a(f"buffer_load_dwordx4 v[{r+4}:{r+7}], v{aG7+1 if own else aG}, s[{sWS}:{sWS+3}], s{so} offen offset:2048 sc1")
    def tagchk(r, ta=TAGV, tb=TAGV):
        a(f"v_xor_b32 v{CK}, v{r}, v{ta}", f"v_xor_b32 v{T[2]}, v{r+4}, v{tb}")
        a(f"v_bitop3_b32 v{CK}, v{CK}, v{r+2}, v{ta} bitop3:0xf6", f"v_bitop3_b32 v{T[2]}, v{T[2]}, v{r+6}, v{tb} bitop3:0xf6")
        a(f"v_bitop3_b32 v{CK}, v{CK}, v{T[2]}, s{sTM} bitop3:0x54", f"v_cmp_ne_u32 vcc, 0, v{CK}")
    pa = lambda x, y, z=None: f"v_pk_add_f32 v[{x}:{x+1}], v[{x if z is None else z}:{(x if z is None else z)+1}], v[{y}:{y+1}]"
    def gacc(r, L, k):
        tagchk(r, TG7, TG7+1) if k == 7 else tagchk(r)
        a(pa(r, r+4), pa(r+2, r+6), f"s_cbranch_vccnz {L}", pa(GA, r), pa(GA+2, r+2))
        if k is not None: a(f"s_bitset0_b32 s{sDone}, {k}")
    for e in range(4): a(f"ds_bpermute_b32 v{GA+e}, v{aBP}, v{AB+e}")
    for k in range(8): gissue(RG+8*k, sU+k, k == 7)
    a(f"s_movk_i32 s{sDone}, 0xff", f"s_mov_b32 s{sSpin}, 0", "s_waitcnt lgkmcnt(0)", "s_mov_b32 exec_lo, 0")
    unpack(GA, XS, 2)
    a("s_mov_b32 exec_lo, -1")
    for k in range(8):
        a(f"s_waitcnt vmcnt({14-2*k})"); gacc(RG+8*k, f"L_g0_{k}", k); a(f"L_g0_{k}:")
    a(f"s_cmp_eq_u32 s{sDone}, 0", "s_cbranch_scc1 L_gdone")
    for k in range(8):
        a(f"s_bitcmp1_b32 s{sDone}, {k}", f"s_cbranch_scc0 L_g1_{k}"); gissue(RG+8*k, sU+k, k == 7); a(f"L_g1_{k}:")
    a("L_gtop:", "s_waitcnt vmcnt(0)")
    for k in range(8):
        a(f"s_bitcmp1_b32 s{sDone}, {k}", f"s_cbranch_scc0 L_gb_{k}"); gacc(RG+8*k, f"L_gf_{k}", k); a(f"L_gb_{k}:")
    a(f"s_bcnt1_i32_b32 s{sTmp}, s{sDone}", "s_cbranch_scc0 L_gdone")
    a(f"s_bitcmp1_b32 s{sDone}, 7", "s_cbranch_scc1 L_gmany", f"s_cmp_eq_u32 s{sTmp}, 1", "s_cbranch_scc1 L_gone", "L_gmany:")
    a(f"s_add_u32 s{sSpin}, s{sSpin}, 1", f"s_cmp_lt_u32 s{sSpin}, 0x40000", "s_cbranch_scc1 L_gtop", "s_branch L_gdone")
    for k in range(8):
        a(f"L_gf_{k}:"); gissue(RG+8*k, sU+k, k == 7); a(f"s_branch L_gb_{k}")
    a("L_gone:")
    a(f"s_ff1_i32_b32 s{sTmp2}, s{sDone}", f"s_add_u32 s{sTmp2}, s{sTmp2}, s{sRU}", f"s_add_u32 s{sTmp2}, s{sTmp2}, 1", f"s_and_b32 s{sTmp2}, s{sTmp2}, 7", f"s_lshl_b32 s{sTmp2}, s{sTmp2}, 12", f"s_add_u32 s{sTmp2}, s{sTmp2}, s{sGB}")
    a("L_gone1:"); gissue(RG, sTmp2)
    a(f"s_add_u32 s{sSpin}, s{sSpin}, 1", f"s_cmp_ge_u32 s{sSpin}, 0x40000", "s_cbranch_scc1 L_gdone", "s_waitcnt vmcnt(0)")
    gacc(RG, "L_gone1", None)
    a("L_gdone:")
    c("---- h slice (fp32) and its mean / centred sum of squares (pivot = first element)")
    S1, S2, H4, XF = R2+10, R2+11, R2+4, R2
    for e in range(4): a(f"v_mov_b32 v{GA+4+e}, v{GA+e}")
    a(f"v_mov_b32 v{S1}, 0", f"v_mov_b32 v{S2}, 0")
    for e in range(4): a(f"v_permlane32_swap_b32 v{GA+4+e}, v{GA+e}")
    a(pa(GA, GA+4), pa(GA+2, GA+6))
    a(f"s_lshl_b32 s{sCnt}, s{sW}, 3", f"v_readlane_b32 s{sTmp2}, v{GA}, 0", f"ds_write_b128 v{aF}, v[{GA}:{GA+3}] offset:{HBo}", f"s_mov_b32 exec_lo, s{sEX}")
    neg = "op_sel_hi:[1,0] neg_lo:[0,1] neg_hi:[0,1]"
    a(f"v_pk_add_f32 v[{H4}:{H4+1}], v[{GA}:{GA+1}], s[{sTmp2}:{sTmp2+1}] {neg}", f"v_pk_add_f32 v[{H4+2}:{H4+3}], v[{GA+2}:{GA+3}], s[{sTmp2}:{sTmp2+1}] {neg}")
    a(f"v_pk_mul_f32 v[{XF}:{XF+1}], v[{H4}:{H4+1}], v[{H4}:{H4+1}]", pa(XF+2, H4+2, H4), f"v_pk_fma_f32 v[{XF}:{XF+1}], v[{H4+2}:{H4+3}], v[{H4+2}:{H4+3}], v[{XF}:{XF+1}]")
    a(f"v_add_f32 v{S1}, v{XF+2}, v{XF+3}", f"v_add_f32 v{S2}, v{XF}, v{XF+1}", "s_mov_b32 exec_lo, -1")
    fill = [f"v_mov_b32 v{T[0]}, s{sCnt}", f"v_mov_b32 v{T[1]}, 0", f"v_mov_b32 v{D0}, 0", f"v_mov_b32 v{D0+1}, 0", f"v_mov_b32 v{D0+2}, 0"]
    for ctl in ("row_ror:8 row_mask:0xf", "row_ror:4 row_mask:0xf", "row_ror:2 row_mask:0xf", "row_ror:1 row_mask:0xf", "row_bcast:15 row_mask:0x2"):
        a(fill.pop(0))
        for r in (S1, S2): a(f"v_add_f32_dpp v{r}, v{r}, v{r} {ctl} bank_mask:0xf")
    a(f"v_mul_f32 v{XF}, s{sIN}, v{S1}", f"v_mov_b32 v{D0+3}, 0", f"v_fma_f32 v{S2}, -v{XF}, v{S1}, v{S2}", f"v_add_f32 v{S1}, s{sTmp2}, v{XF}")
    a("s_mov_b32 exec_lo, 0x10000", "s_mov_b32 exec_hi, 0", f"ds_write_b64 v{T[0]}, v[{S1}:{S1+1}] offset:{STo}", "s_mov_b64 exec, -1", "s_waitcnt lgkmcnt(0)", "s_barrier")
    c("---- combine the four slices (128,128,128,64 columns) into mean and variance of h")
    ST, E, MU, RS = R2, R2+16, T[4], T[6]
    a(f"ds_read_b128 v[{ST}:{ST+3}], v{T[1]} offset:{STo}", f"ds_read_b128 v[{ST+4}:{ST+7}], v{T[1]} offset:{STo+16}")
    a(f"ds_read2_b32 v[{E}:{E+1}], v{aHA} offset0:0 offset1:2", f"ds_read2_b32 v[{E+2}:{E+3}], v{aHA} offset0:64 offset1:66", "s_waitcnt lgkmcnt(2)")
    a(f"v_add_f32 v{MU}, v{ST}, v{ST+2}", f"v_fma_f32 v{T[5]}, v{ST+6}, 0.5, v{ST+4}", f"v_add_f32 v{RS}, v{ST+1}, v{ST+3}", f"v_add_f32 v{MU}, v{MU}, v{T[5]}", f"v_add_f32 v{T[7]}, v{ST+5}, v{ST+7}")
    a(f"v_mul_f32 v{MU}, {hex(f2u(2.0/7))}, v{MU}", f"v_add_f32 v{RS}, v{RS}, v{T[7]}")
    for w in range(4): a(f"v_sub_f32 v{ST+2*w}, v{ST+2*w}, v{MU}")
    a(f"v_mul_f32 v{T[5]}, v{ST+6}, v{ST+6}", f"v_mul_f32 v{T[7]}, v{ST}, v{ST}", f"v_mul_f32 v{RS}, {inv448}, v{RS}")
    a(f"v_fmac_f32 v{T[7]}, v{ST+2}, v{ST+2}", f"v_fmac_f32 v{RS}, {hex(f2u(1.0/7))}, v{T[5]}", f"v_fmac_f32 v{T[7]}, v{ST+4}, v{ST+4}", "s_waitcnt lgkmcnt(0)")
    a(f"v_pk_add_f32 v[{E}:{E+1}], v[{E}:{E+1}], v[{MU}:{MU+1}] {neg}", f"v_fmac_f32 v{RS}, {hex(f2u(2.0/7))}, v{T[7]}")
    c("both layer norms: z1 = (h-mu)/sqrt(var+eps) has mean 0 and variance var/(var+eps), hence")
    c("LN(z1) = z1/sqrt(var/(var+eps) + eps) = (h-mu)/sqrt(var + eps*(var+eps))")
    a(f"v_pk_add_f32 v[{E+2}:{E+3}], v[{E+2}:{E+3}], v[{MU}:{MU+1}] {neg}", f"v_add_f32 v{T[5]}, {eps}, v{RS}", f"v_fmac_f32 v{RS}, {eps}, v{T[5]}", f"v_rsq_f32 v{RS}, v{RS}", "s_nop 0")
    a(f"v_pk_mul_f32 v[{E}:{E+1}], v[{E}:{E+1}], v[{RS}:{RS+1}] op_sel_hi:[1,0]", f"v_pk_mul_f32 v[{E+2}:{E+3}], v[{E+2}:{E+3}], v[{RS}:{RS+1}] op_sel_hi:[1,0]")
    a(f"v_cvt_pk_bf16_f32 v{S}, v{E}, v{E+1}", f"v_cvt_pk_bf16_f32 v{S+1}, v{E+2}, v{E+3}", "s_nop 0")
    c("---- w1 slice: wave w takes rows 112w..112w+111, partials summed through LDS")
    sbuild(AB, 0, range(4))
    for jj in range(7):
        nA = AB + 4*((jj+1) & 1)
        if jj < 6: sbuild(nA, jj+1, (0, 1))
        else: a("s_nop 1")
        smf(D0, AB + 4*(jj & 1), W1R + 8*jj, "v")
        if jj < 6: sbuild(nA, jj+1, (2, 3))
    a(f"v_lshlrev_b32 v{B1V}, 16, v{B1V}", f"v_lshlrev_b32 v{B1V+1}, 16, v{B1V+1}", "s_mov_b32 exec_lo, 0x00ff00ff", "s_mov_b32 exec_hi, 0xff00ff00", "s_nop 3")
    for t in range(4): a(f"ds_write_b32 v{aAW}, v{D0+t} offset:{APo + 32*t}")
    a("s_mov_b64 exec, -1", "s_waitcnt lgkmcnt(0)", "s_barrier")
    for k in range(4): a(f"ds_read_b128 v[{R2+4*k}:{R2+4*k+3}], v{aAR} offset:{APo + 64*(k >> 1) + 16*(k & 1)}")
    for e in range(8): a(f"v_mov_b32 v{D0+e}, 0")
    G2, U2 = T[4], T[6]
    for x in range(2):
        r = R2 + 8*x
        a(f"s_waitcnt lgkmcnt({2-2*x})", pa(r, r+2), pa(r+4, r+6), pa(r, r+4), f"v_add_f32 v{G2+x}, v{r}, v{r+1}")
    c("GELU(tanh form): 0.5 a (1 + tanh u) = a / (1 + exp(-2u)), u = sqrt(2/pi) (a + 0.044715 a^3)")
    beta, kap = 0.7978845608028654, 0.044715
    a(pa(G2, B1V), f"v_pk_mul_f32 v[{U2}:{U2+1}], v[{G2}:{G2+1}], v[{G2}:{G2+1}]")
    for x in range(2): a(f"v_mul_f32 v{U2+x}, {hex(f2u(kap))}, v{U2+x}")
    a(f"v_pk_fma_f32 v[{U2}:{U2+1}], v[{U2}:{U2+1}], v[{G2}:{G2+1}], v[{G2}:{G2+1}]")
    for x in range(2): a(f"v_mul_f32 v{U2+x}, {hex(f2u(-2*beta*math.log2(math.e)))}, v{U2+x}")
    for x in range(2): a(f"v_exp_f32 v{U2+x}, v{U2+x}")
    a("s_nop 0")
    for x in range(2): a(f"v_add_f32 v{U2+x}, 1.0, v{U2+x}")
    for x in range(2): a(f"v_rcp_f32 v{U2+x}, v{U2+x}")
    a("s_nop 0", f"v_pk_mul_f32 v[{G2}:{G2+1}], v[{G2}:{G2+1}], v[{U2}:{U2+1}]", f"v_cvt_pk_bf16_f32 v{S}, v{G2}, v{G2+1}", "s_nop 1")
    c("---- w2 slice, hand-off F")
    proj(4, W2R, "v")
    publish(sPF)
    c("---- the wave that holds columns 16j..16j+15 sums the 28 partials, adds b2 and h, stores the output")
    a(f"s_cmp_lg_u32 s{sW}, s{sFW}", "s_cbranch_scc1 L_end")
    FA, FB, FH, FO, aO = R2, R2+8, R2+12, R2+20, T[4]
    def fissue():
        a(f"buffer_load_dwordx4 v[{FA}:{FA+3}], v{aF0}, s[{sWS}:{sWS+3}], s{sFB} offen sc1", f"buffer_load_dwordx4 v[{FA+4}:{FA+7}], v{aF1}, s[{sWS}:{sWS+3}], s{sFB} offen sc1")
    fissue()
    for e in range(4): a(f"ds_bpermute_b32 v{FO+e}, v{aBF}, v{AB+e}")
    a(f"s_lshl_b32 s{sTmp}, s{sJ}, 5", f"v_and_b32 v{aO}, 3, v{vL}", f"v_lshlrev_b32 v{aO}, 3, v{aO}", f"v_add_lshl_u32 v{T[5]}, s{sTmp}, v{aO}, 1", f"ds_read_b128 v[{FH}:{FH+3}], v{T[5]} offset:{HBo}")
    unpack(FB, B2V, 2)
    a(f"s_mul_i32 s{sCnt}, s{sB}, 896", f"s_add_u32 s{sCnt}, s{sCnt}, s{sTmp}")
    srd(sX, 56, None, 3584*2)
    a(f"s_mov_b32 s{sSpin}, 0", "s_waitcnt lgkmcnt(0)", pa(FO, FB), pa(FO+2, FB+2), pa(FB, FH, FO), pa(FB+2, FH+2, FO+2), "s_branch L_fchk", "L_fpoll:")
    fissue()
    a(f"s_add_u32 s{sSpin}, s{sSpin}, 1", f"s_cmp_ge_u32 s{sSpin}, 0x40000", "s_cbranch_scc1 L_fdone", "L_fchk:", "s_waitcnt vmcnt(0)")
    tagchk(FA, TGF, TGF+1)
    a("s_mov_b32 exec_hi, 0xffff", pa(FA, FA+4), pa(FA+2, FA+6), "s_mov_b32 exec_hi, -1", "s_cbranch_vccnz L_fpoll", "L_fdone:")
    for rot in (4, 8):
        for e in range(4): a(f"v_add_f32_dpp v{FA+e}, v{FA+e}, v{FA+e} row_ror:{rot} row_mask:0xf bank_mask:0xf")
    for sw in ("v_permlane16_swap_b32", "v_permlane32_swap_b32"):
        for e in range(4): a(f"v_mov_b32 v{FA+4+e}, v{FA+e}")
        for e in range(4): a(f"{sw} v{FA+4+e}, v{FA+e}")
        a(pa(FA, FA+4), pa(FA+2, FA+6))
    a(pa(FA, FB), pa(FA+2, FB+2), f"v_cvt_pk_bf16_f32 v{FA}, v{FA}, v{FA+1}", f"v_cvt_pk_bf16_f32 v{FA+1}, v{FA+2}, v{FA+3}", "s_mov_b64 exec, 15")
    a(f"buffer_store_dwordx2 v[{FA}:{FA+1}], v{aO}, s[{sX}:{sX+3}], s{sCnt} offen")
    c("every reader of this batch's epoch word has published by now: advance it")
    a(f"s_cmp_lg_u32 s{sJ}, 0", "s_cbranch_scc1 L_end")
    a(f"s_lshl_b32 s{sTmp}, s{sB}, 7", f"v_mov_b32 v{T[5]}, s{sTag32}", "s_mov_b64 exec, 1", f"buffer_store_dword v{T[5]}, v{aO}, s[{sWS}:{sWS+3}], s{sTmp} offen")
    a("L_end:", "s_endpgm")
    a('.section .rodata,"a"', ".p2align 6", f".amdhsa_kernel {NAME}_kernel")
    for x in ("next_free_vgpr 512", "next_free_sgpr 102", "accum_offset 256", "group_segment_fixed_size 0", "kernarg_size 104", "user_sgpr_count 2",
              "user_sgpr_kernarg_segment_ptr 1", "system_sgpr_workgroup_id_x 1", "float_denorm_mode_32 3"): g.o.append("  .amdhsa_" + x)
    a(".end_amdhsa_kernel")
    return "\n".join(g.o) + "\n"

if __name__ == "__main__":
    kw = dict(x.split("=") for x in sys.argv[2:])
    open(sys.argv[1], "w").write(gen(**{k: eval(v) for k, v in kw.items()}))
```

```python
import sys, struct, math
NAME = "sequential_preLN__mha_block_cached__mixer_channel_mlp__decode"
def f2u(x): return struct.unpack("<I", struct.pack("<f", x))[0]

class G:
    def __init__(s): s.o = []; s.q = []; s.lab = 0
    def __call__(s, *xs): s.o.extend("    " + x if not x.endswith(":") and not x.startswith((".", ";")) else x for x in xs)
    def vm(s, text, tag): s(text); s.q.append(tag)
    def wait(s, tag, nop=True):
        if tag not in s.q:
            if nop: s("s_nop 0")
            return
        idx = max(i for i, t in enumerate(s.q) if t == tag)
        n = len(s.q) - 1 - idx; assert n <= 63
        s(f"s_waitcnt vmcnt({n})"); s.q = s.q[idx+1:]
    def label(s, p): s.lab += 1; return f"{p}_{s.lab}"

HEADER = """\
;
"""

def gen(NST=32, NX=24, DQ=3, K0=4, DH=6, DV=6, DE=12, CPF=0, stamps=0, HPF=0, XPF=1, RCU=7, WEV=2.3, NP=3, BPF=7, QPF=0, WOF=0, WST=0, BAT=0, QAT=0, QS=0, QROW=1, QPOL='', WPOL='', BPOL='', XP=(16, 56, 84),
        PW=(10, 13, 12, 16, 11, 9, 15, 18, 14, 17, 19), PHS=((14, 4), (17, 1), (19, 132))):
    g = G(); a = g
    def c(t): a("; " + t)
    def perm_t(t): return sum(((t >> k) & 1) << PW[4+k] for k in range(7))
    ROFF, HOFF, XOFF, FOFF = 0x0, 0x8000, 0x10000, 0x100000
    vL, vKV = 0, 1
    T = list(range(2, 10))
    MK, Q, PH, PL, ACC, D0, D1, AB = 10, 14, 22, 30, 38, 54, 58, 62
    X8 = AB
    RG, W1R, W2R, WQR = 72, 136, 192, 136
    sK, sV, sWQ, sWO, sW1, sW2, sX, sWS = 4, 8, 12, 16, 20, 24, 28, 32
    sW, sI, sH, sB, sJ, sF, sOff, sRot, sCnt, sTmp, sTmp2, sR, sTag32, sC, sHI, sTM = range(62, 78)
    sPX, sGB, sU, sRU, sFB, sSpin, sPB, sPF, sDone, sEX, sIN = 78, 79, 80, 88, 89, 90, 91, 92, 93, 94, 95
    sB1, sB0, sEnd1 = 83, 84, 85

    a("; @launch grid=(256,1,1) block=(256,1,1) lds=16384")
    g.o.append(HEADER.rstrip("\n"))
    a('.amdgcn_target "amdgcn-amd-amdhsa--gfx950"', ".text", f".globl {NAME}_kernel", ".p2align 8", f".type {NAME}_kernel,@function", f"{NAME}_kernel:")
    a("s_cmp_ge_u32 s2, 256", "s_cbranch_scc1 L_end")
    if stamps: a("s_memrealtime s[100:101]")
    a("s_load_dwordx16 s[36:51], s[0:1], 0", "s_load_dwordx8 s[52:59], s[0:1], 64", "s_load_dwordx2 s[60:61], s[0:1], 96")
    a(f"v_lshrrev_b32 v{T[0]}, 6, v0", f"v_and_b32 v{vL}, 63, v0", f"v_readfirstlane_b32 s{sW}, v{T[0]}")
    c("i = (wg&7)*32 + (wg>>3): workgroups that share a head's weights tend to share an L2.  h = i>>4, b = (i>>1)&7, j = 2h + (i&1)")
    a(f"s_and_b32 s{sI}, s2, 7", f"s_lshl_b32 s{sI}, s{sI}, 5", f"s_lshr_b32 s{sTmp}, s2, 3", f"s_add_u32 s{sI}, s{sI}, s{sTmp}")
    a(f"s_lshr_b32 s{sH}, s{sI}, 4", f"s_bfe_u32 s{sB}, s{sI}, 0x30001", f"s_and_b32 s{sTmp}, s{sI}, 1")
    a(f"s_lshl_b32 s{sJ}, s{sH}, 1", f"s_add_u32 s{sJ}, s{sJ}, s{sTmp}")
    c("lane l = (g = l>>4, c = l&15) reads 16 B at column c of the row picked by g, the wave and the step")
    a(f"v_lshrrev_b32 v{T[0]}, 4, v{vL}", f"v_and_b32 v{T[1]}, 15, v{vL}", f"v_lshlrev_b32 v{T[2]}, 4, v{T[1]}")
    a(f"v_and_b32 v{T[3]}, 1, v{T[0]}", f"v_lshl_add_u32 v{vKV}, v{T[3]}, {PW[0]}, v{T[2]}", f"v_lshrrev_b32 v{T[3]}, 1, v{T[0]}", f"v_lshl_add_u32 v{vKV}, v{T[3]}, {PW[1]}, v{vKV}")
    a(f"s_and_b32 s{sTmp}, s{sW}, 1", f"s_lshl_b32 s{sTmp}, s{sTmp}, {PW[2]}", f"s_lshr_b32 s{sTmp2}, s{sW}, 1", f"s_lshl_b32 s{sTmp2}, s{sTmp2}, {PW[3]}", f"s_or_b32 s{sTmp}, s{sTmp}, s{sTmp2}")
    a(f"v_add_u32 v{vKV}, s{sTmp}, v{vKV}")
    c("wq rows of step j: 112w + 16(j>>2) + (j&3) + 4g ; x gather for the same rows")
    a(f"s_mul_i32 s{sTmp}, s{sW}, {112*8192}", f"v_lshl_add_u32 v{T[3]}, v{T[0]}, {15 if QROW else 13}, v{T[2]}", f"v_add_u32 v{T[3]}, s{sTmp}, v{T[3]}")
    if QROW: a(f"v_lshrrev_b32 v{T[5]}, 2, v{T[1]}", f"v_lshl_add_u32 v{T[5]}, v{T[5]}, 2, v{T[0]}", f"v_and_b32 v{T[4]}, 3, v{T[1]}", f"v_lshl_add_u32 v{T[5]}, v{T[5]}, 2, v{T[4]}")
    else: a(f"v_lshl_add_u32 v{T[5]}, v{T[1]}, 2, v{T[0]}")
    a(f"v_lshlrev_b32 v{T[4]}, 4, v{vL}", f"s_mul_i32 s{sTmp}, s{sW}, 112", f"v_add_u32 v{T[5]}, s{sTmp}, v{T[5]}", f"v_lshlrev_b32 v{T[5]}, 1, v{T[5]}")
    c("K/V chunk = (32b + j) MiB; the walk through it starts at a workgroup-specific phase")
    a(f"s_lshl_b32 s{sTmp2}, s{sB}, 5", f"s_add_u32 s{sTmp2}, s{sTmp2}, s{sJ}", f"s_lshl_b32 s{sTmp2}, s{sTmp2}, 20", f"s_mov_b32 s{sRot}, 0")
    for k, m in PHS:
        if m & (m-1) == 0: a(f"s_bitcmp1_b32 s{sI}, {m.bit_length()-1}")
        else: a(f"s_and_b32 s{sTmp}, s{sI}, {m}", f"s_bcnt1_i32_b32 s{sTmp}, s{sTmp}", f"s_bitcmp1_b32 s{sTmp}, 0")
        a(f"s_cselect_b32 s{sTmp}, {1 << k}, 0", f"s_xor_b32 s{sRot}, s{sRot}, s{sTmp}")
    a(f"s_mov_b32 s{sK+2}, {1 << 20}", f"s_mov_b32 s{sK+3}, 0x20000", "s_waitcnt lgkmcnt(0)")
    a(f"s_add_u32 s{sK}, s38, s{sTmp2}", f"s_addc_u32 s{sK+1}, s39, 0", f"s_and_b32 s{sK+1}, s{sK+1}, 0xffff")
    iss = [0]
    NS = 2*NST + NX
    def hdst(u):
        if u < 2*NST: return ("a", 4*u)
        if u < NS: return ("v", 256 - 4*(NS - u))
        return ("v", RG + 4*(u % 16))
    def hissue():
        u = iss[0]; iss[0] += 1
        r, d = hdst(u); srdn = sK if u < 256 else sV
        if not u & 1: a(f"s_xor_b32 s{sOff}, s{sRot}, {hex(perm_t((u >> 1) & 127))}")
        g.vm(f"buffer_load_dwordx4 {r}[{d}:{d+3}], v{vKV}, s[{srdn}:{srdn+3}], s{sOff} offen{' offset:256' if u & 1 else ''} nt", f"u{u}")
    for _ in range(K0): hissue()
    def srd(s, lo, off, nrec):
        if off is None: a(f"s_mov_b32 s{s}, s{lo}", f"s_and_b32 s{s+1}, s{lo+1}, 0xffff")
        else: a(f"s_add_u32 s{s}, s{lo}, s{off}", f"s_addc_u32 s{s+1}, s{lo+1}, 0", f"s_and_b32 s{s+1}, s{s+1}, 0xffff")
        a(f"s_mov_b32 s{s+2}, {nrec}", f"s_mov_b32 s{s+3}, 0x20000")
    a(f"s_min_u32 s{sF}, s{sJ}, 27", f"s_mul_i32 s{sTmp}, s{sB}, 896")
    srd(sX, 36, sTmp, 896)
    g.vm(f"buffer_load_dwordx4 v[{X8}:{X8+3}], v{T[4]}, s[{sX}:{sX+3}], 0 offen nt", "x")
    g.vm(f"buffer_load_ushort v{PH}, v{T[5]}, s[{sX}:{sX+3}], 0 offen nt", "x")
    g.vm(f"buffer_load_ushort v{PH+1}, v{T[5]}, s[{sX}:{sX+3}], 0 offen offset:128 nt", "x")
    a(f"s_lshl_b32 s{sTmp}, s{sH}, 9")
    srd(sWQ, 42, sTmp, 0)
    a(f"s_sub_u32 s{sWQ+2}, {448*8192}, s{sTmp}")
    def bulk():
        c("bulk L2 prefetch of the wo / w2 / w1 lines used by the 32 workgroups of this group, one unit of whole DRAM rows per wave (values unused)")
        a(f"s_and_b32 s96, s{sI}, 31", "s_lshl_b32 s96, s96, 2", f"s_add_u32 s96, s96, s{sW}", f"s_lshr_b32 s97, s{sI}, 5", f"s_mov_b32 s{sW2+3}, 0x20000")
        a("s_cmp_ge_u32 s96, 96", "s_cbranch_scc1 L_bw1", "s_cmp_ge_u32 s96, 64", "s_cbranch_scc1 L_bw2")
        c("wo: 14 blocks of 32 KiB x 4 lines")
        a(f"s_mov_b32 s{sW2}, s44", f"s_and_b32 s{sW2+1}, s45, 0xffff", f"s_mul_i32 s98, s97, {14*32768}", f"s_add_u32 s{sW2+2}, s98, {14*32768 if BPF & 1 else 0}", "s_lshl_b32 s96, s96, 9", "s_add_u32 s98, s98, s96")
        a(f"v_lshrrev_b32 v{T[5]}, 2, v{vL}", f"v_and_b32 v{T[6]}, 3, v{vL}", f"v_lshlrev_b32 v{T[5]}, 15, v{T[5]}", "s_branch L_bgo", "L_bw2:")
        c("w2: 7 blocks x 8 lines")
        a(f"s_mov_b32 s{sW2}, s52", f"s_and_b32 s{sW2+1}, s53, 0xffff", f"s_mul_i32 s98, s97, {7*32768}", f"s_add_u32 s{sW2+2}, s98, {7*32768 if BPF & 2 else 0}", f"s_min_u32 s{sW2+2}, s{sW2+2}, {1792*896}")
        a("s_sub_u32 s96, s96, 64", "s_lshl_b32 s96, s96, 10", "s_add_u32 s98, s98, s96")
        a(f"v_lshrrev_b32 v{T[5]}, 3, v{vL}", f"v_and_b32 v{T[6]}, 7, v{vL}", f"v_lshlrev_b32 v{T[5]}, 15, v{T[5]}", "s_branch L_bgo", "L_bw1:")
        c("w1: 16 rows x 4 lines")
        a(f"s_mov_b32 s{sW2}, s48", f"s_and_b32 s{sW2+1}, s49, 0xffff", "s_cmp_eq_u32 s97, 7", f"s_cselect_b32 s{sW2+2}, 0, {448*3584 if BPF & 4 else 0}")
        a("s_sub_u32 s96, s96, 96", f"s_mul_i32 s98, s96, {16*3584}", "s_lshl_b32 s97, s97, 9", "s_add_u32 s98, s98, s97")
        a(f"v_lshrrev_b32 v{T[5]}, 2, v{vL}", f"v_and_b32 v{T[6]}, 3, v{vL}", f"v_mul_u32_u24 v{T[5]}, 3584, v{T[5]}", "L_bgo:")
        a(f"v_lshl_add_u32 v{T[5]}, v{T[6]}, 7, v{T[5]}")
        g.vm(f"buffer_load_dword v71, v{T[5]}, s[{sW2}:{sW2+3}], s98 offen{BPOL}", "pf")
        if CPF:
            c("this kernel's own code: 3 lines per wave")
            a("s_getpc_b64 s[96:97]", "L_pc:", f"s_and_b32 s98, s{sI}, 31", "s_lshl_b32 s98, s98, 2", f"s_add_u32 s98, s98, s{sW}", "s_lshl_b32 s98, s98, 7")
            a(f"v_lshlrev_b32 v{T[5]}, 14, v{vL}", f"v_add_u32 v{T[5]}, s98, v{T[5]}", f"v_min_u32 v{T[5]}, L_end-L_pc, v{T[5]}", "s_mov_b64 exec, 7")
            g.vm(f"global_load_dword v70, v{T[5]}, s[96:97]", "pf")
            a("s_mov_b64 exec, -1")
        if HPF:
            c("the hand-off lines come on die in the same burst: 4 lines of X, 4 of F, 1 header line per wave (values unused)")
            srd(sWS, 60, None, 0x200000)
            a(f"s_lshl_b32 s96, s{sI}, 2", f"s_add_u32 s96, s96, s{sW}", "s_lshl_b32 s97, s96, 9", "s_lshl_b32 s96, s96, 5")
            a(f"v_and_b32 v{T[5]}, 3, v{vL}", f"v_lshlrev_b32 v{T[5]}, 7, v{T[5]}", f"v_add_u32 v{T[5]}, s97, v{T[5]}", f"v_bfe_u32 v{T[6]}, v{vL}, 2, 1", f"v_mul_u32_u24 v{T[6]}, {hex(FOFF - XOFF)}, v{T[6]}")
            a(f"s_add_u32 s96, s96, {HOFF}", f"s_mov_b32 s97, {XOFF}", f"v_add3_u32 v{T[5]}, v{T[5]}, v{T[6]}, s97", f"v_writelane_b32 v{T[5]}, s96, 8", "s_mov_b64 exec, 0x1ff")
            g.vm(f"buffer_load_dword v70, v{T[5]}, s[{sWS}:{sWS+3}], 0 offen{' sc1' if HPF == 2 else ''}", "pf")
            a("s_mov_b64 exec, -1")
    def qload(j):
        dst = WQR + 8*(j % DQ)
        a(f"s_mov_b32 s{sTmp}, {(16*(j >> 2) + (j & 3))*8192 if QROW else j*32768}")
        g.vm(f"buffer_load_dwordx4 v[{dst}:{dst+3}], v{T[3]}, s[{sWQ}:{sWQ+3}], s{sTmp} offen{QPOL}", f"q{j}a")
        g.vm(f"buffer_load_dwordx4 v[{dst+4}:{dst+7}], v{T[3]}, s[{sWQ}:{sWQ+3}], s{sTmp} offen offset:256{QPOL}", f"q{j}b")
    def kstage_upto(n):
        while iss[0] < n: hissue()
    def quota(j): return min(NS, K0 + math.ceil((j+1)*(NS-K0)/28))
    for j in range(DQ):
        qload(j); kstage_upto(quota(j))
        if BPF and BAT == j: bulk()
        if j == 1:
            srd(sV, 40, sTmp2, 1 << 20)
            a(f"s_lshl_b32 s{sTmp}, s{sB}, 7", f"s_load_dword s{sR}, s[60:61], s{sTmp}")
    c("one-hot masks of the MFMA A operand: row i keeps element i&7 of its 8-element group")
    a(f"s_mov_b32 s{sHI}, 0xffff0000", f"s_mov_b32 s{sTM}, 0xffffff00", f"s_mov_b32 s{sC}, {hex(f2u(math.log2(math.e)/16))}")
    a(f"v_and_b32 v{T[6]}, 1, v{vL}", f"v_lshlrev_b32 v{T[6]}, 4, v{T[6]}", f"v_mov_b32 v{T[2]}, 0xffff", f"v_lshlrev_b32 v{T[2]}, v{T[6]}, v{T[2]}", f"v_bfe_u32 v{T[6]}, v{vL}, 1, 2")
    for t in range(4): a(f"v_cmp_eq_u32 vcc, {t}, v{T[6]}", "s_nop 1", f"v_cndmask_b32 v{MK+t}, 0, v{T[2]}, vcc")

    def allred(op, regs, tmp):
        for rot in (8, 4, 2, 1):
            a(f"s_nop {2-len(regs)}")
            for r in regs: a(f"{op}_dpp v{r}, v{r}, v{r} row_ror:{rot} row_mask:0xf bank_mask:0xf")
        for sw in ("v_permlane16_swap_b32", "v_permlane32_swap_b32"):
            for r, t in zip(regs, tmp): a(f"v_mov_b32 v{t}, v{r}")
            a("s_nop 1")
            for r, t in zip(regs, tmp): a(f"{sw} v{t}, v{r}")
            a("s_nop 1")
            for r, t in zip(regs, tmp): a(f"{op} v{r}, v{r}, v{t}")
    def bfr(r): a(f"v_cvt_pk_bf16_f32 v{r}, v{r}, v{r}", f"v_and_b32 v{r}, s{sHI}, v{r}")
    def unpack(dst, src, n):
        for k in range(n): a(f"v_lshlrev_b32 v{dst+2*k}, 16, v{src+k}", f"v_and_b32 v{dst+2*k+1}, s{sHI}, v{src+k}")
    def abuild(dst, src, lane, src2=None):
        for t in range(4): a(f"v_and_b32_dpp v{dst+t}, v{src}, v{MK+t} row_newbcast:{lane} row_mask:0xf bank_mask:{'0xf' if src2 is None else '0x3'}")
        if src2 is not None:
            for t in range(4): a(f"v_and_b32_dpp v{dst+t}, v{src2}, v{MK+t} row_newbcast:{lane} row_mask:0xf bank_mask:0xc")
    def mfma(d, A, B, zero=False): a(f"v_mfma_f32_16x16x32_bf16 v[{d}:{d+3}], v[{A}:{A+3}], v[{B}:{B+3}], {'0' if zero else f'v[{d}:{d+3}]'}")

    c("---- LN(x[b]) with the reference's bf16 rounding points; variance around a pivot element")
    g.wait("x")
    mu, rs, t0, t1 = ACC+8, ACC+9, ACC+10, ACC+11
    unpack(ACC, X8, 4)
    a(f"v_lshlrev_b32 v{PH}, 16, v{PH}", f"v_lshlrev_b32 v{PH+1}, 16, v{PH+1}")
    a(f"v_readlane_b32 s{sTmp}, v{ACC}, 0", f"v_mov_b32 v{mu}, 0", f"v_mov_b32 v{rs}, 0", "s_mov_b32 exec_hi, 0x00ffffff")
    for k in range(8): a(f"v_subrev_f32 v{t0}, s{sTmp}, v{ACC+k}", f"v_add_f32 v{mu}, v{mu}, v{t0}", f"v_fmac_f32 v{rs}, v{t0}, v{t0}")
    a("s_mov_b32 exec_hi, -1")
    allred("v_add_f32", [mu, rs], [t0, t1])
    inv448, eps = hex(f2u(1.0/448)), hex(f2u(1e-5))
    a(f"v_mul_f32 v{mu}, {inv448}, v{mu}", f"v_mul_f32 v{rs}, {inv448}, v{rs}")
    a(f"v_fma_f32 v{rs}, -v{mu}, v{mu}, v{rs}", f"v_add_f32 v{mu}, s{sTmp}, v{mu}", f"v_max_f32 v{rs}, 0, v{rs}")
    bfr(mu); bfr(rs); a(f"v_add_f32 v{rs}, {eps}, v{rs}"); bfr(rs)
    a(f"v_sqrt_f32 v{rs}, v{rs}", "s_nop 0"); bfr(rs); a(f"v_rcp_f32 v{rs}, v{rs}", "s_nop 0")
    for r in (PH, PH+1):
        a(f"v_sub_f32 v{r}, v{r}, v{mu}"); bfr(r); a(f"v_mul_f32 v{r}, v{r}, v{rs}", f"v_cvt_pk_bf16_f32 v{r}, v{r}, v{r}")
    a("s_nop 1")
    c("---- q partial of this wave's 112 rows of wq")
    for j in range(28):
        A = AB + 4*(j & 1); dst = WQR + 8*(j % DQ)
        abuild(A, PH + (j >> 4), j & 15); a("s_nop 0")
        g.wait(f"q{j}a"); mfma(D0, A, dst, j == 0)
        g.wait(f"q{j}b"); mfma(D1, A, dst+4, j == 0)
        if j + DQ < 28: qload(j+DQ); kstage_upto(quota(j+DQ))
        if BPF and BAT == j + DQ: bulk()
    kstage_upto(NS + DH)
    c("---- sum the four partials through LDS, round q to bf16")
    a(f"v_and_b32 v{T[0]}, 15, v{vL}", f"v_lshlrev_b32 v{T[0]}, 5, v{T[0]}", f"v_and_b32 v{T[1]}, 16, v{vL}", f"v_add_u32 v{T[1]}, v{T[0]}, v{T[1]}")
    a(f"s_lshl_b32 s{sTmp}, s{sW}, 10", f"v_add_u32 v{T[1]}, s{sTmp}, v{T[1]}", "s_nop 2")
    a(f"ds_write_b128 v{T[1]}, v[{D0}:{D0+3}]", f"ds_write_b128 v{T[1]}, v[{D1}:{D1+3}] offset:512", "s_waitcnt lgkmcnt(0)", "s_barrier")
    busy = {hdst(u)[1] for u in range(2*NST, iss[0])}
    QG = [r for r in list(range(WQR, 256, 4)) + list(range(RG, RG+64, 4)) if r not in busy][:16]
    assert len(QG) == 16
    for k in range(16): a(f"ds_read_b128 v[{QG[k]}:{QG[k]+3}], v{T[0]} offset:{((k >> 1) & 3)*1024 + (k >> 3)*512 + (k & 1)*16}")
    a(f"s_mul_i32 s{sTmp}, s{sH}, {256*896}"); srd(sWO, 44, sTmp, 256*896)
    a(f"s_lshl_b32 s{sTmp}, s{sF}, 7"); srd(sW1, 48, sTmp, 0); a(f"s_sub_u32 s{sW1+2}, {448*3584}, s{sTmp}")
    a(f"s_mul_i32 s{sTmp}, s{sF}, {64*896}"); srd(sW2, 52, sTmp, 64*896)
    c("workgroups with j >= 28 own no MLP slice: empty descriptors")
    a(f"s_cmp_ge_u32 s{sJ}, 28", f"s_cselect_b32 s{sW1+2}, 0, s{sW1+2}", f"s_cselect_b32 s{sW2+2}, 0, s{sW2+2}")
    if not HPF: srd(sWS, 60, None, 0x200000)
    for hf in range(2):
        a(f"s_waitcnt lgkmcnt({8*(1-hf)})")
        q_ = lambda w, e: QG[(hf*4 + w)*2 + (e >> 2)] + (e & 3)
        pa = lambda x, y: f"v_pk_add_f32 v[{x}:{x+1}], v[{x}:{x+1}], v[{y}:{y+1}]"
        for e in range(0, 8, 2): a(pa(q_(0,e), q_(1,e)), pa(q_(2,e), q_(3,e)))
        for e in range(0, 8, 2): a(pa(q_(0,e), q_(2,e)))
        for e in range(4): a(f"v_cvt_pk_bf16_f32 v{Q+hf*4+e}, v{q_(0,2*e)}, v{q_(0,2*e)+1}")
    a(f"s_add_u32 s{sTag32}, s{sR}, 1")
    c("weight addresses: wo/w2 (2g + (c>>3))*896 + (16w + (c&7))*16 (+128 for the second column pass, out of range for wave 3); w1 (112w + 2g + (c>>3))*3584 + (c&7)*16")
    a(f"v_lshrrev_b32 v{T[0]}, 4, v{vL}", f"v_bfe_u32 v{T[1]}, v{vL}, 3, 1", f"v_lshl_add_u32 v{T[0]}, v{T[0]}, 1, v{T[1]}")
    a(f"v_and_b32 v{T[1]}, 7, v{vL}", f"s_lshl_b32 s{sTmp}, s{sW}, 4", f"v_add_u32 v{T[4]}, s{sTmp}, v{T[1]}", f"v_lshlrev_b32 v{T[4]}, 4, v{T[4]}")
    a(f"s_movk_i32 s{sTmp}, 896", f"v_mad_u32_u24 v{T[2]}, v{T[0]}, s{sTmp}, v{T[4]}")
    a(f"s_cmp_eq_u32 s{sW}, 3", f"s_cselect_b32 s{sTmp}, 0x10000000, 0", f"s_add_u32 s{sTmp}, s{sTmp}, 128", f"v_add_u32 v{T[4]}, s{sTmp}, v{T[2]}")
    a(f"s_mul_i32 s{sTmp}, s{sW}, 112", f"v_add_u32 v{T[0]}, s{sTmp}, v{T[0]}", f"v_lshlrev_b32 v{T[1]}, 4, v{T[1]}", f"s_movk_i32 s{sTmp}, 3584", f"v_mad_u32_u24 v{T[3]}, v{T[0]}, s{sTmp}, v{T[1]}")

    if BPF and BAT < 0: bulk()
    c("---- K pass")
    lanemap = [None]
    def kreduce(n):
        regs = [(ACC+j, [j]*16) for j in range(16)]
        a("s_nop 2")
        def lvl(regs, ctrl, m0, m1, sel):
            out = []
            for (r0, l0), (r1, l1) in zip(regs[0::2], regs[1::2]):
                a(f"v_add_f32_dpp v{r0}, v{r0}, v{r0} {ctrl} row_mask:0xf bank_mask:{m0}")
                out.append((r0, [l0[i] if sel(i) == 0 else l1[i] for i in range(16)]))
            for (r0, l0), (r1, l1) in zip(regs[0::2], regs[1::2]):
                a(f"v_add_f32_dpp v{r0}, v{r1}, v{r1} {ctrl} row_mask:0xf bank_mask:{m1}")
            return out
        regs = lvl(regs, "row_mirror", "0x3", "0xc", lambda i: i >> 3)
        tick()
        regs = lvl(regs, "row_half_mirror", "0x5", "0xa", lambda i: (i >> 2) & 1)
        for qp in ("[1,0,3,2]", "[2,3,0,1]"):
            for r, _ in regs: a(f"v_add_f32_dpp v{r}, v{r}, v{r} quad_perm:{qp} row_mask:0xf bank_mask:0xf")
        a("s_mov_b32 vcc_lo, 0xaaaaaaaa", "s_mov_b32 vcc_hi, 0xaaaaaaaa")
        a(f"v_cndmask_b32 v{regs[0][0]}, v{regs[0][0]}, v{regs[1][0]}, vcc", f"v_cndmask_b32 v{regs[2][0]}, v{regs[2][0]}, v{regs[3][0]}, vcc")
        a("s_mov_b32 vcc_lo, 0xcccccccc", "s_mov_b32 vcc_hi, 0xcccccccc", f"v_cndmask_b32 v{PH+n}, v{regs[0][0]}, v{regs[2][0]}, vcc")
        lanemap[0] = [regs[i & 3][1][i] for i in range(16)]
    wl = []
    def vneed(r): return max([-1] + [u for u in range(2*NST, NS) if hdst(u)[1] == r])
    def smov(v): return f"s_movk_i32 s{sTmp}, {v}" if v < 32768 else f"s_mov_b32 s{sTmp}, {v}"
    for jj in range(7):
        for L in range(2):
            r = W1R + 8*jj + 4*L
            wl.append((smov(3584*(16*jj + 8*L)), f"buffer_load_dwordx4 v[{r}:{r+3}], v{T[3]}, s[{sW1}:{sW1+3}], s{sTmp} offen{WPOL}", vneed(r)))
    for nj, rf, base, sr in ((4, "v", W2R, sW2), (16, "a", 0, sWO)):
        for jj in range(nj):
            for L in range(2):
                for ps in range(2):
                    r = base + (jj*2+ps)*8 + 4*L
                    need = vneed(r) if rf == "v" else (r//4 if r//4 < 2*NST else -1)
                    wl.append((smov(896*(16*jj + 8*L)), f"buffer_load_dwordx4 {rf}[{r}:{r+3}], v{T[2+2*ps]}, s[{sr}:{sr+3}], s{sTmp} offen{WPOL}", need))
    if WOF: wl = wl[30:] + wl[:30]
    def kcons(u):
        acc = ACC + (u >> 1) % 16; hf = u & 1
        g.wait(f"u{u}", nop=False)
        r, d = hdst(u)
        if r == "a":
            for e in range(4): a(f"v_accvgpr_read_b32 v{D0+4*hf+e}, a{d+e}")
            d = D0 + 4*hf
        for e in range(4): a(f"v_dot2_f32_bf16 v{acc}, v{d+e}, v{Q+4*hf+e}, {'0' if e == 0 and hf == 0 else f'v{acc}'}")
        if u % 32 == 31: kreduce(u // 32)
    st = dict(con=0, wc=0.0, n=0)
    def tick():
        u = iss[0]; depth = DH if u < 256 else DV
        if not (u - 16 < st["con"] or u - 16 < NS): return False
        g.wait(f"u{u-depth}", nop=False)
        hissue(); st["n"] += 1
        if st["n"] > WST: st["wc"] += 1.0/WEV
        if wl and st["wc"] >= 1:
            k = next((k for k, w in enumerate(wl) if st["con"] > w[2]), None)
            if k is not None:
                s0, ld, _ = wl.pop(k); a(s0); g.vm(ld, "w"); st["wc"] -= 1
        return True
    def run(cons, end):
        while st["con"] < end:
            depth = DH if iss[0] < 256 else DV
            can = tick() if iss[0] - st["con"] <= depth or st["con"] < NS + 16 else False
            n = 0
            while st["con"] < end and n < RCU and iss[0] - st["con"] > depth:
                u = st["con"]; st["con"] += 1; cons(u); n += 1
            assert can or n
    run(kcons, 256)
    inv = [lanemap[0].index(j) for j in range(16)]
    c("---- softmax numerators of this wave's 512 keys: scores rounded to bf16 as in the reference, true max, p = hi + lo in bf16")
    MC, LS = ACC, ACC+1
    for n in range(8): bfr(PH+n)
    a(f"v_max3_f32 v{MC}, v{PH}, v{PH+1}, v{PH+2}", f"v_max3_f32 v{MC}, v{MC}, v{PH+3}, v{PH+4}", f"v_max3_f32 v{MC}, v{MC}, v{PH+5}, v{PH+6}", f"v_max_f32 v{MC}, v{MC}, v{PH+7}")
    allred("v_max_f32", [MC], [T[0]]); tick()
    for n in range(8): a(f"v_sub_f32 v{PH+n}, v{PH+n}, v{MC}")
    for n in range(8): a(f"v_mul_f32 v{PH+n}, s{sC}, v{PH+n}")
    for n in range(8): a(f"v_exp_f32 v{PH+n}, v{PH+n}")
    a(f"v_add_f32 v{LS}, v{PH}, v{PH+1}")
    for n in range(2, 8): a(f"v_add_f32 v{LS}, v{LS}, v{PH+n}")
    for n in range(8):
        a(f"v_cvt_pk_bf16_f32 v{T[0]}, v{PH+n}, v{PH+n}", f"v_and_b32 v{T[1]}, s{sHI}, v{T[0]}", f"v_sub_f32 v{T[1]}, v{PH+n}, v{T[1]}")
        a(f"v_cvt_pk_bf16_f32 v{PL+n}, v{T[1]}, v{T[1]}", f"v_mov_b32 v{PH+n}, v{T[0]}")
    tick(); allred("v_add_f32", [LS], [T[0]])
    OPo, MLo, HBo, STo, APo = 0, 5120, 5248, 7296, 7424
    TAGV, F0, F2, MW, LW, HD = ACC+5, ACC, ACC+12, ACC+2, ACC+3, ACC+6
    FR = (F0, F0+1, F2, F2+1)
    a(f"s_lshl_b32 s{sTmp}, s{sW}, 3", f"v_mov_b32 v{T[0]}, s{sTmp}", f"ds_write_b64 v{T[0]}, v[{MC}:{MC+1}] offset:{MLo}")
    a(f"s_and_b32 s{sTmp}, s{sTag32}, 0xff", f"v_mov_b32 v{TAGV}, s{sTmp}")
    for e in range(8): a(f"v_mov_b32 v{D0+e}, 0")
    TQ = list(range(Q, Q+8))
    def xch_publish():
        c("---- workgroup (max, sum) -> header for the other key half (the max is a bf16 value: the tag bits are free)")
        ML = TQ[0]; tick()
        a(f"v_mov_b32 v{HD}, 0", "s_waitcnt lgkmcnt(0)", "s_barrier")
        a(f"ds_read_b128 v[{ML}:{ML+3}], v{HD} offset:{MLo}", f"ds_read_b128 v[{ML+4}:{ML+7}], v{HD} offset:{MLo+16}", "s_waitcnt lgkmcnt(0)")
        a(f"v_max3_f32 v{MW}, v{ML}, v{ML+2}, v{ML+4}", f"v_max_f32 v{MW}, v{MW}, v{ML+6}")
        for w in range(4): a(f"v_sub_f32 v{FR[w]}, v{ML+2*w}, v{MW}")
        for w in range(4): a(f"v_mul_f32 v{FR[w]}, s{sC}, v{FR[w]}")
        for w in range(4): a(f"v_exp_f32 v{FR[w]}, v{FR[w]}")
        a(f"v_mul_f32 v{LW}, v{FR[0]}, v{ML+1}")
        for w in range(1, 4): a(f"v_fmac_f32 v{LW}, v{FR[w]}, v{ML+2*w+1}")
        a(f"v_and_b32 v{LW}, s{sTM}, v{LW}", f"s_cmp_lg_u32 s{sW}, 0", "s_cbranch_scc1 L_nohdr")
        a(f"v_or_b32 v{TQ[0]}, v{MW}, v{TAGV}", f"v_or_b32 v{TQ[1]}, v{LW}, v{TAGV}", f"v_mov_b32 v{TQ[2]}, s{sTag32}", f"v_mov_b32 v{TQ[3]}, s{sTag32}")
        a(f"s_lshl_b32 s{sTmp}, s{sI}, 7", f"s_add_u32 s{sTmp}, s{sTmp}, {HOFF}", "s_mov_b64 exec, 1")
        a(f"buffer_store_dwordx4 v[{TQ[0]}:{TQ[3]}], v{HD}, s[{sWS}:{sWS+3}], s{sTmp} offen sc1", "s_mov_b64 exec, -1", "L_nohdr:")
    def xch_load(track=True):
        a(f"s_xor_b32 s{sTmp}, s{sI}, 1", f"s_lshl_b32 s{sTmp}, s{sTmp}, 7", f"s_add_u32 s{sTmp}, s{sTmp}, {HOFF}", f"v_mov_b32 v{TQ[0]}, 0")
        x = f"buffer_load_dwordx4 v[{HD}:{HD+3}], v{TQ[0]}, s[{sWS}:{sWS+3}], s{sTmp} offen sc1"
        g.vm(x, "hd") if track else a(x)
    def xch_finish():
        c("---- per-wave factors exp((max_w - max)/16) / sum over both key halves")
        g.wait("hd", nop=False)
        a(f"s_mov_b32 s{sSpin}, 0", "L_xchk:")
        a(f"v_xor_b32 v{TQ[1]}, v{HD}, v{TAGV}", f"v_bitop3_b32 v{TQ[1]}, v{TQ[1]}, v{HD+1}, v{TAGV} bitop3:0xf6", f"v_and_b32 v{TQ[1]}, 0xff, v{TQ[1]}")
        a(f"v_xor_b32 v{TQ[2]}, s{sTag32}, v{HD+2}", f"v_xor_b32 v{TQ[3]}, s{sTag32}, v{HD+3}", f"v_or3_b32 v{TQ[1]}, v{TQ[1]}, v{TQ[2]}, v{TQ[3]}", f"v_cmp_ne_u32 vcc, 0, v{TQ[1]}", "s_cbranch_vccz L_xok")
        a(f"s_add_u32 s{sSpin}, s{sSpin}, 1", f"s_cmp_ge_u32 s{sSpin}, 0x40000", "s_cbranch_scc1 L_xok")
        xch_load(False)
        a("s_waitcnt vmcnt(0)", "s_branch L_xchk", "L_xok:")
        a(f"v_and_b32 v{HD}, s{sTM}, v{HD}", f"v_and_b32 v{HD+1}, s{sTM}, v{HD+1}", f"v_max_f32 v{TQ[1]}, v{HD}, v{MW}")
        a(f"v_sub_f32 v{HD}, v{HD}, v{TQ[1]}", f"v_sub_f32 v{MW}, v{MW}, v{TQ[1]}", f"v_mul_f32 v{HD}, s{sC}, v{HD}", f"v_mul_f32 v{MW}, s{sC}, v{MW}", f"v_exp_f32 v{HD}, v{HD}", f"v_exp_f32 v{MW}, v{MW}", "s_nop 0")
        a(f"v_mul_f32 v{HD}, v{HD}, v{HD+1}", f"v_mul_f32 v{LW}, v{MW}, v{LW}", f"v_add_f32 v{LW}, v{LW}, v{HD}", f"v_rcp_f32 v{LW}, v{LW}", "s_nop 0", f"v_mul_f32 v{MW}, v{MW}, v{LW}")
        for r in FR: a(f"v_mul_f32 v{r}, v{r}, v{MW}")
        tick()
    c("---- V pass: rows 0-7 of the tile take p_hi, rows 8-15 p_lo")
    vb = [sB0]
    def vissue(uu):
        d = RG + 4*(uu % 16)
        if not uu & 1: a(f"s_xor_b32 s{sOff}, s{vb[0] if uu < 32 else sB1}, {hex(perm_t((uu >> 1) & 15))}")
        a(f"buffer_load_dwordx4 v[{d}:{d+3}], v{vKV}, s[{sV}:{sV+3}], s{sOff} offen{' offset:256' if uu & 1 else ''} nt")
    def vstep(j, last, depth):
        A = AB + 4*(j & 1)
        abuild(A, PH+NP, inv[j], PL+NP)
        for hf in range(2):
            u = 2*j + hf
            a(f"s_waitcnt vmcnt({min(depth-1, 31-u) if last else depth-1})")
            if not (last and u + depth >= 32): vissue(u + depth)
            elif hf == 0: a("s_nop 0")
            mfma(D0 + 4*hf, A, RG + 4*(u % 16))
    def vcons(uu):
        u = uu - 256; j = (u >> 1) & 15; A = AB + 4*(j & 1)
        if not u & 1: abuild(A, PH + (u >> 5), inv[j], PL + (u >> 5)); a("s_nop 0"); g.wait(f"u{uu}")
        else: g.wait(f"u{uu}", nop=False)
        mfma(D0 + 4*(u & 1), A, RG + 4*(uu % 16))
    for x, fn in zip(XP, (xch_publish, xch_load, xch_finish)): run(vcons, 256 + x); fn()
    run(vcons, 256 + 32*NP)
    assert not wl, len(wl)
    assert iss[0] == 256 + 32*NP + DV and g.q[-DV:] == [f"u{256+32*NP+k}" for k in range(DV)]
    def vloop(lab, depth, end):
        a(f"{lab}:")
        for j in range(16): vstep(j, False, depth)
        for k in range(NP, 7): a(f"v_mov_b32 v{PH+k}, v{PH+k+1}", f"v_mov_b32 v{PL+k}, v{PL+k+1}")
        a(f"s_mov_b32 s{sB0}, s{sB1}", f"s_add_u32 s{sTmp2}, s{sCnt}, 2", f"s_mov_b32 s{sB1}, s{sRot}")
        for k in range(3): a(f"s_bitcmp1_b32 s{sTmp2}, {k}", f"s_cselect_b32 s{sTmp}, {1 << PW[8+k]}, 0", f"s_xor_b32 s{sB1}, s{sB1}, s{sTmp}")
        a(f"s_add_u32 s{sCnt}, s{sCnt}, 1", f"s_cmp_lt_u32 s{sCnt}, {end}", f"s_cbranch_scc1 {lab}")
    a(f"s_mov_b32 s{sCnt}, {NP}", f"s_xor_b32 s{sB0}, s{sRot}, {hex(perm_t(16*NP))}", f"s_xor_b32 s{sB1}, s{sRot}, {hex(perm_t(16*NP+16))}")
    vloop("L_vloop", DV, 7)
    c("last block: deeper window, so that late workgroups use the bandwidth the early ones leave")
    a(f"s_mov_b32 s{sRot}, s{sB0}"); vb[0] = sRot
    for uu in range(DV, DE): vissue(uu)

    c("---- epilogue addresses, biases and x slice, in the shadow of the last V block")
    aOW, aOR, aPUB, aF0, SM, SIX, aG, XS = ACC+2, ACC+3, ACC+4, 71, ACC+6, ACC+10, ACC+11, ACC+14
    B1V, B2V, aHA, aAW, aAR, aF = Q, Q+2, Q+4, Q+5, Q+6, Q+7
    aG7, TG7, aBP, aBF, TGF, aF1 = PH+4, PH+6, PL+4, PL+5, PL+6, 70
    tg, tc, t2, t3, aT = T[0], T[1], T[2], T[3], T[4]
    a(f"v_lshrrev_b32 v{tg}, 4, v{vL}", f"v_and_b32 v{tc}, 15, v{vL}")
    a(f"v_bfe_u32 v{t2}, v{vL}, 1, 2", f"v_and_b32 v{t3}, 1, v{vL}", f"v_lshl_add_u32 v{t2}, v{t2}, 1, v{t3}", f"v_bfe_u32 v{t3}, v{vL}, 4, 1", f"v_lshl_add_u32 v{t2}, v{t2}, 1, v{t3}")
    a(f"v_mul_u32_u24 v{aOW}, 80, v{t2}", f"v_lshrrev_b32 v{t2}, 5, v{vL}", f"v_bfe_u32 v{t3}, v{vL}, 3, 1", f"v_lshl_add_u32 v{t2}, v{t2}, 1, v{t3}", f"v_lshl_add_u32 v{aOW}, v{t2}, 3, v{aOW}")
    a(f"s_mul_i32 s{sTmp}, s{sW}, 1280", f"v_add_u32 v{aOW}, s{sTmp}, v{aOW}")
    a(f"v_and_b32 v{t2}, 3, v{vL}", f"v_lshl_add_u32 v{t2}, v{t2}, 2, v{tg}", f"v_mul_u32_u24 v{aOR}, 80, v{t2}", f"v_lshl_add_u32 v{aOR}, v{t3}, 5, v{aOR}")
    a(f"v_lshlrev_b32 v{t2}, 2, v{t2}", f"v_add_u32 v{aT}, v{t2}, v{t3}", f"s_mul_i32 s{sTmp}, s{sW}, 112", f"v_add_u32 v{aHA}, s{sTmp}, v{aT}", f"v_lshlrev_b32 v{aHA}, 2, v{aHA}", f"v_add_u32 v{aHA}, {HBo}, v{aHA}")
    a(f"v_lshrrev_b32 v{aAR}, 3, v{aT}", f"v_lshl_add_u32 v{aAR}, v{aT}, 1, v{aAR}", f"v_lshlrev_b32 v{aAR}, 4, v{aAR}", f"s_lshl_b32 s{sTmp}, s{sF}, 6", f"v_add_u32 v{aT}, s{sTmp}, v{aT}", f"v_lshlrev_b32 v{aT}, 1, v{aT}")
    a(f"global_load_ushort v{B1V}, v{aT}, s[50:51] nt", f"global_load_ushort v{B1V+1}, v{aT}, s[50:51] offset:4 nt")
    a(f"v_and_b32 v{t2}, 7, v{vL}", f"v_bfe_u32 v{aAW}, v{vL}, 4, 1", f"v_lshl_add_u32 v{aAW}, v{t2}, 1, v{aAW}", f"v_lshlrev_b32 v{aAW}, 7, v{aAW}", f"v_lshl_add_u32 v{aAW}, v{t3}, 2, v{aAW}", f"v_lshl_add_u32 v{aAW}, v{t2}, 4, v{aAW}")
    a(f"s_lshl_b32 s{sTmp}, s{sW}, 3", f"v_add_u32 v{aAW}, s{sTmp}, v{aAW}")
    a(f"v_lshrrev_b32 v{t2}, 5, v{vL}", f"v_lshlrev_b32 v{aPUB}, 8, v{t2}", f"v_lshl_add_u32 v{aPUB}, v{tc}, 5, v{aPUB}", f"v_and_b32 v{t3}, 16, v{vL}", f"v_add_u32 v{aPUB}, v{aPUB}, v{t3}")
    a(f"s_lshl_b32 s{sTmp}, s{sW}, 9", f"v_add_u32 v{aPUB}, s{sTmp}, v{aPUB}", f"s_cmp_eq_u32 s{sW}, 3", f"s_cselect_b32 s{sTmp2}, 15, 31")
    a(f"v_and_b32 v{t3}, 31, v{vL}", f"v_min_u32 v{t3}, s{sTmp2}, v{t3}", f"v_lshlrev_b32 v{aG}, 4, v{t3}", f"v_lshl_add_u32 v{aG}, v{t2}, 15, v{aG}", f"v_add_u32 v{aG}, s{sTmp}, v{aG}")
    c("this workgroup's own partials are taken from registers: their lanes read out of range (zero) and expect tag 0")
    a(f"v_lshrrev_b32 v{T[5]}, 4, v{t3}", f"v_and_b32 v{T[6]}, 1, v{t3}", f"v_lshl_add_u32 v{T[5]}, v{T[5]}, 1, v{T[6]}", f"v_bfe_u32 v{T[6]}, v{t3}, 1, 3", f"v_lshl_add_u32 v{T[5]}, v{T[5]}, 4, v{T[6]}", f"v_lshlrev_b32 v{aBP}, 2, v{T[5]}")
    a(f"s_cmp_lt_u32 s{sJ}, 16", "s_cselect_b32 vcc_lo, -1, 0", "s_cselect_b32 vcc_hi, 0, -1", f"v_mov_b32 v{T[5]}, 0x10000000")
    a(f"v_cndmask_b32 v{T[5]}, v{aG}, v{T[5]}, vcc", f"v_cndmask_b32 v{T[6]}, v{TAGV}, 0, vcc", f"s_bitcmp1_b32 s{sJ}, 0", "s_cselect_b64 vcc, -1, 0")
    a(f"v_cndmask_b32 v{aG7}, v{T[5]}, v{aG}, vcc", f"v_cndmask_b32 v{aG7+1}, v{aG}, v{T[5]}, vcc", f"v_cndmask_b32 v{TG7}, v{T[6]}, v{TAGV}, vcc", f"v_cndmask_b32 v{TG7+1}, v{TAGV}, v{T[6]}, vcc")
    a(f"s_lshl_b32 s{sTmp}, s{sW}, 8", f"v_lshlrev_b32 v{t3}, 3, v{t3}", f"v_add_u32 v{aF}, s{sTmp}, v{t3}")
    a(f"buffer_load_dwordx2 v[{XS}:{XS+1}], v{aF}, s[{sX}:{sX+3}], 0 offen nt", f"v_lshlrev_b32 v{aF}, 1, v{aF}")
    a(f"v_and_b32 v{t3}, 3, v{vL}", f"v_lshlrev_b32 v{t3}, 3, v{t3}", f"s_lshl_b32 s{sTmp}, s{sF}, 5", f"v_add_u32 v{t3}, s{sTmp}, v{t3}")
    a(f"global_load_dwordx2 v[{B2V}:{B2V+1}], v{t3}, s[54:55] nt")
    c("sparse-MFMA one-hot masks and index")
    a(f"v_bfe_u32 v{t2}, v{vL}, 2, 1", f"v_cmp_eq_u32 vcc, 0, v{t2}", f"v_mov_b32 v{t3}, 0xffff", f"v_and_b32 v{SIX}, 3, v{vL}")
    a(f"v_cndmask_b32 v{SM}, 0, v{t3}, vcc", f"v_cndmask_b32 v{SM+1}, v{t3}, 0, vcc", f"v_mul_u32_u24 v{SIX}, 0x5555, v{SIX}", f"v_lshlrev_b32 v{SM+2}, 16, v{SM}", f"v_lshlrev_b32 v{SM+3}, 16, v{SM+1}")
    a(f"s_cmp_eq_u32 s{sW}, 3", f"s_cselect_b32 s{sPX}, 0, 0x00ff00ff", f"s_cselect_b32 s{sEX}, 0xffff, -1", f"s_mov_b32 s{sIN}, {hex(f2u(1.0/128))}", f"s_cselect_b32 s{sIN}, {hex(f2u(1.0/64))}, s{sIN}")
    a(f"s_bfe_u32 s{sRU}, s{sJ}, 0x30001", f"s_lshl_b32 s{sGB}, s{sB}, 16", f"s_lshl_b32 s{sPB}, s{sJ}, 11", f"s_add_u32 s{sPB}, s{sPB}, s{sGB}")
    a(f"s_add_u32 s{sPF}, s{sPB}, {FOFF}", f"s_add_u32 s{sPB}, s{sPB}, {XOFF}", f"s_lshl_b32 s{sFB}, s{sF}, 6", f"s_add_u32 s{sFB}, s{sFB}, s{sGB}", f"s_add_u32 s{sFB}, s{sFB}, {FOFF}", f"s_add_u32 s{sGB}, s{sGB}, {XOFF}")
    for k in range(8): a(f"s_add_u32 s{sU+k}, s{sRU}, {k+1}", f"s_and_b32 s{sU+k}, s{sU+k}, 7", f"s_lshl_b32 s{sU+k}, s{sU+k}, 12", f"s_add_u32 s{sU+k}, s{sU+k}, s{sGB}")
    a(f"v_lshrrev_b32 v{T[0]}, 2, v{vL}", f"v_and_b32 v{T[1]}, 3, v{vL}", f"v_lshlrev_b32 v{T[1]}, 4, v{T[1]}", f"v_add_u32 v{T[2]}, 16, v{T[0]}", f"v_min_u32 v{T[2]}, 27, v{T[2]}")
    a(f"v_lshl_add_u32 v{aF0}, v{T[0]}, 11, v{T[1]}", f"v_lshl_add_u32 v{aF1}, v{T[2]}, 11, v{T[1]}", f"v_mov_b32 v{T[3]}, 0x10000000")
    a(f"v_cmp_eq_u32 vcc, s{sJ}, v{T[0]}", f"v_and_b32 v{T[5]}, 1, v{vL}", f"v_bfe_u32 v{T[6]}, v{vL}, 1, 1")
    a(f"v_cndmask_b32 v{aF0}, v{aF0}, v{T[3]}, vcc", f"v_cndmask_b32 v{TGF}, v{TAGV}, 0, vcc")
    a(f"v_cmp_eq_u32 vcc, s{sJ}, v{T[2]}", f"v_lshl_add_u32 v{T[5]}, v{T[5]}, 4, v{T[6]}", f"s_and_b32 s{sTmp}, s{sJ}, 3")
    a(f"v_cndmask_b32 v{aF1}, v{aF1}, v{T[3]}, vcc", f"v_cndmask_b32 v{TGF+1}, v{TAGV}, 0, vcc")
    a(f"s_lshl_b32 s{sTmp}, s{sTmp}, 1", f"s_bfe_u32 s{sTmp2}, s{sJ}, 0x10002", f"s_lshl_b32 s{sTmp2}, s{sTmp2}, 5", f"s_add_u32 s{sTmp}, s{sTmp}, s{sTmp2}")
    sFW = sR
    a(f"v_add_u32 v{aBF}, s{sTmp}, v{T[5]}", f"v_lshlrev_b32 v{aBF}, 2, v{aBF}", f"s_lshr_b32 s{sFW}, s{sJ}, 3")
    if XPF:
        c("pull this wave's own hand-off lines on die ahead of time (values unused)")
        a("s_mov_b32 exec_lo, 0x00110011", f"s_and_b32 exec_hi, s{sPX}, 0x00110011")
        a(f"buffer_load_dword v{T[7]}, v{aPUB}, s[{sWS}:{sWS+3}], s{sPB} offen sc1", f"buffer_load_dword v{T[7]}, v{aPUB}, s[{sWS}:{sWS+3}], s{sPF} offen sc1", "s_mov_b64 exec, -1")
    for j in range(16): vstep(j, True, DE)

    c("---- o partial (hi + lo rows) -> LDS -> normalised sum of the four waves, bf16")
    a("s_nop 7")
    for t in range(4): a(f"v_permlane32_swap_b32 v{D0+t}, v{D1+t}")
    for t, r in enumerate((0, 2, 1, 3)): a(f"v_add_f32 v{AB+r}, v{D0+t}, v{D1+t}")
    a(f"ds_write_b64 v{aOW}, v[{AB}:{AB+1}] offset:{OPo}", f"ds_write_b64 v{aOW}, v[{AB+2}:{AB+3}] offset:{OPo+32}", "s_waitcnt lgkmcnt(0)", "s_barrier")
    for w in range(4):
        for hh in range(2): a(f"ds_read_b128 v[{RG+8*w+4*hh}:{RG+8*w+4*hh+3}], v{aOR} offset:{OPo + w*1280 + 16*hh}")
    for e in range(8): a(f"v_mov_b32 v{D0+e}, 0")
    for w in range(4):
        a(f"s_waitcnt lgkmcnt({6-2*w})")
        Fp = (F0, F0, F2, F2)[w]; o = w & 1
        for k in range(4):
            r = RG + 2*k
            if w == 0: a(f"v_pk_mul_f32 v[{r}:{r+1}], v[{r}:{r+1}], v[{Fp}:{Fp+1}] op_sel_hi:[1,0]")
            else: a(f"v_pk_fma_f32 v[{r}:{r+1}], v[{r+8*w}:{r+8*w+1}], v[{Fp}:{Fp+1}], v[{r}:{r+1}] op_sel:[0,{o},0] op_sel_hi:[1,{o},1]")
    S = PL
    for u in range(4): a(f"v_cvt_pk_bf16_f32 v{S+u}, v{RG+2*u}, v{RG+2*u+1}")
    def sbuild(dst, n, ts):
        for t in ts: a(f"v_and_b32_dpp v{dst+t}, v{S + (n >> 2)}, v{SM+t} quad_perm:[{n&3},{n&3},{n&3},{n&3}] row_mask:0xf bank_mask:0xf")
    def smf(d, A, B, br): a(f"v_smfmac_f32_16x16x64_bf16 v[{d}:{d+3}], v[{A}:{A+3}], {br}[{B}:{B+7}], v{SIX}")
    BUF = [AB, AB+4, PH]
    def proj(nj, breg, br):
        sbuild(BUF[0], 0, range(4)); sbuild(BUF[1], 1, range(4))
        for jj in range(nj):
            A, nA = BUF[jj % 3], BUF[(jj+2) % 3]
            smf(D0, A, breg + (jj*2)*8, br)
            if jj + 2 < nj: sbuild(nA, jj+2, (0, 1))
            smf(D1, A, breg + (jj*2+1)*8, br)
            if jj + 2 < nj: sbuild(nA, jj+2, (2, 3))
    def publish(so):
        a("s_nop 7")
        for t in range(4): a(f"v_permlane32_swap_b32 v{D0+t}, v{D1+t}")
        for t in range(4): a(f"v_add_f32_dpp v{D0+t}, v{D1+t}, v{D0+t} row_ror:8 row_mask:0xf bank_mask:0xf")
        for t in range(4): a(f"v_bfi_b32 v{AB+t}, s{sTM}, v{D0+t}, v{TAGV}")
        a("s_mov_b32 exec_lo, 0x00ff00ff", f"s_mov_b32 exec_hi, s{sPX}")
        a(f"buffer_store_dwordx4 v[{AB}:{AB+3}], v{aPUB}, s[{sWS}:{sWS+3}], s{so} offen sc1", "s_mov_b64 exec, -1")
    c("---- y partial = o @ wo[head]: wave w owns columns 128w..128w+127, 16 rows x 64 columns per sparse MFMA")
    proj(16, 0, "a")
    publish(sPB)
    a(f"s_cmp_ge_u32 s{sJ}, 28", "s_cbranch_scc1 L_end")
    c("---- hand-off X: sum the 32 partials of this batch (8 slots of 4 producers); lanes 32-63 start from x")
    GA, CK, R2 = D0, T[1], RG+32
    def gissue(r, so, own=False):
        a(f"buffer_load_dwordx4 v[{r}:{r+3}], v{aG7 if own else aG}, s[{sWS}:{sWS+3}], s{so} offen sc1")
        a(f"buffer_load_dwordx4 v[{r+4}:{r+7}], v{aG7+1 if own else aG}, s[{sWS}:{sWS+3}], s{so} offen offset:2048 sc1")
    def tagchk(r, ta=TAGV, tb=TAGV):
        a(f"v_xor_b32 v{CK}, v{r}, v{ta}", f"v_xor_b32 v{T[2]}, v{r+4}, v{tb}")
        a(f"v_bitop3_b32 v{CK}, v{CK}, v{r+2}, v{ta} bitop3:0xf6", f"v_bitop3_b32 v{T[2]}, v{T[2]}, v{r+6}, v{tb} bitop3:0xf6")
        a(f"v_bitop3_b32 v{CK}, v{CK}, v{T[2]}, s{sTM} bitop3:0x54", f"v_cmp_ne_u32 vcc, 0, v{CK}")
    pa = lambda x, y, z=None: f"v_pk_add_f32 v[{x}:{x+1}], v[{x if z is None else z}:{(x if z is None else z)+1}], v[{y}:{y+1}]"
    def gacc(r, L, k):
        tagchk(r, TG7, TG7+1) if k == 7 else tagchk(r)
        a(pa(r, r+4), pa(r+2, r+6), f"s_cbranch_vccnz {L}", pa(GA, r), pa(GA+2, r+2))
        if k is not None: a(f"s_bitset0_b32 s{sDone}, {k}")
    for e in range(4): a(f"ds_bpermute_b32 v{GA+e}, v{aBP}, v{AB+e}")
    for k in range(8): gissue(RG+8*k, sU+k, k == 7)
    a(f"s_movk_i32 s{sDone}, 0xff", f"s_mov_b32 s{sSpin}, 0", "s_waitcnt lgkmcnt(0)", "s_mov_b32 exec_lo, 0")
    unpack(GA, XS, 2)
    a("s_mov_b32 exec_lo, -1")
    for k in range(8):
        a(f"s_waitcnt vmcnt({14-2*k})"); gacc(RG+8*k, f"L_g0_{k}", k); a(f"L_g0_{k}:")
    a(f"s_cmp_eq_u32 s{sDone}, 0", "s_cbranch_scc1 L_gdone")
    for k in range(8):
        a(f"s_bitcmp1_b32 s{sDone}, {k}", f"s_cbranch_scc0 L_g1_{k}"); gissue(RG+8*k, sU+k, k == 7); a(f"L_g1_{k}:")
    a("L_gtop:", "s_waitcnt vmcnt(0)")
    for k in range(8):
        a(f"s_bitcmp1_b32 s{sDone}, {k}", f"s_cbranch_scc0 L_gb_{k}"); gacc(RG+8*k, f"L_gf_{k}", k); a(f"L_gb_{k}:")
    a(f"s_bcnt1_i32_b32 s{sTmp}, s{sDone}", "s_cbranch_scc0 L_gdone")
    a(f"s_bitcmp1_b32 s{sDone}, 7", "s_cbranch_scc1 L_gmany", f"s_cmp_eq_u32 s{sTmp}, 1", "s_cbranch_scc1 L_gone", "L_gmany:")
    a(f"s_add_u32 s{sSpin}, s{sSpin}, 1", f"s_cmp_lt_u32 s{sSpin}, 0x40000", "s_cbranch_scc1 L_gtop", "s_branch L_gdone")
    for k in range(8):
        a(f"L_gf_{k}:"); gissue(RG+8*k, sU+k, k == 7); a(f"s_branch L_gb_{k}")
    a("L_gone:")
    a(f"s_ff1_i32_b32 s{sTmp2}, s{sDone}", f"s_add_u32 s{sTmp2}, s{sTmp2}, s{sRU}", f"s_add_u32 s{sTmp2}, s{sTmp2}, 1", f"s_and_b32 s{sTmp2}, s{sTmp2}, 7", f"s_lshl_b32 s{sTmp2}, s{sTmp2}, 12", f"s_add_u32 s{sTmp2}, s{sTmp2}, s{sGB}")
    a("L_gone1:"); gissue(RG, sTmp2)
    a(f"s_add_u32 s{sSpin}, s{sSpin}, 1", f"s_cmp_ge_u32 s{sSpin}, 0x40000", "s_cbranch_scc1 L_gdone", "s_waitcnt vmcnt(0)")
    gacc(RG, "L_gone1", None)
    a("L_gdone:")
    c("---- h slice (fp32) and its mean / centred sum of squares (pivot = first element)")
    S1, S2, H4, XF = R2+10, R2+11, R2+4, R2
    for e in range(4): a(f"v_mov_b32 v{GA+4+e}, v{GA+e}")
    a(f"v_mov_b32 v{S1}, 0", f"v_mov_b32 v{S2}, 0")
    for e in range(4): a(f"v_permlane32_swap_b32 v{GA+4+e}, v{GA+e}")
    a(pa(GA, GA+4), pa(GA+2, GA+6))
    a(f"s_lshl_b32 s{sCnt}, s{sW}, 3", f"v_readlane_b32 s{sTmp2}, v{GA}, 0", f"ds_write_b128 v{aF}, v[{GA}:{GA+3}] offset:{HBo}", f"s_mov_b32 exec_lo, s{sEX}")
    neg = "op_sel_hi:[1,0] neg_lo:[0,1] neg_hi:[0,1]"
    a(f"v_pk_add_f32 v[{H4}:{H4+1}], v[{GA}:{GA+1}], s[{sTmp2}:{sTmp2+1}] {neg}", f"v_pk_add_f32 v[{H4+2}:{H4+3}], v[{GA+2}:{GA+3}], s[{sTmp2}:{sTmp2+1}] {neg}")
    a(f"v_pk_mul_f32 v[{XF}:{XF+1}], v[{H4}:{H4+1}], v[{H4}:{H4+1}]", pa(XF+2, H4+2, H4), f"v_pk_fma_f32 v[{XF}:{XF+1}], v[{H4+2}:{H4+3}], v[{H4+2}:{H4+3}], v[{XF}:{XF+1}]")
    a(f"v_add_f32 v{S1}, v{XF+2}, v{XF+3}", f"v_add_f32 v{S2}, v{XF}, v{XF+1}", "s_mov_b32 exec_lo, -1")
    fill = [f"v_mov_b32 v{T[0]}, s{sCnt}", f"v_mov_b32 v{T[1]}, 0", f"v_mov_b32 v{D0}, 0", f"v_mov_b32 v{D0+1}, 0", f"v_mov_b32 v{D0+2}, 0"]
    for ctl in ("row_ror:8 row_mask:0xf", "row_ror:4 row_mask:0xf", "row_ror:2 row_mask:0xf", "row_ror:1 row_mask:0xf", "row_bcast:15 row_mask:0x2"):
        a(fill.pop(0))
        for r in (S1, S2): a(f"v_add_f32_dpp v{r}, v{r}, v{r} {ctl} bank_mask:0xf")
    a(f"v_mul_f32 v{XF}, s{sIN}, v{S1}", f"v_mov_b32 v{D0+3}, 0", f"v_fma_f32 v{S2}, -v{XF}, v{S1}, v{S2}", f"v_add_f32 v{S1}, s{sTmp2}, v{XF}")
    a("s_mov_b32 exec_lo, 0x10000", "s_mov_b32 exec_hi, 0", f"ds_write_b64 v{T[0]}, v[{S1}:{S1+1}] offset:{STo}", "s_mov_b64 exec, -1", "s_waitcnt lgkmcnt(0)", "s_barrier")
    c("---- combine the four slices (128,128,128,64 columns) into mean and variance of h")
    ST, E, MU, RS = R2, R2+16, T[4], T[6]
    a(f"ds_read_b128 v[{ST}:{ST+3}], v{T[1]} offset:{STo}", f"ds_read_b128 v[{ST+4}:{ST+7}], v{T[1]} offset:{STo+16}")
    a(f"ds_read2_b32 v[{E}:{E+1}], v{aHA} offset0:0 offset1:2", f"ds_read2_b32 v[{E+2}:{E+3}], v{aHA} offset0:64 offset1:66", "s_waitcnt lgkmcnt(2)")
    a(f"v_add_f32 v{MU}, v{ST}, v{ST+2}", f"v_fma_f32 v{T[5]}, v{ST+6}, 0.5, v{ST+4}", f"v_add_f32 v{RS}, v{ST+1}, v{ST+3}", f"v_add_f32 v{MU}, v{MU}, v{T[5]}", f"v_add_f32 v{T[7]}, v{ST+5}, v{ST+7}")
    a(f"v_mul_f32 v{MU}, {hex(f2u(2.0/7))}, v{MU}", f"v_add_f32 v{RS}, v{RS}, v{T[7]}")
    for w in range(4): a(f"v_sub_f32 v{ST+2*w}, v{ST+2*w}, v{MU}")
    a(f"v_mul_f32 v{T[5]}, v{ST+6}, v{ST+6}", f"v_mul_f32 v{T[7]}, v{ST}, v{ST}", f"v_mul_f32 v{RS}, {inv448}, v{RS}")
    a(f"v_fmac_f32 v{T[7]}, v{ST+2}, v{ST+2}", f"v_fmac_f32 v{RS}, {hex(f2u(1.0/7))}, v{T[5]}", f"v_fmac_f32 v{T[7]}, v{ST+4}, v{ST+4}", "s_waitcnt lgkmcnt(0)")
    a(f"v_pk_add_f32 v[{E}:{E+1}], v[{E}:{E+1}], v[{MU}:{MU+1}] {neg}", f"v_fmac_f32 v{RS}, {hex(f2u(2.0/7))}, v{T[7]}")
    c("both layer norms: z1 = (h-mu)/sqrt(var+eps) has mean 0 and variance var/(var+eps), hence")
    c("LN(z1) = z1/sqrt(var/(var+eps) + eps) = (h-mu)/sqrt(var + eps*(var+eps))")
    a(f"v_pk_add_f32 v[{E+2}:{E+3}], v[{E+2}:{E+3}], v[{MU}:{MU+1}] {neg}", f"v_add_f32 v{T[5]}, {eps}, v{RS}", f"v_fmac_f32 v{RS}, {eps}, v{T[5]}", f"v_rsq_f32 v{RS}, v{RS}", "s_nop 0")
    a(f"v_pk_mul_f32 v[{E}:{E+1}], v[{E}:{E+1}], v[{RS}:{RS+1}] op_sel_hi:[1,0]", f"v_pk_mul_f32 v[{E+2}:{E+3}], v[{E+2}:{E+3}], v[{RS}:{RS+1}] op_sel_hi:[1,0]")
    a(f"v_cvt_pk_bf16_f32 v{S}, v{E}, v{E+1}", f"v_cvt_pk_bf16_f32 v{S+1}, v{E+2}, v{E+3}", "s_nop 0")
    c("---- w1 slice: wave w takes rows 112w..112w+111, partials summed through LDS")
    sbuild(AB, 0, range(4))
    for jj in range(7):
        nA = AB + 4*((jj+1) & 1)
        if jj < 6: sbuild(nA, jj+1, (0, 1))
        else: a("s_nop 1")
        smf(D0, AB + 4*(jj & 1), W1R + 8*jj, "v")
        if jj < 6: sbuild(nA, jj+1, (2, 3))
    a(f"v_lshlrev_b32 v{B1V}, 16, v{B1V}", f"v_lshlrev_b32 v{B1V+1}, 16, v{B1V+1}", "s_mov_b32 exec_lo, 0x00ff00ff", "s_mov_b32 exec_hi, 0xff00ff00", "s_nop 3")
    for t in range(4): a(f"ds_write_b32 v{aAW}, v{D0+t} offset:{APo + 32*t}")
    a("s_mov_b64 exec, -1", "s_waitcnt lgkmcnt(0)", "s_barrier")
    for k in range(4): a(f"ds_read_b128 v[{R2+4*k}:{R2+4*k+3}], v{aAR} offset:{APo + 64*(k >> 1) + 16*(k & 1)}")
    for e in range(8): a(f"v_mov_b32 v{D0+e}, 0")
    G2, U2 = T[4], T[6]
    for x in range(2):
        r = R2 + 8*x
        a(f"s_waitcnt lgkmcnt({2-2*x})", pa(r, r+2), pa(r+4, r+6), pa(r, r+4), f"v_add_f32 v{G2+x}, v{r}, v{r+1}")
    c("GELU(tanh form): 0.5 a (1 + tanh u) = a / (1 + exp(-2u)), u = sqrt(2/pi) (a + 0.044715 a^3)")
    beta, kap = 0.7978845608028654, 0.044715
    a(pa(G2, B1V), f"v_pk_mul_f32 v[{U2}:{U2+1}], v[{G2}:{G2+1}], v[{G2}:{G2+1}]")
    for x in range(2): a(f"v_mul_f32 v{U2+x}, {hex(f2u(kap))}, v{U2+x}")
    a(f"v_pk_fma_f32 v[{U2}:{U2+1}], v[{U2}:{U2+1}], v[{G2}:{G2+1}], v[{G2}:{G2+1}]")
    for x in range(2): a(f"v_mul_f32 v{U2+x}, {hex(f2u(-2*beta*math.log2(math.e)))}, v{U2+x}")
    for x in range(2): a(f"v_exp_f32 v{U2+x}, v{U2+x}")
    a("s_nop 0")
    for x in range(2): a(f"v_add_f32 v{U2+x}, 1.0, v{U2+x}")
    for x in range(2): a(f"v_rcp_f32 v{U2+x}, v{U2+x}")
    a("s_nop 0", f"v_pk_mul_f32 v[{G2}:{G2+1}], v[{G2}:{G2+1}], v[{U2}:{U2+1}]", f"v_cvt_pk_bf16_f32 v{S}, v{G2}, v{G2+1}", "s_nop 1")
    c("---- w2 slice, hand-off F")
    proj(4, W2R, "v")
    publish(sPF)
    c("---- the wave that holds columns 16j..16j+15 sums the 28 partials, adds b2 and h, stores the output")
    a(f"s_cmp_lg_u32 s{sW}, s{sFW}", "s_cbranch_scc1 L_end")
    FA, FB, FH, FO, aO = R2, R2+8, R2+12, R2+20, T[4]
    def fissue():
        a(f"buffer_load_dwordx4 v[{FA}:{FA+3}], v{aF0}, s[{sWS}:{sWS+3}], s{sFB} offen sc1", f"buffer_load_dwordx4 v[{FA+4}:{FA+7}], v{aF1}, s[{sWS}:{sWS+3}], s{sFB} offen sc1")
    fissue()
    for e in range(4): a(f"ds_bpermute_b32 v{FO+e}, v{aBF}, v{AB+e}")
    a(f"s_lshl_b32 s{sTmp}, s{sJ}, 5", f"v_and_b32 v{aO}, 3, v{vL}", f"v_lshlrev_b32 v{aO}, 3, v{aO}", f"v_add_lshl_u32 v{T[5]}, s{sTmp}, v{aO}, 1", f"ds_read_b128 v[{FH}:{FH+3}], v{T[5]} offset:{HBo}")
    unpack(FB, B2V, 2)
    a(f"s_mul_i32 s{sCnt}, s{sB}, 896", f"s_add_u32 s{sCnt}, s{sCnt}, s{sTmp}")
    srd(sX, 56, None, 3584*2)
    a(f"s_mov_b32 s{sSpin}, 0", "s_waitcnt lgkmcnt(0)", pa(FO, FB), pa(FO+2, FB+2), pa(FB, FH, FO), pa(FB+2, FH+2, FO+2), "s_branch L_fchk", "L_fpoll:")
    fissue()
    a(f"s_add_u32 s{sSpin}, s{sSpin}, 1", f"s_cmp_ge_u32 s{sSpin}, 0x40000", "s_cbranch_scc1 L_fdone", "L_fchk:", "s_waitcnt vmcnt(0)")
    tagchk(FA, TGF, TGF+1)
    a("s_mov_b32 exec_hi, 0xffff", pa(FA, FA+4), pa(FA+2, FA+6), "s_mov_b32 exec_hi, -1", "s_cbranch_vccnz L_fpoll", "L_fdone:")
    for rot in (4, 8):
        for e in range(4): a(f"v_add_f32_dpp v{FA+e}, v{FA+e}, v{FA+e} row_ror:{rot} row_mask:0xf bank_mask:0xf")
    for sw in ("v_permlane16_swap_b32", "v_permlane32_swap_b32"):
        for e in range(4): a(f"v_mov_b32 v{FA+4+e}, v{FA+e}")
        for e in range(4): a(f"{sw} v{FA+4+e}, v{FA+e}")
        a(pa(FA, FA+4), pa(FA+2, FA+6))
    a(pa(FA, FB), pa(FA+2, FB+2), f"v_cvt_pk_bf16_f32 v{FA}, v{FA}, v{FA+1}", f"v_cvt_pk_bf16_f32 v{FA+1}, v{FA+2}, v{FA+3}", "s_mov_b64 exec, 15")
    a(f"buffer_store_dwordx2 v[{FA}:{FA+1}], v{aO}, s[{sX}:{sX+3}], s{sCnt} offen")
    if stamps:
        a("s_memrealtime s[98:99]", "s_mul_i32 s96, s2, 24", "s_add_u32 s46, s60, 0x20000000", "s_addc_u32 s47, s61, 0", "s_waitcnt lgkmcnt(0)")
        a("v_mov_b32 v2, s96", "v_mov_b32 v12, s100", "v_mov_b32 v13, s101", "v_mov_b32 v14, s98", "v_mov_b32 v15, s99", "global_store_dwordx2 v2, v[12:13], s[46:47]", "global_store_dwordx2 v2, v[14:15], s[46:47] offset:8")
    c("every reader of this batch's epoch word has published by now: advance it")
    a(f"s_cmp_lg_u32 s{sJ}, 0", "s_cbranch_scc1 L_end")
    a(f"s_lshl_b32 s{sTmp}, s{sB}, 7", f"v_mov_b32 v{T[5]}, s{sTag32}", "s_mov_b64 exec, 1", f"buffer_store_dword v{T[5]}, v{aO}, s[{sWS}:{sWS+3}], s{sTmp} offen")
    a("L_end:", "s_endpgm")
    a('.section .rodata,"a"', ".p2align 6", f".amdhsa_kernel {NAME}_kernel")
    for x in ("next_free_vgpr 512", "next_free_sgpr 102", "accum_offset 256", "group_segment_fixed_size 0", "kernarg_size 104", "user_sgpr_count 2",
              "user_sgpr_kernarg_segment_ptr 1", "system_sgpr_workgroup_id_x 1", "float_denorm_mode_32 3"): g.o.append("  .amdhsa_" + x)
    a(".end_amdhsa_kernel")
    return "\n".join(g.o) + "\n"

if __name__ == "__main__":
    kw = dict(x.split("=") for x in sys.argv[2:])
    open(sys.argv[1], "w").write(gen(**{k: eval(v) for k, v in kw.items()}))
```

```python
import sys, struct, math
NAME = "sequential_preLN__mha_block_cached__mixer_channel_mlp__decode"
def f2u(x): return struct.unpack("<I", struct.pack("<f", x))[0]

class G:
    def __init__(s): s.o = []; s.q = []; s.lab = 0
    def __call__(s, *xs): s.o.extend("    " + x if not x.endswith(":") and not x.startswith((".", ";")) else x for x in xs)
    def vm(s, text, tag): s(text); s.q.append(tag)
    def wait(s, tag, nop=True):
        if tag not in s.q:
            if nop: s("s_nop 0")
            return
        idx = max(i for i, t in enumerate(s.q) if t == tag)
        n = len(s.q) - 1 - idx; assert n <= 63
        s(f"s_waitcnt vmcnt({n})"); s.q = s.q[idx+1:]
    def count(s, tag):
        return len(s.q) - 1 - max(i for i, t in enumerate(s.q) if t == tag) if tag in s.q else None
    def label(s, p): s.lab += 1; return f"{p}_{s.lab}"

HEADER = """\
;
"""

from statistics import NormalDist
def gen(NST=32, NX=24, DQ=3, K0=4, DH=6, DV=6, DE=12, CPF=0, FROT=0, stamps=0, HPF=0, XPF=1, RCU=7, WEV=2.3, NP=7, D2=8, DS=5, RP=(84, 108, 116), CF=126, SIG=1.2, BI=0.3, GD=0.03, GS=0.03, BPF=7, QPF=0, WOF=0, WST=0, BAT=0, QAT=0, QS=0, QROW=1, QPOL='', WPOL='', BPOL='', XP=(16, 56, 84),
        PW=(10, 13, 12, 16, 11, 9, 15, 18, 14, 17, 19), PHS=((14, 4), (17, 1), (19, 132))):
    g = G(); a = g
    def c(t): a("; " + t)
    def perm_t(t): return sum(((t >> k) & 1) << PW[4+k] for k in range(7))
    ROFF, HOFF, XOFF, FOFF = 0x0, 0x8000, 0x10000, 0x100000
    vL, vKV = 0, 1
    T = list(range(2, 10))
    MK, Q, PH, PL, ACC, D0, D1, AB = 10, 14, 22, 30, 38, 54, 58, 62
    X8 = AB
    RG, W1R, W2R, WQR = 72, 136, 192, 136
    sK, sV, sWQ, sWO, sW1, sW2, sX, sWS = 4, 8, 12, 16, 20, 24, 28, 32
    sW, sI, sH, sB, sJ, sF, sOff, sRot, sCnt, sTmp, sTmp2, sR, sTag32, sC, sHI, sTM = range(62, 78)
    sPX, sGB, sU, sRU, sFB, sSpin, sPB, sPF, sDone, sEX, sIN = 78, 79, 80, 88, 89, 90, 91, 92, 93, 94, 95
    COFF, sAT, sSD, sSS = 0x90000, 82, 81, 80
    sB1, sB0, sEnd1 = 83, 84, 85

    a("; @launch grid=(256,1,1) block=(256,1,1) lds=16384")
    g.o.append(HEADER.rstrip("\n"))
    a('.amdgcn_target "amdgcn-amd-amdhsa--gfx950"', ".text", f".globl {NAME}_kernel", ".p2align 8", f".type {NAME}_kernel,@function", f"{NAME}_kernel:")
    a("s_cmp_ge_u32 s2, 256", "s_cbranch_scc1 L_end")
    if stamps: a("s_memrealtime s[100:101]")
    a("s_load_dwordx16 s[36:51], s[0:1], 0", "s_load_dwordx8 s[52:59], s[0:1], 64", "s_load_dwordx2 s[60:61], s[0:1], 96")
    a(f"v_lshrrev_b32 v{T[0]}, 6, v0", f"v_and_b32 v{vL}, 63, v0", f"v_readfirstlane_b32 s{sW}, v{T[0]}")
    c("i = (wg&7)*32 + (wg>>3): workgroups that share a head's weights tend to share an L2.  h = i>>4, b = (i>>1)&7, j = 2h + (i&1)")
    a(f"s_and_b32 s{sI}, s2, 7", f"s_lshl_b32 s{sI}, s{sI}, 5", f"s_lshr_b32 s{sTmp}, s2, 3", f"s_add_u32 s{sI}, s{sI}, s{sTmp}")
    a(f"s_lshr_b32 s{sH}, s{sI}, 4", f"s_bfe_u32 s{sB}, s{sI}, 0x30001", f"s_and_b32 s{sTmp}, s{sI}, 1")
    a(f"s_lshl_b32 s{sJ}, s{sH}, 1", f"s_add_u32 s{sJ}, s{sJ}, s{sTmp}")
    c("lane l = (g = l>>4, c = l&15) reads 16 B at column c of the row picked by g, the wave and the step")
    a(f"v_lshrrev_b32 v{T[0]}, 4, v{vL}", f"v_and_b32 v{T[1]}, 15, v{vL}", f"v_lshlrev_b32 v{T[2]}, 4, v{T[1]}")
    a(f"v_and_b32 v{T[3]}, 1, v{T[0]}", f"v_lshl_add_u32 v{vKV}, v{T[3]}, {PW[0]}, v{T[2]}", f"v_lshrrev_b32 v{T[3]}, 1, v{T[0]}", f"v_lshl_add_u32 v{vKV}, v{T[3]}, {PW[1]}, v{vKV}")
    a(f"s_and_b32 s{sTmp}, s{sW}, 1", f"s_lshl_b32 s{sTmp}, s{sTmp}, {PW[2]}", f"s_lshr_b32 s{sTmp2}, s{sW}, 1", f"s_lshl_b32 s{sTmp2}, s{sTmp2}, {PW[3]}", f"s_or_b32 s{sTmp}, s{sTmp}, s{sTmp2}")
    a(f"v_add_u32 v{vKV}, s{sTmp}, v{vKV}")
    c("wq rows of step j: 112w + 16(j>>2) + (j&3) + 4g ; x gather for the same rows")
    a(f"s_mul_i32 s{sTmp}, s{sW}, {112*8192}", f"v_lshl_add_u32 v{T[3]}, v{T[0]}, {15 if QROW else 13}, v{T[2]}", f"v_add_u32 v{T[3]}, s{sTmp}, v{T[3]}")
    if QROW: a(f"v_lshrrev_b32 v{T[5]}, 2, v{T[1]}", f"v_lshl_add_u32 v{T[5]}, v{T[5]}, 2, v{T[0]}", f"v_and_b32 v{T[4]}, 3, v{T[1]}", f"v_lshl_add_u32 v{T[5]}, v{T[5]}, 2, v{T[4]}")
    else: a(f"v_lshl_add_u32 v{T[5]}, v{T[1]}, 2, v{T[0]}")
    a(f"v_lshlrev_b32 v{T[4]}, 4, v{vL}", f"s_mul_i32 s{sTmp}, s{sW}, 112", f"v_add_u32 v{T[5]}, s{sTmp}, v{T[5]}", f"v_lshlrev_b32 v{T[5]}, 1, v{T[5]}")
    c("K/V chunk = (32b + j) MiB; the walk through it starts at a workgroup-specific phase")
    a(f"s_lshl_b32 s{sTmp2}, s{sB}, 5", f"s_add_u32 s{sTmp2}, s{sTmp2}, s{sJ}", f"s_lshl_b32 s{sTmp2}, s{sTmp2}, 20", f"s_mov_b32 s{sRot}, 0")
    for k, m in PHS:
        if m & (m-1) == 0: a(f"s_bitcmp1_b32 s{sI}, {m.bit_length()-1}")
        else: a(f"s_and_b32 s{sTmp}, s{sI}, {m}", f"s_bcnt1_i32_b32 s{sTmp}, s{sTmp}", f"s_bitcmp1_b32 s{sTmp}, 0")
        a(f"s_cselect_b32 s{sTmp}, {1 << k}, 0", f"s_xor_b32 s{sRot}, s{sRot}, s{sTmp}")
    a(f"s_mov_b32 s{sK+2}, {1 << 20}", f"s_mov_b32 s{sK+3}, 0x20000", "s_waitcnt lgkmcnt(0)")
    a(f"s_add_u32 s{sK}, s38, s{sTmp2}", f"s_addc_u32 s{sK+1}, s39, 0", f"s_and_b32 s{sK+1}, s{sK+1}, 0xffff")
    iss = [0]
    NS = 2*NST + NX
    def hdst(u):
        if u < 2*NST: return ("a", 4*u)
        if u < NS: return ("v", 256 - 4*(NS - u))
        return ("v", RG + 4*(u % 16))
    def hissue():
        u = iss[0]; iss[0] += 1
        r, d = hdst(u); srdn = sK if u < 256 else sV
        if not u & 1: a(f"s_xor_b32 s{sOff}, s{sRot}, {hex(perm_t((u >> 1) & 127))}")
        g.vm(f"buffer_load_dwordx4 {r}[{d}:{d+3}], v{vKV}, s[{srdn}:{srdn+3}], s{sOff} offen{' offset:256' if u & 1 else ''} nt", f"u{u}")
    for _ in range(K0): hissue()
    def srd(s, lo, off, nrec):
        if off is None: a(f"s_mov_b32 s{s}, s{lo}", f"s_and_b32 s{s+1}, s{lo+1}, 0xffff")
        else: a(f"s_add_u32 s{s}, s{lo}, s{off}", f"s_addc_u32 s{s+1}, s{lo+1}, 0", f"s_and_b32 s{s+1}, s{s+1}, 0xffff")
        a(f"s_mov_b32 s{s+2}, {nrec}", f"s_mov_b32 s{s+3}, 0x20000")
    sMF = 3
    a(f"s_add_u32 s{sMF}, s{sJ}, {FROT}", f"s_and_b32 s{sMF}, s{sMF}, 31")
    a(f"s_min_u32 s{sF}, s{sMF}, 27", f"s_mul_i32 s{sTmp}, s{sB}, 896")
    srd(sX, 36, sTmp, 896)
    g.vm(f"buffer_load_dwordx4 v[{X8}:{X8+3}], v{T[4]}, s[{sX}:{sX+3}], 0 offen nt", "x")
    g.vm(f"buffer_load_ushort v{PH}, v{T[5]}, s[{sX}:{sX+3}], 0 offen nt", "x")
    g.vm(f"buffer_load_ushort v{PH+1}, v{T[5]}, s[{sX}:{sX+3}], 0 offen offset:128 nt", "x")
    a(f"s_lshl_b32 s{sTmp}, s{sH}, 9")
    srd(sWQ, 42, sTmp, 0)
    a(f"s_sub_u32 s{sWQ+2}, {448*8192}, s{sTmp}")
    def bulk():
        c("bulk L2 prefetch of the wo / w2 / w1 lines used by the 32 workgroups of this group, one unit of whole DRAM rows per wave (values unused)")
        a(f"s_and_b32 s96, s{sI}, 31", "s_lshl_b32 s96, s96, 2", f"s_add_u32 s96, s96, s{sW}", f"s_lshr_b32 s97, s{sI}, 5", f"s_mov_b32 s{sW2+3}, 0x20000")
        a("s_cmp_ge_u32 s96, 96", "s_cbranch_scc1 L_bw1", "s_cmp_ge_u32 s96, 64", "s_cbranch_scc1 L_bw2")
        c("wo: 14 blocks of 32 KiB x 4 lines")
        a(f"s_mov_b32 s{sW2}, s44", f"s_and_b32 s{sW2+1}, s45, 0xffff", f"s_mul_i32 s98, s97, {14*32768}", f"s_add_u32 s{sW2+2}, s98, {14*32768 if BPF & 1 else 0}", "s_lshl_b32 s96, s96, 9", "s_add_u32 s98, s98, s96")
        a(f"v_lshrrev_b32 v{T[5]}, 2, v{vL}", f"v_and_b32 v{T[6]}, 3, v{vL}", f"v_lshlrev_b32 v{T[5]}, 15, v{T[5]}", "s_branch L_bgo", "L_bw2:")
        c("w2: 7 blocks x 8 lines")
        a(f"s_lshr_b32 s97, s{sMF}, 2")
        a(f"s_mov_b32 s{sW2}, s52", f"s_and_b32 s{sW2+1}, s53, 0xffff", f"s_mul_i32 s98, s97, {7*32768}", f"s_add_u32 s{sW2+2}, s98, {7*32768 if BPF & 2 else 0}", f"s_min_u32 s{sW2+2}, s{sW2+2}, {1792*896}")
        a("s_sub_u32 s96, s96, 64", "s_lshl_b32 s96, s96, 10", "s_add_u32 s98, s98, s96")
        a(f"v_lshrrev_b32 v{T[5]}, 3, v{vL}", f"v_and_b32 v{T[6]}, 7, v{vL}", f"v_lshlrev_b32 v{T[5]}, 15, v{T[5]}", "s_branch L_bgo", "L_bw1:")
        c("w1: 16 rows x 4 lines")
        a(f"s_lshr_b32 s97, s{sMF}, 2")
        a(f"s_mov_b32 s{sW2}, s48", f"s_and_b32 s{sW2+1}, s49, 0xffff", "s_cmp_eq_u32 s97, 7", f"s_cselect_b32 s{sW2+2}, 0, {448*3584 if BPF & 4 else 0}")
        a("s_sub_u32 s96, s96, 96", f"s_mul_i32 s98, s96, {16*3584}", "s_lshl_b32 s97, s97, 9", "s_add_u32 s98, s98, s97")
        a(f"v_lshrrev_b32 v{T[5]}, 2, v{vL}", f"v_and_b32 v{T[6]}, 3, v{vL}", f"v_mul_u32_u24 v{T[5]}, 3584, v{T[5]}", "L_bgo:")
        a(f"v_lshl_add_u32 v{T[5]}, v{T[6]}, 7, v{T[5]}")
        g.vm(f"buffer_load_dword v71, v{T[5]}, s[{sW2}:{sW2+3}], s98 offen{BPOL}", "pf")
        if CPF:
            c("this kernel's own code: 3 lines per wave")
            a("s_getpc_b64 s[96:97]", "L_pc:", f"s_and_b32 s98, s{sI}, 31", "s_lshl_b32 s98, s98, 2", f"s_add_u32 s98, s98, s{sW}", "s_lshl_b32 s98, s98, 7")
            a(f"v_lshlrev_b32 v{T[5]}, 14, v{vL}", f"v_add_u32 v{T[5]}, s98, v{T[5]}", f"v_min_u32 v{T[5]}, L_end-L_pc, v{T[5]}", "s_mov_b64 exec, 7")
            g.vm(f"global_load_dword v70, v{T[5]}, s[96:97]", "pf")
            a("s_mov_b64 exec, -1")
        if HPF:
            c("the hand-off lines come on die in the same burst: 4 lines of X, 4 of F, 1 header line per wave (values unused)")
            srd(sWS, 60, None, 0x200000)
            a(f"s_lshl_b32 s96, s{sI}, 2", f"s_add_u32 s96, s96, s{sW}", "s_lshl_b32 s97, s96, 9", "s_lshl_b32 s96, s96, 5")
            a(f"v_and_b32 v{T[5]}, 3, v{vL}", f"v_lshlrev_b32 v{T[5]}, 7, v{T[5]}", f"v_add_u32 v{T[5]}, s97, v{T[5]}", f"v_bfe_u32 v{T[6]}, v{vL}, 2, 1", f"v_mul_u32_u24 v{T[6]}, {hex(FOFF - XOFF)}, v{T[6]}")
            a(f"s_add_u32 s96, s96, {HOFF}", f"s_mov_b32 s97, {XOFF}", f"v_add3_u32 v{T[5]}, v{T[5]}, v{T[6]}, s97", f"v_writelane_b32 v{T[5]}, s96, 8", "s_mov_b64 exec, 0x1ff")
            g.vm(f"buffer_load_dword v70, v{T[5]}, s[{sWS}:{sWS+3}], 0 offen{' sc1' if HPF == 2 else ''}", "pf")
            a("s_mov_b64 exec, -1")
    def qload(j):
        dst = WQR + 8*(j % DQ)
        a(f"s_mov_b32 s{sTmp}, {(16*(j >> 2) + (j & 3))*8192 if QROW else j*32768}")
        g.vm(f"buffer_load_dwordx4 v[{dst}:{dst+3}], v{T[3]}, s[{sWQ}:{sWQ+3}], s{sTmp} offen{QPOL}", f"q{j}a")
        g.vm(f"buffer_load_dwordx4 v[{dst+4}:{dst+7}], v{T[3]}, s[{sWQ}:{sWQ+3}], s{sTmp} offen offset:256{QPOL}", f"q{j}b")
    def kstage_upto(n):
        while iss[0] < n: hissue()
    def quota(j): return min(NS, K0 + math.ceil((j+1)*(NS-K0)/28))
    for j in range(DQ):
        qload(j); kstage_upto(quota(j))
        if BPF and BAT == j: bulk()
        if j == 1:
            srd(sV, 40, sTmp2, 1 << 20)
            a(f"s_lshl_b32 s{sTmp}, s{sB}, 7", f"s_load_dword s{sR}, s[60:61], s{sTmp}")
    c("one-hot masks of the MFMA A operand: row i keeps element i&7 of its 8-element group")
    a(f"s_mov_b32 s{sHI}, 0xffff0000", f"s_mov_b32 s{sTM}, 0xffffff00", f"s_mov_b32 s{sC}, {hex(f2u(math.log2(math.e)/16))}")
    a(f"v_and_b32 v{T[6]}, 1, v{vL}", f"v_lshlrev_b32 v{T[6]}, 4, v{T[6]}", f"v_mov_b32 v{T[2]}, 0xffff", f"v_lshlrev_b32 v{T[2]}, v{T[6]}, v{T[2]}", f"v_bfe_u32 v{T[6]}, v{vL}, 1, 2")
    for t in range(4): a(f"v_cmp_eq_u32 vcc, {t}, v{T[6]}", "s_nop 1", f"v_cndmask_b32 v{MK+t}, 0, v{T[2]}, vcc")

    def allred(op, regs, tmp):
        for rot in (8, 4, 2, 1):
            a(f"s_nop {2-len(regs)}")
            for r in regs: a(f"{op}_dpp v{r}, v{r}, v{r} row_ror:{rot} row_mask:0xf bank_mask:0xf")
        for sw in ("v_permlane16_swap_b32", "v_permlane32_swap_b32"):
            for r, t in zip(regs, tmp): a(f"v_mov_b32 v{t}, v{r}")
            a("s_nop 1")
            for r, t in zip(regs, tmp): a(f"{sw} v{t}, v{r}")
            a("s_nop 1")
            for r, t in zip(regs, tmp): a(f"{op} v{r}, v{r}, v{t}")
    def bfr(r): a(f"v_cvt_pk_bf16_f32 v{r}, v{r}, v{r}", f"v_and_b32 v{r}, s{sHI}, v{r}")
    def unpack(dst, src, n):
        for k in range(n): a(f"v_lshlrev_b32 v{dst+2*k}, 16, v{src+k}", f"v_and_b32 v{dst+2*k+1}, s{sHI}, v{src+k}")
    def abuild(dst, src, lane, src2=None):
        for t in range(4): a(f"v_and_b32_dpp v{dst+t}, v{src}, v{MK+t} row_newbcast:{lane} row_mask:0xf bank_mask:{'0xf' if src2 is None else '0x3'}")
        if src2 is not None:
            for t in range(4): a(f"v_and_b32_dpp v{dst+t}, v{src2}, v{MK+t} row_newbcast:{lane} row_mask:0xf bank_mask:0xc")
    def mfma(d, A, B, zero=False): a(f"v_mfma_f32_16x16x32_bf16 v[{d}:{d+3}], v[{A}:{A+3}], v[{B}:{B+3}], {'0' if zero else f'v[{d}:{d+3}]'}")

    c("---- LN(x[b]) with the reference's bf16 rounding points; variance around a pivot element")
    g.wait("x")
    mu, rs, t0, t1 = ACC+8, ACC+9, ACC+10, ACC+11
    unpack(ACC, X8, 4)
    a(f"v_lshlrev_b32 v{PH}, 16, v{PH}", f"v_lshlrev_b32 v{PH+1}, 16, v{PH+1}")
    a(f"v_readlane_b32 s{sTmp}, v{ACC}, 0", f"v_mov_b32 v{mu}, 0", f"v_mov_b32 v{rs}, 0", "s_mov_b32 exec_hi, 0x00ffffff")
    for k in range(8): a(f"v_subrev_f32 v{t0}, s{sTmp}, v{ACC+k}", f"v_add_f32 v{mu}, v{mu}, v{t0}", f"v_fmac_f32 v{rs}, v{t0}, v{t0}")
    a("s_mov_b32 exec_hi, -1")
    allred("v_add_f32", [mu, rs], [t0, t1])
    inv448, eps = hex(f2u(1.0/448)), hex(f2u(1e-5))
    a(f"v_mul_f32 v{mu}, {inv448}, v{mu}", f"v_mul_f32 v{rs}, {inv448}, v{rs}")
    a(f"v_fma_f32 v{rs}, -v{mu}, v{mu}, v{rs}", f"v_add_f32 v{mu}, s{sTmp}, v{mu}", f"v_max_f32 v{rs}, 0, v{rs}")
    bfr(mu); bfr(rs); a(f"v_add_f32 v{rs}, {eps}, v{rs}"); bfr(rs)
    a(f"v_sqrt_f32 v{rs}, v{rs}", "s_nop 0"); bfr(rs); a(f"v_rcp_f32 v{rs}, v{rs}", "s_nop 0")
    for r in (PH, PH+1):
        a(f"v_sub_f32 v{r}, v{r}, v{mu}"); bfr(r); a(f"v_mul_f32 v{r}, v{r}, v{rs}", f"v_cvt_pk_bf16_f32 v{r}, v{r}, v{r}")
    a("s_nop 1")
    c("---- q partial of this wave's 112 rows of wq")
    for j in range(28):
        A = AB + 4*(j & 1); dst = WQR + 8*(j % DQ)
        abuild(A, PH + (j >> 4), j & 15); a("s_nop 0")
        g.wait(f"q{j}a"); mfma(D0, A, dst, j == 0)
        g.wait(f"q{j}b"); mfma(D1, A, dst+4, j == 0)
        if j + DQ < 28: qload(j+DQ); kstage_upto(quota(j+DQ))
        if BPF and BAT == j + DQ: bulk()
    kstage_upto(NS + DH)
    c("---- sum the four partials through LDS, round q to bf16")
    a(f"v_and_b32 v{T[0]}, 15, v{vL}", f"v_lshlrev_b32 v{T[0]}, 5, v{T[0]}", f"v_and_b32 v{T[1]}, 16, v{vL}", f"v_add_u32 v{T[1]}, v{T[0]}, v{T[1]}")
    a(f"s_lshl_b32 s{sTmp}, s{sW}, 10", f"v_add_u32 v{T[1]}, s{sTmp}, v{T[1]}", "s_nop 2")
    a(f"ds_write_b128 v{T[1]}, v[{D0}:{D0+3}]", f"ds_write_b128 v{T[1]}, v[{D1}:{D1+3}] offset:512", "s_waitcnt lgkmcnt(0)", "s_barrier")
    busy = {hdst(u)[1] for u in range(2*NST, iss[0])}
    QG = [r for r in list(range(WQR, 256, 4)) + list(range(RG, RG+64, 4)) if r not in busy][:16]
    assert len(QG) == 16
    for k in range(16): a(f"ds_read_b128 v[{QG[k]}:{QG[k]+3}], v{T[0]} offset:{((k >> 1) & 3)*1024 + (k >> 3)*512 + (k & 1)*16}")
    a(f"s_mul_i32 s{sTmp}, s{sH}, {256*896}"); srd(sWO, 44, sTmp, 256*896)
    a(f"s_lshl_b32 s{sTmp}, s{sF}, 7"); srd(sW1, 48, sTmp, 0); a(f"s_sub_u32 s{sW1+2}, {448*3584}, s{sTmp}")
    a(f"s_mul_i32 s{sTmp}, s{sF}, {64*896}"); srd(sW2, 52, sTmp, 64*896)
    c("workgroups with j >= 28 own no MLP slice: empty descriptors")
    a(f"s_cmp_ge_u32 s{sMF}, 28", f"s_cselect_b32 s{sW1+2}, 0, s{sW1+2}", f"s_cselect_b32 s{sW2+2}, 0, s{sW2+2}")
    if not HPF: srd(sWS, 60, None, 0x200000)
    c("arrival counter of this batch starts from zero (used 40 us later, for the load-window choice only)")
    a(f"s_or_b32 s{sTmp}, s{sJ}, s{sW}", "s_cbranch_scc1 L_noclr", f"s_lshl_b32 s{sTmp}, s{sB}, 12", f"s_add_u32 s{sTmp}, s{sTmp}, {COFF}", f"v_mov_b32 v70, 0", "s_mov_b64 exec, 1")
    a(f"buffer_store_dword v70, v70, s[{sWS}:{sWS+3}], s{sTmp} offen sc1", "s_mov_b64 exec, -1", "L_noclr:")
    for hf in range(2):
        a(f"s_waitcnt lgkmcnt({8*(1-hf)})")
        q_ = lambda w, e: QG[(hf*4 + w)*2 + (e >> 2)] + (e & 3)
        pa = lambda x, y: f"v_pk_add_f32 v[{x}:{x+1}], v[{x}:{x+1}], v[{y}:{y+1}]"
        for e in range(0, 8, 2): a(pa(q_(0,e), q_(1,e)), pa(q_(2,e), q_(3,e)))
        for e in range(0, 8, 2): a(pa(q_(0,e), q_(2,e)))
        for e in range(4): a(f"v_cvt_pk_bf16_f32 v{Q+hf*4+e}, v{q_(0,2*e)}, v{q_(0,2*e)+1}")
    a(f"s_add_u32 s{sTag32}, s{sR}, 1")
    c("weight addresses: wo/w2 (2g + (c>>3))*896 + (16w + (c&7))*16 (+128 for the second column pass, out of range for wave 3); w1 (112w + 2g + (c>>3))*3584 + (c&7)*16")
    a(f"v_lshrrev_b32 v{T[0]}, 4, v{vL}", f"v_bfe_u32 v{T[1]}, v{vL}, 3, 1", f"v_lshl_add_u32 v{T[0]}, v{T[0]}, 1, v{T[1]}")
    a(f"v_and_b32 v{T[1]}, 7, v{vL}", f"s_lshl_b32 s{sTmp}, s{sW}, 4", f"v_add_u32 v{T[4]}, s{sTmp}, v{T[1]}", f"v_lshlrev_b32 v{T[4]}, 4, v{T[4]}")
    a(f"s_movk_i32 s{sTmp}, 896", f"v_mad_u32_u24 v{T[2]}, v{T[0]}, s{sTmp}, v{T[4]}")
    a(f"s_cmp_eq_u32 s{sW}, 3", f"s_cselect_b32 s{sTmp}, 0x10000000, 0", f"s_add_u32 s{sTmp}, s{sTmp}, 128", f"v_add_u32 v{T[4]}, s{sTmp}, v{T[2]}")
    a(f"s_mul_i32 s{sTmp}, s{sW}, 112", f"v_add_u32 v{T[0]}, s{sTmp}, v{T[0]}", f"v_lshlrev_b32 v{T[1]}, 4, v{T[1]}", f"s_movk_i32 s{sTmp}, 3584", f"v_mad_u32_u24 v{T[3]}, v{T[0]}, s{sTmp}, v{T[1]}")

    if BPF and BAT < 0: bulk()
    c("---- K pass")
    lanemap = [None]
    def kreduce(n):
        regs = [(ACC+j, [j]*16) for j in range(16)]
        a("s_nop 2")
        def lvl(regs, ctrl, m0, m1, sel):
            out = []
            for (r0, l0), (r1, l1) in zip(regs[0::2], regs[1::2]):
                a(f"v_add_f32_dpp v{r0}, v{r0}, v{r0} {ctrl} row_mask:0xf bank_mask:{m0}")
                out.append((r0, [l0[i] if sel(i) == 0 else l1[i] for i in range(16)]))
            for (r0, l0), (r1, l1) in zip(regs[0::2], regs[1::2]):
                a(f"v_add_f32_dpp v{r0}, v{r1}, v{r1} {ctrl} row_mask:0xf bank_mask:{m1}")
            return out
        regs = lvl(regs, "row_mirror", "0x3", "0xc", lambda i: i >> 3)
        tick()
        regs = lvl(regs, "row_half_mirror", "0x5", "0xa", lambda i: (i >> 2) & 1)
        for qp in ("[1,0,3,2]", "[2,3,0,1]"):
            for r, _ in regs: a(f"v_add_f32_dpp v{r}, v{r}, v{r} quad_perm:{qp} row_mask:0xf bank_mask:0xf")
        a("s_mov_b32 vcc_lo, 0xaaaaaaaa", "s_mov_b32 vcc_hi, 0xaaaaaaaa")
        a(f"v_cndmask_b32 v{regs[0][0]}, v{regs[0][0]}, v{regs[1][0]}, vcc", f"v_cndmask_b32 v{regs[2][0]}, v{regs[2][0]}, v{regs[3][0]}, vcc")
        a("s_mov_b32 vcc_lo, 0xcccccccc", "s_mov_b32 vcc_hi, 0xcccccccc", f"v_cndmask_b32 v{PH+n}, v{regs[0][0]}, v{regs[2][0]}, vcc")
        lanemap[0] = [regs[i & 3][1][i] for i in range(16)]
    wl = []
    def vneed(r): return max([-1] + [u for u in range(2*NST, NS) if hdst(u)[1] == r])
    def smov(v): return f"s_movk_i32 s{sTmp}, {v}" if v < 32768 else f"s_mov_b32 s{sTmp}, {v}"
    for jj in range(7):
        for L in range(2):
            r = W1R + 8*jj + 4*L
            wl.append((smov(3584*(16*jj + 8*L)), f"buffer_load_dwordx4 v[{r}:{r+3}], v{T[3]}, s[{sW1}:{sW1+3}], s{sTmp} offen{WPOL}", vneed(r)))
    for nj, rf, base, sr in ((4, "v", W2R, sW2), (16, "a", 0, sWO)):
        for jj in range(nj):
            for L in range(2):
                for ps in range(2):
                    r = base + (jj*2+ps)*8 + 4*L
                    need = vneed(r) if rf == "v" else (r//4 if r//4 < 2*NST else -1)
                    wl.append((smov(896*(16*jj + 8*L)), f"buffer_load_dwordx4 {rf}[{r}:{r+3}], v{T[2+2*ps]}, s[{sr}:{sr+3}], s{sTmp} offen{WPOL}", need))
    if WOF: wl = wl[30:] + wl[:30]
    def kcons(u):
        acc = ACC + (u >> 1) % 16; hf = u & 1
        g.wait(f"u{u}", nop=False)
        r, d = hdst(u)
        if r == "a":
            for e in range(4): a(f"v_accvgpr_read_b32 v{D0+4*hf+e}, a{d+e}")
            d = D0 + 4*hf
        for e in range(4): a(f"v_dot2_f32_bf16 v{acc}, v{d+e}, v{Q+4*hf+e}, {'0' if e == 0 and hf == 0 else f'v{acc}'}")
        if u % 32 == 31: kreduce(u // 32)
    def dep(u): return DH if u < 256 else (DV if u < 256 + CF else D2)
    st = dict(con=0, wc=0.0, n=0)
    def tick():
        u = iss[0]; depth = dep(u)
        if not (u - 16 < st["con"] or u - 16 < NS): return False
        g.wait(f"u{u-depth}", nop=False)
        if u >= 256 + CF:
            nn, ns = g.count(f"u{u-DV}"), g.count(f"u{u-DS}")
            L = g.label("L_w")
            a(f"s_cmpk_le_u32 s{sSD}, {u}", f"s_cbranch_scc1 {L}")
            if nn is not None: a(f"s_waitcnt vmcnt({nn})")
            if ns is not None and GS < 1: a(f"s_cmpk_le_u32 s{sSS}, {u}", f"s_cbranch_scc0 {L}", f"s_waitcnt vmcnt({ns})")
            a(f"{L}:")
        hissue(); st["n"] += 1
        if st["n"] > WST: st["wc"] += 1.0/WEV
        if wl and st["wc"] >= 1:
            k = next((k for k, w in enumerate(wl) if st["con"] > w[2]), None)
            if k is not None:
                s0, ld, _ = wl.pop(k); a(s0); g.vm(ld, "w"); st["wc"] -= 1
        return True
    def run(cons, end):
        while st["con"] < end:
            depth = dep(iss[0])
            can = tick() if iss[0] - st["con"] <= depth or st["con"] < NS + 16 else False
            n = 0
            while st["con"] < end and n < RCU and iss[0] - st["con"] > depth:
                u = st["con"]; st["con"] += 1; cons(u); n += 1
            assert can or n
    run(kcons, 256)
    inv = [lanemap[0].index(j) for j in range(16)]
    c("---- softmax numerators of this wave's 512 keys: scores rounded to bf16 as in the reference, true max, p = hi + lo in bf16")
    MC, LS = ACC, ACC+1
    for n in range(8): bfr(PH+n)
    a(f"v_max3_f32 v{MC}, v{PH}, v{PH+1}, v{PH+2}", f"v_max3_f32 v{MC}, v{MC}, v{PH+3}, v{PH+4}", f"v_max3_f32 v{MC}, v{MC}, v{PH+5}, v{PH+6}", f"v_max_f32 v{MC}, v{MC}, v{PH+7}")
    allred("v_max_f32", [MC], [T[0]]); tick()
    for n in range(8): a(f"v_sub_f32 v{PH+n}, v{PH+n}, v{MC}")
    for n in range(8): a(f"v_mul_f32 v{PH+n}, s{sC}, v{PH+n}")
    for n in range(8): a(f"v_exp_f32 v{PH+n}, v{PH+n}")
    a(f"v_add_f32 v{LS}, v{PH}, v{PH+1}")
    for n in range(2, 8): a(f"v_add_f32 v{LS}, v{LS}, v{PH+n}")
    for n in range(8):
        a(f"v_cvt_pk_bf16_f32 v{T[0]}, v{PH+n}, v{PH+n}", f"v_and_b32 v{T[1]}, s{sHI}, v{T[0]}", f"v_sub_f32 v{T[1]}, v{PH+n}, v{T[1]}")
        a(f"v_cvt_pk_bf16_f32 v{PL+n}, v{T[1]}, v{T[1]}", f"v_mov_b32 v{PH+n}, v{T[0]}")
    tick(); allred("v_add_f32", [LS], [T[0]])
    OPo, MLo, HBo, STo, APo = 0, 5120, 5248, 7296, 7424
    TAGV, F0, F2, MW, LW, HD = ACC+5, ACC, ACC+12, ACC+2, ACC+3, ACC+6
    FR = (F0, F0+1, F2, F2+1)
    a(f"s_lshl_b32 s{sTmp}, s{sW}, 3", f"v_mov_b32 v{T[0]}, s{sTmp}", f"ds_write_b64 v{T[0]}, v[{MC}:{MC+1}] offset:{MLo}")
    a(f"s_and_b32 s{sTmp}, s{sTag32}, 0xff", f"v_mov_b32 v{TAGV}, s{sTmp}")
    for e in range(8): a(f"v_mov_b32 v{D0+e}, 0")
    TQ = list(range(Q, Q+8))
    def xch_publish():
        c("---- workgroup (max, sum) -> header for the other key half (the max is a bf16 value: the tag bits are free)")
        ML = TQ[0]; tick()
        a(f"v_mov_b32 v{HD}, 0", "s_waitcnt lgkmcnt(0)", "s_barrier")
        a(f"ds_read_b128 v[{ML}:{ML+3}], v{HD} offset:{MLo}", f"ds_read_b128 v[{ML+4}:{ML+7}], v{HD} offset:{MLo+16}", "s_waitcnt lgkmcnt(0)")
        a(f"v_max3_f32 v{MW}, v{ML}, v{ML+2}, v{ML+4}", f"v_max_f32 v{MW}, v{MW}, v{ML+6}")
        for w in range(4): a(f"v_sub_f32 v{FR[w]}, v{ML+2*w}, v{MW}")
        for w in range(4): a(f"v_mul_f32 v{FR[w]}, s{sC}, v{FR[w]}")
        for w in range(4): a(f"v_exp_f32 v{FR[w]}, v{FR[w]}")
        a(f"v_mul_f32 v{LW}, v{FR[0]}, v{ML+1}")
        for w in range(1, 4): a(f"v_fmac_f32 v{LW}, v{FR[w]}, v{ML+2*w+1}")
        a(f"v_and_b32 v{LW}, s{sTM}, v{LW}", f"s_cmp_lg_u32 s{sW}, 0", "s_cbranch_scc1 L_nohdr")
        a(f"v_or_b32 v{TQ[0]}, v{MW}, v{TAGV}", f"v_or_b32 v{TQ[1]}, v{LW}, v{TAGV}", f"v_mov_b32 v{TQ[2]}, s{sTag32}", f"v_mov_b32 v{TQ[3]}, s{sTag32}")
        a(f"s_lshl_b32 s{sTmp}, s{sI}, 7", f"s_add_u32 s{sTmp}, s{sTmp}, {HOFF}", "s_mov_b64 exec, 1")
        a(f"buffer_store_dwordx4 v[{TQ[0]}:{TQ[3]}], v{HD}, s[{sWS}:{sWS+3}], s{sTmp} offen sc1", "s_mov_b64 exec, -1", "L_nohdr:")
    def xch_load(track=True):
        a(f"s_xor_b32 s{sTmp}, s{sI}, 1", f"s_lshl_b32 s{sTmp}, s{sTmp}, 7", f"s_add_u32 s{sTmp}, s{sTmp}, {HOFF}", f"v_mov_b32 v{TQ[0]}, 0")
        x = f"buffer_load_dwordx4 v[{HD}:{HD+3}], v{TQ[0]}, s[{sWS}:{sWS+3}], s{sTmp} offen sc1"
        g.vm(x, "hd") if track else a(x)
    def xch_finish():
        c("---- per-wave factors exp((max_w - max)/16) / sum over both key halves")
        g.wait("hd", nop=False)
        a(f"s_mov_b32 s{sSpin}, 0", "L_xchk:")
        a(f"v_xor_b32 v{TQ[1]}, v{HD}, v{TAGV}", f"v_bitop3_b32 v{TQ[1]}, v{TQ[1]}, v{HD+1}, v{TAGV} bitop3:0xf6", f"v_and_b32 v{TQ[1]}, 0xff, v{TQ[1]}")
        a(f"v_xor_b32 v{TQ[2]}, s{sTag32}, v{HD+2}", f"v_xor_b32 v{TQ[3]}, s{sTag32}, v{HD+3}", f"v_or3_b32 v{TQ[1]}, v{TQ[1]}, v{TQ[2]}, v{TQ[3]}", f"v_cmp_ne_u32 vcc, 0, v{TQ[1]}", "s_cbranch_vccz L_xok")
        a(f"s_add_u32 s{sSpin}, s{sSpin}, 1", f"s_cmp_ge_u32 s{sSpin}, 0x40000", "s_cbranch_scc1 L_xok")
        xch_load(False)
        a("s_waitcnt vmcnt(0)", "s_branch L_xchk", "L_xok:")
        a(f"v_and_b32 v{HD}, s{sTM}, v{HD}", f"v_and_b32 v{HD+1}, s{sTM}, v{HD+1}", f"v_max_f32 v{TQ[1]}, v{HD}, v{MW}")
        a(f"v_sub_f32 v{HD}, v{HD}, v{TQ[1]}", f"v_sub_f32 v{MW}, v{MW}, v{TQ[1]}", f"v_mul_f32 v{HD}, s{sC}, v{HD}", f"v_mul_f32 v{MW}, s{sC}, v{MW}", f"v_exp_f32 v{HD}, v{HD}", f"v_exp_f32 v{MW}, v{MW}", "s_nop 0")
        a(f"v_mul_f32 v{HD}, v{HD}, v{HD+1}", f"v_mul_f32 v{LW}, v{MW}, v{LW}", f"v_add_f32 v{LW}, v{LW}, v{HD}", f"v_rcp_f32 v{LW}, v{LW}", "s_nop 0", f"v_mul_f32 v{MW}, v{MW}, v{LW}")
        for r in FR: a(f"v_mul_f32 v{r}, v{r}, v{MW}")
        tick()
    def rk_issue():
        c("arrival rank among the 32 workgroups of this batch")
        a(f"s_cmp_lg_u32 s{sW}, 0", "s_cbranch_scc1 L_nork1", f"s_lshl_b32 s{sTmp}, s{sB}, 12", f"s_add_u32 s{sTmp}, s{sTmp}, {COFF}", f"s_mov_b32 s{sAT}, 1", f"s_atomic_add s{sAT}, s[60:61], s{sTmp} glc", "L_nork1:")
    def rk_result():
        a(f"s_cmp_lg_u32 s{sW}, 0", "s_cbranch_scc1 L_nork2", "s_waitcnt lgkmcnt(0)", f"v_mov_b32 v{T[0]}, 0", f"v_mov_b32 v{T[1]}, s{sAT}", f"ds_write_b32 v{T[0]}, v{T[1]} offset:{MLo+64}", "L_nork2:")
    def rk_read():
        c("late arrivals switch to a deeper load window, early ones to a shallower one, some half-steps before the last block (speed only)")
        tick()
        a(f"v_mov_b32 v{T[0]}, 0", "s_waitcnt lgkmcnt(0)", "s_barrier", f"ds_read_b32 v{T[0]}, v{T[0]} offset:{MLo+64}", "s_waitcnt lgkmcnt(0)")
        a(f"v_readfirstlane_b32 s{sAT}, v{T[0]}", "s_nop 0", f"s_min_u32 s{sAT}, s{sAT}, 31")
        lag = [SIG*NormalDist().inv_cdf((r+0.5)/32) + BI for r in range(32)]
        for dst, tab in ((sSD, [min(13, max(0, round(x/GD/8))) for x in lag]), (sSS, [min(13, max(0, round(-x/GS/8))) for x in lag])):
            wds = [sum(tab[8*m+e] << (4*e) for e in range(8)) for m in range(4)]
            a(f"s_mov_b32 s{sTmp}, {hex(wds[0])}")
            for m in range(1, 4): a(f"s_cmp_ge_u32 s{sAT}, {8*m}", f"s_cselect_b32 s{sTmp}, {hex(wds[m])}, s{sTmp}")
            a(f"s_and_b32 s{sTmp2}, s{sAT}, 7", f"s_lshl_b32 s{sTmp2}, s{sTmp2}, 2", f"s_lshr_b32 s{sTmp}, s{sTmp}, s{sTmp2}", f"s_and_b32 s{sTmp}, s{sTmp}, 15", f"s_lshl_b32 s{sTmp}, s{sTmp}, 3", f"s_sub_u32 s{dst}, {256 + 224 + D2}, s{sTmp}")
    c("---- V pass: rows 0-7 of the tile take p_hi, rows 8-15 p_lo")
    vb = [sB0]
    def vissue(uu):
        d = RG + 4*(uu % 16)
        if not uu & 1: a(f"s_xor_b32 s{sOff}, s{vb[0] if uu < 32 else sB1}, {hex(perm_t((uu >> 1) & 15))}")
        a(f"buffer_load_dwordx4 v[{d}:{d+3}], v{vKV}, s[{sV}:{sV+3}], s{sOff} offen{' offset:256' if uu & 1 else ''} nt")
    def vstep(j, last, depth):
        A = AB + 4*(j & 1)
        abuild(A, PH+3, inv[j], PL+3)
        for hf in range(2):
            u = 2*j + hf
            a(f"s_waitcnt vmcnt({min(depth-1, 31-u) if last else depth-1})")
            if not (last and u + depth >= 32): vissue(u + depth)
            elif hf == 0: a("s_nop 0")
            mfma(D0 + 4*hf, A, RG + 4*(u % 16))
    def vcons(uu):
        u = uu - 256; j = (u >> 1) & 15; A = AB + 4*(j & 1)
        if not u & 1: abuild(A, PH + (u >> 5), inv[j], PL + (u >> 5)); a("s_nop 0"); g.wait(f"u{uu}")
        else: g.wait(f"u{uu}", nop=False)
        mfma(D0 + 4*(u & 1), A, RG + 4*(uu % 16))
    for x, fn in sorted(list(zip(XP, (xch_publish, xch_load, xch_finish))) + list(zip(RP, (rk_issue, rk_result, rk_read))), key=lambda e: e[0]): run(vcons, 256 + x); fn()
    run(vcons, 256 + 32*NP)
    assert not wl, len(wl)
    assert RP[2] + DV + 2 <= CF
    assert iss[0] == 256 + 32*NP + D2 and g.q[-D2:] == [f"u{256+32*NP+k}" for k in range(D2)], g.q
    c("last block: deeper window, so that late workgroups use the bandwidth the early ones leave")
    a(f"s_xor_b32 s{sRot}, s{sRot}, {hex(perm_t(16*NP))}"); vb[0] = sRot
    for uu in range(D2, DE): vissue(uu)
    a(f"v_mov_b32 v{PH+3}, v{PH+7}", f"v_mov_b32 v{PL+3}, v{PL+7}")

    c("---- epilogue addresses, biases and x slice, in the shadow of the last V block")
    aOW, aOR, aPUB, aF0, SM, SIX, aG, XS = ACC+2, ACC+3, ACC+4, 71, ACC+6, ACC+10, ACC+11, ACC+14
    B1V, B2V, aHA, aAW, aAR, aF = Q, Q+2, Q+4, Q+5, Q+6, Q+7
    aG7, TG7, aBP, aBF, TGF, aF1 = PH+4, PH+6, PL+4, PL+5, PL+6, 70
    tg, tc, t2, t3, aT = T[0], T[1], T[2], T[3], T[4]
    a(f"v_lshrrev_b32 v{tg}, 4, v{vL}", f"v_and_b32 v{tc}, 15, v{vL}")
    a(f"v_bfe_u32 v{t2}, v{vL}, 1, 2", f"v_and_b32 v{t3}, 1, v{vL}", f"v_lshl_add_u32 v{t2}, v{t2}, 1, v{t3}", f"v_bfe_u32 v{t3}, v{vL}, 4, 1", f"v_lshl_add_u32 v{t2}, v{t2}, 1, v{t3}")
    a(f"v_mul_u32_u24 v{aOW}, 80, v{t2}", f"v_lshrrev_b32 v{t2}, 5, v{vL}", f"v_bfe_u32 v{t3}, v{vL}, 3, 1", f"v_lshl_add_u32 v{t2}, v{t2}, 1, v{t3}", f"v_lshl_add_u32 v{aOW}, v{t2}, 3, v{aOW}")
    a(f"s_mul_i32 s{sTmp}, s{sW}, 1280", f"v_add_u32 v{aOW}, s{sTmp}, v{aOW}")
    a(f"v_and_b32 v{t2}, 3, v{vL}", f"v_lshl_add_u32 v{t2}, v{t2}, 2, v{tg}", f"v_mul_u32_u24 v{aOR}, 80, v{t2}", f"v_lshl_add_u32 v{aOR}, v{t3}, 5, v{aOR}")
    a(f"v_lshlrev_b32 v{t2}, 2, v{t2}", f"v_add_u32 v{aT}, v{t2}, v{t3}", f"s_mul_i32 s{sTmp}, s{sW}, 112", f"v_add_u32 v{aHA}, s{sTmp}, v{aT}", f"v_lshlrev_b32 v{aHA}, 2, v{aHA}", f"v_add_u32 v{aHA}, {HBo}, v{aHA}")
    a(f"v_lshrrev_b32 v{aAR}, 3, v{aT}", f"v_lshl_add_u32 v{aAR}, v{aT}, 1, v{aAR}", f"v_lshlrev_b32 v{aAR}, 4, v{aAR}", f"s_lshl_b32 s{sTmp}, s{sF}, 6", f"v_add_u32 v{aT}, s{sTmp}, v{aT}", f"v_lshlrev_b32 v{aT}, 1, v{aT}")
    a(f"global_load_ushort v{B1V}, v{aT}, s[50:51] nt", f"global_load_ushort v{B1V+1}, v{aT}, s[50:51] offset:4 nt")
    a(f"v_and_b32 v{t2}, 7, v{vL}", f"v_bfe_u32 v{aAW}, v{vL}, 4, 1", f"v_lshl_add_u32 v{aAW}, v{t2}, 1, v{aAW}", f"v_lshlrev_b32 v{aAW}, 7, v{aAW}", f"v_lshl_add_u32 v{aAW}, v{t3}, 2, v{aAW}", f"v_lshl_add_u32 v{aAW}, v{t2}, 4, v{aAW}")
    a(f"s_lshl_b32 s{sTmp}, s{sW}, 3", f"v_add_u32 v{aAW}, s{sTmp}, v{aAW}")
    a(f"v_lshrrev_b32 v{t2}, 5, v{vL}", f"v_lshlrev_b32 v{aPUB}, 8, v{t2}", f"v_lshl_add_u32 v{aPUB}, v{tc}, 5, v{aPUB}", f"v_and_b32 v{t3}, 16, v{vL}", f"v_add_u32 v{aPUB}, v{aPUB}, v{t3}")
    a(f"s_lshl_b32 s{sTmp}, s{sW}, 9", f"v_add_u32 v{aPUB}, s{sTmp}, v{aPUB}", f"s_cmp_eq_u32 s{sW}, 3", f"s_cselect_b32 s{sTmp2}, 15, 31")
    a(f"v_and_b32 v{t3}, 31, v{vL}", f"v_min_u32 v{t3}, s{sTmp2}, v{t3}", f"v_lshlrev_b32 v{aG}, 4, v{t3}", f"v_lshl_add_u32 v{aG}, v{t2}, 15, v{aG}", f"v_add_u32 v{aG}, s{sTmp}, v{aG}")
    c("this workgroup's own partials are taken from registers: their lanes read out of range (zero) and expect tag 0")
    a(f"v_lshrrev_b32 v{T[5]}, 4, v{t3}", f"v_and_b32 v{T[6]}, 1, v{t3}", f"v_lshl_add_u32 v{T[5]}, v{T[5]}, 1, v{T[6]}", f"v_bfe_u32 v{T[6]}, v{t3}, 1, 3", f"v_lshl_add_u32 v{T[5]}, v{T[5]}, 4, v{T[6]}", f"v_lshlrev_b32 v{aBP}, 2, v{T[5]}")
    a(f"s_cmp_lt_u32 s{sJ}, 16", "s_cselect_b32 vcc_lo, -1, 0", "s_cselect_b32 vcc_hi, 0, -1", f"v_mov_b32 v{T[5]}, 0x10000000")
    a(f"v_cndmask_b32 v{T[5]}, v{aG}, v{T[5]}, vcc", f"v_cndmask_b32 v{T[6]}, v{TAGV}, 0, vcc", f"s_bitcmp1_b32 s{sJ}, 0", "s_cselect_b64 vcc, -1, 0")
    a(f"v_cndmask_b32 v{aG7}, v{T[5]}, v{aG}, vcc", f"v_cndmask_b32 v{aG7+1}, v{aG}, v{T[5]}, vcc", f"v_cndmask_b32 v{TG7}, v{T[6]}, v{TAGV}, vcc", f"v_cndmask_b32 v{TG7+1}, v{TAGV}, v{T[6]}, vcc")
    a(f"s_lshl_b32 s{sTmp}, s{sW}, 8", f"v_lshlrev_b32 v{t3}, 3, v{t3}", f"v_add_u32 v{aF}, s{sTmp}, v{t3}")
    a(f"buffer_load_dwordx2 v[{XS}:{XS+1}], v{aF}, s[{sX}:{sX+3}], 0 offen nt", f"v_lshlrev_b32 v{aF}, 1, v{aF}")
    a(f"v_and_b32 v{t3}, 3, v{vL}", f"v_lshlrev_b32 v{t3}, 3, v{t3}", f"s_lshl_b32 s{sTmp}, s{sF}, 5", f"v_add_u32 v{t3}, s{sTmp}, v{t3}")
    a(f"global_load_dwordx2 v[{B2V}:{B2V+1}], v{t3}, s[54:55] nt")
    c("sparse-MFMA one-hot masks and index")
    a(f"v_bfe_u32 v{t2}, v{vL}, 2, 1", f"v_cmp_eq_u32 vcc, 0, v{t2}", f"v_mov_b32 v{t3}, 0xffff", f"v_and_b32 v{SIX}, 3, v{vL}")
    a(f"v_cndmask_b32 v{SM}, 0, v{t3}, vcc", f"v_cndmask_b32 v{SM+1}, v{t3}, 0, vcc", f"v_mul_u32_u24 v{SIX}, 0x5555, v{SIX}", f"v_lshlrev_b32 v{SM+2}, 16, v{SM}", f"v_lshlrev_b32 v{SM+3}, 16, v{SM+1}")
    a(f"s_cmp_eq_u32 s{sW}, 3", f"s_cselect_b32 s{sPX}, 0, 0x00ff00ff", f"s_cselect_b32 s{sEX}, 0xffff, -1", f"s_mov_b32 s{sIN}, {hex(f2u(1.0/128))}", f"s_cselect_b32 s{sIN}, {hex(f2u(1.0/64))}, s{sIN}")
    a(f"s_bfe_u32 s{sRU}, s{sJ}, 0x30001", f"s_lshl_b32 s{sGB}, s{sB}, 16", f"s_lshl_b32 s{sPB}, s{sJ}, 11", f"s_add_u32 s{sPB}, s{sPB}, s{sGB}")
    a(f"s_lshl_b32 s{sPF}, s{sMF}, 11", f"s_add_u32 s{sPF}, s{sPF}, s{sGB}", f"s_add_u32 s{sPF}, s{sPF}, {FOFF}", f"s_add_u32 s{sPB}, s{sPB}, {XOFF}", f"s_lshl_b32 s{sFB}, s{sF}, 6", f"s_add_u32 s{sFB}, s{sFB}, s{sGB}", f"s_add_u32 s{sFB}, s{sFB}, {FOFF}", f"s_add_u32 s{sGB}, s{sGB}, {XOFF}")
    for k in range(8): a(f"s_add_u32 s{sU+k}, s{sRU}, {k+1}", f"s_and_b32 s{sU+k}, s{sU+k}, 7", f"s_lshl_b32 s{sU+k}, s{sU+k}, 12", f"s_add_u32 s{sU+k}, s{sU+k}, s{sGB}")
    a(f"v_lshrrev_b32 v{T[0]}, 2, v{vL}", f"v_and_b32 v{T[1]}, 3, v{vL}", f"v_lshlrev_b32 v{T[1]}, 4, v{T[1]}", f"v_add_u32 v{T[2]}, 16, v{T[0]}", f"v_min_u32 v{T[2]}, 27, v{T[2]}")
    a(f"v_lshl_add_u32 v{aF0}, v{T[0]}, 11, v{T[1]}", f"v_lshl_add_u32 v{aF1}, v{T[2]}, 11, v{T[1]}", f"v_mov_b32 v{T[3]}, 0x10000000")
    a(f"v_cmp_eq_u32 vcc, s{sMF}, v{T[0]}", f"v_and_b32 v{T[5]}, 1, v{vL}", f"v_bfe_u32 v{T[6]}, v{vL}, 1, 1")
    a(f"v_cndmask_b32 v{aF0}, v{aF0}, v{T[3]}, vcc", f"v_cndmask_b32 v{TGF}, v{TAGV}, 0, vcc")
    a(f"v_cmp_eq_u32 vcc, s{sMF}, v{T[2]}", f"v_lshl_add_u32 v{T[5]}, v{T[5]}, 4, v{T[6]}", f"s_and_b32 s{sTmp}, s{sMF}, 3")
    a(f"v_cndmask_b32 v{aF1}, v{aF1}, v{T[3]}, vcc", f"v_cndmask_b32 v{TGF+1}, v{TAGV}, 0, vcc")
    a(f"s_lshl_b32 s{sTmp}, s{sTmp}, 1", f"s_bfe_u32 s{sTmp2}, s{sMF}, 0x10002", f"s_lshl_b32 s{sTmp2}, s{sTmp2}, 5", f"s_add_u32 s{sTmp}, s{sTmp}, s{sTmp2}")
    sFW = sR
    a(f"v_add_u32 v{aBF}, s{sTmp}, v{T[5]}", f"v_lshlrev_b32 v{aBF}, 2, v{aBF}", f"s_lshr_b32 s{sFW}, s{sMF}, 3")
    if XPF:
        c("pull this wave's own hand-off lines on die ahead of time (values unused)")
        a("s_mov_b32 exec_lo, 0x00110011", f"s_and_b32 exec_hi, s{sPX}, 0x00110011")
        a(f"buffer_load_dword v{T[7]}, v{aPUB}, s[{sWS}:{sWS+3}], s{sPB} offen sc1", f"buffer_load_dword v{T[7]}, v{aPUB}, s[{sWS}:{sWS+3}], s{sPF} offen sc1", "s_mov_b64 exec, -1")
    for j in range(16): vstep(j, True, DE)

    c("---- o partial (hi + lo rows) -> LDS -> normalised sum of the four waves, bf16")
    a("s_nop 7")
    for t in range(4): a(f"v_permlane32_swap_b32 v{D0+t}, v{D1+t}")
    for t, r in enumerate((0, 2, 1, 3)): a(f"v_add_f32 v{AB+r}, v{D0+t}, v{D1+t}")
    a(f"ds_write_b64 v{aOW}, v[{AB}:{AB+1}] offset:{OPo}", f"ds_write_b64 v{aOW}, v[{AB+2}:{AB+3}] offset:{OPo+32}", "s_waitcnt lgkmcnt(0)", "s_barrier")
    for w in range(4):
        for hh in range(2): a(f"ds_read_b128 v[{RG+8*w+4*hh}:{RG+8*w+4*hh+3}], v{aOR} offset:{OPo + w*1280 + 16*hh}")
    for e in range(8): a(f"v_mov_b32 v{D0+e}, 0")
    for w in range(4):
        a(f"s_waitcnt lgkmcnt({6-2*w})")
        Fp = (F0, F0, F2, F2)[w]; o = w & 1
        for k in range(4):
            r = RG + 2*k
            if w == 0: a(f"v_pk_mul_f32 v[{r}:{r+1}], v[{r}:{r+1}], v[{Fp}:{Fp+1}] op_sel_hi:[1,0]")
            else: a(f"v_pk_fma_f32 v[{r}:{r+1}], v[{r+8*w}:{r+8*w+1}], v[{Fp}:{Fp+1}], v[{r}:{r+1}] op_sel:[0,{o},0] op_sel_hi:[1,{o},1]")
    S = PL
    for u in range(4): a(f"v_cvt_pk_bf16_f32 v{S+u}, v{RG+2*u}, v{RG+2*u+1}")
    def sbuild(dst, n, ts):
        for t in ts: a(f"v_and_b32_dpp v{dst+t}, v{S + (n >> 2)}, v{SM+t} quad_perm:[{n&3},{n&3},{n&3},{n&3}] row_mask:0xf bank_mask:0xf")
    def smf(d, A, B, br): a(f"v_smfmac_f32_16x16x64_bf16 v[{d}:{d+3}], v[{A}:{A+3}], {br}[{B}:{B+7}], v{SIX}")
    BUF = [AB, AB+4, PH]
    def proj(nj, breg, br):
        sbuild(BUF[0], 0, range(4)); sbuild(BUF[1], 1, range(4))
        for jj in range(nj):
            A, nA = BUF[jj % 3], BUF[(jj+2) % 3]
            smf(D0, A, breg + (jj*2)*8, br)
            if jj + 2 < nj: sbuild(nA, jj+2, (0, 1))
            smf(D1, A, breg + (jj*2+1)*8, br)
            if jj + 2 < nj: sbuild(nA, jj+2, (2, 3))
    def publish(so):
        a("s_nop 7")
        for t in range(4): a(f"v_permlane32_swap_b32 v{D0+t}, v{D1+t}")
        for t in range(4): a(f"v_add_f32_dpp v{D0+t}, v{D1+t}, v{D0+t} row_ror:8 row_mask:0xf bank_mask:0xf")
        for t in range(4): a(f"v_bfi_b32 v{AB+t}, s{sTM}, v{D0+t}, v{TAGV}")
        a("s_mov_b32 exec_lo, 0x00ff00ff", f"s_mov_b32 exec_hi, s{sPX}")
        a(f"buffer_store_dwordx4 v[{AB}:{AB+3}], v{aPUB}, s[{sWS}:{sWS+3}], s{so} offen sc1", "s_mov_b64 exec, -1")
    c("---- y partial = o @ wo[head]: wave w owns columns 128w..128w+127, 16 rows x 64 columns per sparse MFMA")
    proj(16, 0, "a")
    publish(sPB)
    a(f"s_cmp_ge_u32 s{sMF}, 28", "s_cbranch_scc1 L_end")
    c("---- hand-off X: sum the 32 partials of this batch (8 slots of 4 producers); lanes 32-63 start from x")
    GA, CK, R2 = D0, T[1], RG+32
    def gissue(r, so, own=False):
        a(f"buffer_load_dwordx4 v[{r}:{r+3}], v{aG7 if own else aG}, s[{sWS}:{sWS+3}], s{so} offen sc1")
        a(f"buffer_load_dwordx4 v[{r+4}:{r+7}], v{aG7+1 if own else aG}, s[{sWS}:{sWS+3}], s{so} offen offset:2048 sc1")
    def tagchk(r, ta=TAGV, tb=TAGV):
        a(f"v_xor_b32 v{CK}, v{r}, v{ta}", f"v_xor_b32 v{T[2]}, v{r+4}, v{tb}")
        a(f"v_bitop3_b32 v{CK}, v{CK}, v{r+2}, v{ta} bitop3:0xf6", f"v_bitop3_b32 v{T[2]}, v{T[2]}, v{r+6}, v{tb} bitop3:0xf6")
        a(f"v_bitop3_b32 v{CK}, v{CK}, v{T[2]}, s{sTM} bitop3:0x54", f"v_cmp_ne_u32 vcc, 0, v{CK}")
    pa = lambda x, y, z=None: f"v_pk_add_f32 v[{x}:{x+1}], v[{x if z is None else z}:{(x if z is None else z)+1}], v[{y}:{y+1}]"
    def gacc(r, L, k):
        tagchk(r, TG7, TG7+1) if k == 7 else tagchk(r)
        a(pa(r, r+4), pa(r+2, r+6), f"s_cbranch_vccnz {L}", pa(GA, r), pa(GA+2, r+2))
        if k is not None: a(f"s_bitset0_b32 s{sDone}, {k}")
    for e in range(4): a(f"ds_bpermute_b32 v{GA+e}, v{aBP}, v{AB+e}")
    for k in range(8): gissue(RG+8*k, sU+k, k == 7)
    a(f"s_movk_i32 s{sDone}, 0xff", f"s_mov_b32 s{sSpin}, 0", "s_waitcnt lgkmcnt(0)", "s_mov_b32 exec_lo, 0")
    unpack(GA, XS, 2)
    a("s_mov_b32 exec_lo, -1")
    for k in range(8):
        a(f"s_waitcnt vmcnt({14-2*k})"); gacc(RG+8*k, f"L_g0_{k}", k); a(f"L_g0_{k}:")
    a(f"s_cmp_eq_u32 s{sDone}, 0", "s_cbranch_scc1 L_gdone")
    for k in range(8):
        a(f"s_bitcmp1_b32 s{sDone}, {k}", f"s_cbranch_scc0 L_g1_{k}"); gissue(RG+8*k, sU+k, k == 7); a(f"L_g1_{k}:")
    a("L_gtop:", "s_waitcnt vmcnt(0)")
    for k in range(8):
        a(f"s_bitcmp1_b32 s{sDone}, {k}", f"s_cbranch_scc0 L_gb_{k}"); gacc(RG+8*k, f"L_gf_{k}", k); a(f"L_gb_{k}:")
    a(f"s_bcnt1_i32_b32 s{sTmp}, s{sDone}", "s_cbranch_scc0 L_gdone")
    a(f"s_bitcmp1_b32 s{sDone}, 7", "s_cbranch_scc1 L_gmany", f"s_cmp_eq_u32 s{sTmp}, 1", "s_cbranch_scc1 L_gone", "L_gmany:")
    a(f"s_add_u32 s{sSpin}, s{sSpin}, 1", f"s_cmp_lt_u32 s{sSpin}, 0x40000", "s_cbranch_scc1 L_gtop", "s_branch L_gdone")
    for k in range(8):
        a(f"L_gf_{k}:"); gissue(RG+8*k, sU+k, k == 7); a(f"s_branch L_gb_{k}")
    a("L_gone:")
    a(f"s_ff1_i32_b32 s{sTmp2}, s{sDone}", f"s_add_u32 s{sTmp2}, s{sTmp2}, s{sRU}", f"s_add_u32 s{sTmp2}, s{sTmp2}, 1", f"s_and_b32 s{sTmp2}, s{sTmp2}, 7", f"s_lshl_b32 s{sTmp2}, s{sTmp2}, 12", f"s_add_u32 s{sTmp2}, s{sTmp2}, s{sGB}")
    a("L_gone1:"); gissue(RG, sTmp2)
    a(f"s_add_u32 s{sSpin}, s{sSpin}, 1", f"s_cmp_ge_u32 s{sSpin}, 0x40000", "s_cbranch_scc1 L_gdone", "s_waitcnt vmcnt(0)")
    gacc(RG, "L_gone1", None)
    a("L_gdone:")
    c("---- h slice (fp32) and its mean / centred sum of squares (pivot = first element)")
    S1, S2, H4, XF = R2+10, R2+11, R2+4, R2
    for e in range(4): a(f"v_mov_b32 v{GA+4+e}, v{GA+e}")
    a(f"v_mov_b32 v{S1}, 0", f"v_mov_b32 v{S2}, 0")
    for e in range(4): a(f"v_permlane32_swap_b32 v{GA+4+e}, v{GA+e}")
    a(pa(GA, GA+4), pa(GA+2, GA+6))
    a(f"s_lshl_b32 s{sCnt}, s{sW}, 3", f"v_readlane_b32 s{sTmp2}, v{GA}, 0", f"ds_write_b128 v{aF}, v[{GA}:{GA+3}] offset:{HBo}", f"s_mov_b32 exec_lo, s{sEX}")
    neg = "op_sel_hi:[1,0] neg_lo:[0,1] neg_hi:[0,1]"
    a(f"v_pk_add_f32 v[{H4}:{H4+1}], v[{GA}:{GA+1}], s[{sTmp2}:{sTmp2+1}] {neg}", f"v_pk_add_f32 v[{H4+2}:{H4+3}], v[{GA+2}:{GA+3}], s[{sTmp2}:{sTmp2+1}] {neg}")
    a(f"v_pk_mul_f32 v[{XF}:{XF+1}], v[{H4}:{H4+1}], v[{H4}:{H4+1}]", pa(XF+2, H4+2, H4), f"v_pk_fma_f32 v[{XF}:{XF+1}], v[{H4+2}:{H4+3}], v[{H4+2}:{H4+3}], v[{XF}:{XF+1}]")
    a(f"v_add_f32 v{S1}, v{XF+2}, v{XF+3}", f"v_add_f32 v{S2}, v{XF}, v{XF+1}", "s_mov_b32 exec_lo, -1")
    fill = [f"v_mov_b32 v{T[0]}, s{sCnt}", f"v_mov_b32 v{T[1]}, 0", f"v_mov_b32 v{D0}, 0", f"v_mov_b32 v{D0+1}, 0", f"v_mov_b32 v{D0+2}, 0"]
    for ctl in ("row_ror:8 row_mask:0xf", "row_ror:4 row_mask:0xf", "row_ror:2 row_mask:0xf", "row_ror:1 row_mask:0xf", "row_bcast:15 row_mask:0x2"):
        a(fill.pop(0))
        for r in (S1, S2): a(f"v_add_f32_dpp v{r}, v{r}, v{r} {ctl} bank_mask:0xf")
    a(f"v_mul_f32 v{XF}, s{sIN}, v{S1}", f"v_mov_b32 v{D0+3}, 0", f"v_fma_f32 v{S2}, -v{XF}, v{S1}, v{S2}", f"v_add_f32 v{S1}, s{sTmp2}, v{XF}")
    a("s_mov_b32 exec_lo, 0x10000", "s_mov_b32 exec_hi, 0", f"ds_write_b64 v{T[0]}, v[{S1}:{S1+1}] offset:{STo}", "s_mov_b64 exec, -1", "s_waitcnt lgkmcnt(0)", "s_barrier")
    c("---- combine the four slices (128,128,128,64 columns) into mean and variance of h")
    ST, E, MU, RS = R2, R2+16, T[4], T[6]
    a(f"ds_read_b128 v[{ST}:{ST+3}], v{T[1]} offset:{STo}", f"ds_read_b128 v[{ST+4}:{ST+7}], v{T[1]} offset:{STo+16}")
    a(f"ds_read2_b32 v[{E}:{E+1}], v{aHA} offset0:0 offset1:2", f"ds_read2_b32 v[{E+2}:{E+3}], v{aHA} offset0:64 offset1:66", "s_waitcnt lgkmcnt(2)")
    a(f"v_add_f32 v{MU}, v{ST}, v{ST+2}", f"v_fma_f32 v{T[5]}, v{ST+6}, 0.5, v{ST+4}", f"v_add_f32 v{RS}, v{ST+1}, v{ST+3}", f"v_add_f32 v{MU}, v{MU}, v{T[5]}", f"v_add_f32 v{T[7]}, v{ST+5}, v{ST+7}")
    a(f"v_mul_f32 v{MU}, {hex(f2u(2.0/7))}, v{MU}", f"v_add_f32 v{RS}, v{RS}, v{T[7]}")
    for w in range(4): a(f"v_sub_f32 v{ST+2*w}, v{ST+2*w}, v{MU}")
    a(f"v_mul_f32 v{T[5]}, v{ST+6}, v{ST+6}", f"v_mul_f32 v{T[7]}, v{ST}, v{ST}", f"v_mul_f32 v{RS}, {inv448}, v{RS}")
    a(f"v_fmac_f32 v{T[7]}, v{ST+2}, v{ST+2}", f"v_fmac_f32 v{RS}, {hex(f2u(1.0/7))}, v{T[5]}", f"v_fmac_f32 v{T[7]}, v{ST+4}, v{ST+4}", "s_waitcnt lgkmcnt(0)")
    a(f"v_pk_add_f32 v[{E}:{E+1}], v[{E}:{E+1}], v[{MU}:{MU+1}] {neg}", f"v_fmac_f32 v{RS}, {hex(f2u(2.0/7))}, v{T[7]}")
    c("both layer norms: z1 = (h-mu)/sqrt(var+eps) has mean 0 and variance var/(var+eps), hence")
    c("LN(z1) = z1/sqrt(var/(var+eps) + eps) = (h-mu)/sqrt(var + eps*(var+eps))")
    a(f"v_pk_add_f32 v[{E+2}:{E+3}], v[{E+2}:{E+3}], v[{MU}:{MU+1}] {neg}", f"v_add_f32 v{T[5]}, {eps}, v{RS}", f"v_fmac_f32 v{RS}, {eps}, v{T[5]}", f"v_rsq_f32 v{RS}, v{RS}", "s_nop 0")
    a(f"v_pk_mul_f32 v[{E}:{E+1}], v[{E}:{E+1}], v[{RS}:{RS+1}] op_sel_hi:[1,0]", f"v_pk_mul_f32 v[{E+2}:{E+3}], v[{E+2}:{E+3}], v[{RS}:{RS+1}] op_sel_hi:[1,0]")
    a(f"v_cvt_pk_bf16_f32 v{S}, v{E}, v{E+1}", f"v_cvt_pk_bf16_f32 v{S+1}, v{E+2}, v{E+3}", "s_nop 0")
    c("---- w1 slice: wave w takes rows 112w..112w+111, partials summed through LDS")
    sbuild(AB, 0, range(4))
    for jj in range(7):
        nA = AB + 4*((jj+1) & 1)
        if jj < 6: sbuild(nA, jj+1, (0, 1))
        else: a("s_nop 1")
        smf(D0, AB + 4*(jj & 1), W1R + 8*jj, "v")
        if jj < 6: sbuild(nA, jj+1, (2, 3))
    a(f"v_lshlrev_b32 v{B1V}, 16, v{B1V}", f"v_lshlrev_b32 v{B1V+1}, 16, v{B1V+1}", "s_mov_b32 exec_lo, 0x00ff00ff", "s_mov_b32 exec_hi, 0xff00ff00", "s_nop 3")
    for t in range(4): a(f"ds_write_b32 v{aAW}, v{D0+t} offset:{APo + 32*t}")
    a("s_mov_b64 exec, -1", "s_waitcnt lgkmcnt(0)", "s_barrier")
    for k in range(4): a(f"ds_read_b128 v[{R2+4*k}:{R2+4*k+3}], v{aAR} offset:{APo + 64*(k >> 1) + 16*(k & 1)}")
    for e in range(8): a(f"v_mov_b32 v{D0+e}, 0")
    G2, U2 = T[4], T[6]
    for x in range(2):
        r = R2 + 8*x
        a(f"s_waitcnt lgkmcnt({2-2*x})", pa(r, r+2), pa(r+4, r+6), pa(r, r+4), f"v_add_f32 v{G2+x}, v{r}, v{r+1}")
    c("GELU(tanh form): 0.5 a (1 + tanh u) = a / (1 + exp(-2u)), u = sqrt(2/pi) (a + 0.044715 a^3)")
    beta, kap = 0.7978845608028654, 0.044715
    a(pa(G2, B1V), f"v_pk_mul_f32 v[{U2}:{U2+1}], v[{G2}:{G2+1}], v[{G2}:{G2+1}]")
    for x in range(2): a(f"v_mul_f32 v{U2+x}, {hex(f2u(kap))}, v{U2+x}")
    a(f"v_pk_fma_f32 v[{U2}:{U2+1}], v[{U2}:{U2+1}], v[{G2}:{G2+1}], v[{G2}:{G2+1}]")
    for x in range(2): a(f"v_mul_f32 v{U2+x}, {hex(f2u(-2*beta*math.log2(math.e)))}, v{U2+x}")
    for x in range(2): a(f"v_exp_f32 v{U2+x}, v{U2+x}")
    a("s_nop 0")
    for x in range(2): a(f"v_add_f32 v{U2+x}, 1.0, v{U2+x}")
    for x in range(2): a(f"v_rcp_f32 v{U2+x}, v{U2+x}")
    a("s_nop 0", f"v_pk_mul_f32 v[{G2}:{G2+1}], v[{G2}:{G2+1}], v[{U2}:{U2+1}]", f"v_cvt_pk_bf16_f32 v{S}, v{G2}, v{G2+1}", "s_nop 1")
    c("---- w2 slice, hand-off F")
    proj(4, W2R, "v")
    publish(sPF)
    c("---- the wave that holds columns 16j..16j+15 sums the 28 partials, adds b2 and h, stores the output")
    a(f"s_cmp_lg_u32 s{sW}, s{sFW}", "s_cbranch_scc1 L_end")
    FA, FB, FH, FO, aO = R2, R2+8, R2+12, R2+20, T[4]
    def fissue():
        a(f"buffer_load_dwordx4 v[{FA}:{FA+3}], v{aF0}, s[{sWS}:{sWS+3}], s{sFB} offen sc1", f"buffer_load_dwordx4 v[{FA+4}:{FA+7}], v{aF1}, s[{sWS}:{sWS+3}], s{sFB} offen sc1")
    fissue()
    for e in range(4): a(f"ds_bpermute_b32 v{FO+e}, v{aBF}, v{AB+e}")
    a(f"s_lshl_b32 s{sTmp}, s{sMF}, 5", f"v_and_b32 v{aO}, 3, v{vL}", f"v_lshlrev_b32 v{aO}, 3, v{aO}", f"v_add_lshl_u32 v{T[5]}, s{sTmp}, v{aO}, 1", f"ds_read_b128 v[{FH}:{FH+3}], v{T[5]} offset:{HBo}")
    unpack(FB, B2V, 2)
    a(f"s_mul_i32 s{sCnt}, s{sB}, 896", f"s_add_u32 s{sCnt}, s{sCnt}, s{sTmp}")
    srd(sX, 56, None, 3584*2)
    a(f"s_mov_b32 s{sSpin}, 0", "s_waitcnt lgkmcnt(0)", pa(FO, FB), pa(FO+2, FB+2), pa(FB, FH, FO), pa(FB+2, FH+2, FO+2), "s_branch L_fchk", "L_fpoll:")
    fissue()
    a(f"s_add_u32 s{sSpin}, s{sSpin}, 1", f"s_cmp_ge_u32 s{sSpin}, 0x40000", "s_cbranch_scc1 L_fdone", "L_fchk:", "s_waitcnt vmcnt(0)")
    tagchk(FA, TGF, TGF+1)
    a("s_mov_b32 exec_hi, 0xffff", pa(FA, FA+4), pa(FA+2, FA+6), "s_mov_b32 exec_hi, -1", "s_cbranch_vccnz L_fpoll", "L_fdone:")
    for rot in (4, 8):
        for e in range(4): a(f"v_add_f32_dpp v{FA+e}, v{FA+e}, v{FA+e} row_ror:{rot} row_mask:0xf bank_mask:0xf")
    for sw in ("v_permlane16_swap_b32", "v_permlane32_swap_b32"):
        for e in range(4): a(f"v_mov_b32 v{FA+4+e}, v{FA+e}")
        for e in range(4): a(f"{sw} v{FA+4+e}, v{FA+e}")
        a(pa(FA, FA+4), pa(FA+2, FA+6))
    a(pa(FA, FB), pa(FA+2, FB+2), f"v_cvt_pk_bf16_f32 v{FA}, v{FA}, v{FA+1}", f"v_cvt_pk_bf16_f32 v{FA+1}, v{FA+2}, v{FA+3}", "s_mov_b64 exec, 15")
    a(f"buffer_store_dwordx2 v[{FA}:{FA+1}], v{aO}, s[{sX}:{sX+3}], s{sCnt} offen")
    if stamps:
        a("s_memrealtime s[98:99]", "s_mul_i32 s96, s2, 24", "s_add_u32 s46, s60, 0x20000000", "s_addc_u32 s47, s61, 0", "s_waitcnt lgkmcnt(0)")
        a("v_mov_b32 v2, s96", "v_mov_b32 v12, s100", "v_mov_b32 v13, s101", "v_mov_b32 v14, s98", "v_mov_b32 v15, s99", "global_store_dwordx2 v2, v[12:13], s[46:47]", "global_store_dwordx2 v2, v[14:15], s[46:47] offset:8")
    c("every reader of this batch's epoch word has published by now: advance it")
    a(f"s_cmp_lg_u32 s{sMF}, 0", "s_cbranch_scc1 L_end")
    a(f"s_lshl_b32 s{sTmp}, s{sB}, 7", f"v_mov_b32 v{T[5]}, s{sTag32}", "s_mov_b64 exec, 1", f"buffer_store_dword v{T[5]}, v{aO}, s[{sWS}:{sWS+3}], s{sTmp} offen")
    a("L_end:", "s_endpgm")
    a('.section .rodata,"a"', ".p2align 6", f".amdhsa_kernel {NAME}_kernel")
    for x in ("next_free_vgpr 512", "next_free_sgpr 102", "accum_offset 256", "group_segment_fixed_size 0", "kernarg_size 104", "user_sgpr_count 2",
              "user_sgpr_kernarg_segment_ptr 1", "system_sgpr_workgroup_id_x 1", "float_denorm_mode_32 3"): g.o.append("  .amdhsa_" + x)
    a(".end_amdhsa_kernel")
    return "\n".join(g.o) + "\n"

if __name__ == "__main__":
    kw = dict(x.split("=") for x in sys.argv[2:])
    open(sys.argv[1], "w").write(gen(**{k: eval(v) for k, v in kw.items()}))
```

```python
import sys, struct, math
NAME = "sequential_preLN__mha_block_cached__mixer_channel_mlp__decode"
def f2u(x): return struct.unpack("<I", struct.pack("<f", x))[0]

class G:
    def __init__(s): s.o = []; s.q = []; s.lab = 0
    def __call__(s, *xs): s.o.extend("    " + x if not x.endswith(":") and not x.startswith((".", ";")) else x for x in xs)
    def vm(s, text, tag): s(text); s.q.append(tag)
    def wait(s, tag, nop=True):
        if tag not in s.q:
            if nop: s("s_nop 0")
            return
        idx = max(i for i, t in enumerate(s.q) if t == tag)
        n = len(s.q) - 1 - idx; assert n <= 63
        s(f"s_waitcnt vmcnt({n})"); s.q = s.q[idx+1:]
    def count(s, tag):
        return len(s.q) - 1 - max(i for i, t in enumerate(s.q) if t == tag) if tag in s.q else None
    def label(s, p): s.lab += 1; return f"{p}_{s.lab}"

HEADER = """\
;
"""

from statistics import NormalDist
def gen(NST=32, NX=24, DQ=3, K0=4, DH=6, DV=5, DE=15, CPF=0, GN=0, PB=0, AW=3, SX=0, SF=0, S0=0, FAST=1, FROT=0, stamps=0, HPF=2, XPF=0, RCU=7, WEV=3.0, NP=7, D2=7, DS=4, RP=(100, 124, 132), CF=142, SIG=1.2, BI=0.45, GD=0.03, GS=0.05, R1=None, SIG1=0.8, BI1=0.3, BPF=7, QPF=0, WOF=0, WST=0, BAT=0, QAT=0, QS=0, QROW=1, QPOL='', WPOL='', BPOL='', XP=(16, 56, 84),
        PW=(10, 13, 12, 16, 11, 9, 15, 18, 14, 17, 19), PHS=((14, 4), (17, 1), (19, 132))):
    g = G(); a = g
    def c(t): a("; " + t)
    def perm_t(t): return sum(((t >> k) & 1) << PW[4+k] for k in range(7))
    ROFF, HOFF, XOFF, FOFF = 0x0, 0x8000, 0x10000, 0x100000
    vL, vKV = 0, 1
    T = list(range(2, 10))
    MK, Q, PH, PL, ACC, D0, D1, AB = 10, 14, 22, 30, 38, 54, 58, 62
    X8 = AB
    RG, W1R, W2R, WQR = 72, 136, 192, 136
    sK, sV, sWQ, sWO, sW1, sW2, sX, sWS = 4, 8, 12, 16, 20, 24, 28, 32
    sW, sI, sH, sB, sJ, sF, sOff, sRot, sCnt, sTmp, sTmp2, sR, sTag32, sC, sHI, sTM = range(62, 78)
    sPX, sGB, sU, sRU, sFB, sSpin, sPB, sPF, sDone, sEX, sIN = 78, 79, 80, 88, 89, 90, 91, 92, 93, 94, 95
    COFF, sAT, sSD, sSS = 0x90000, 82, 81, 80
    sB1, sB0, sEnd1 = 83, 84, 85

    a("; @launch grid=(256,1,1) block=(256,1,1) lds=16384")
    g.o.append(HEADER.rstrip("\n"))
    a('.amdgcn_target "amdgcn-amd-amdhsa--gfx950"', ".text", f".globl {NAME}_kernel", ".p2align 8", f".type {NAME}_kernel,@function", f"{NAME}_kernel:")
    a("s_cmp_ge_u32 s2, 256", "s_cbranch_scc1 L_end")
    if stamps: a("s_memrealtime s[100:101]")
    a("s_load_dwordx16 s[36:51], s[0:1], 0", "s_load_dwordx8 s[52:59], s[0:1], 64", "s_load_dwordx2 s[60:61], s[0:1], 96")
    a(f"v_lshrrev_b32 v{T[0]}, 6, v0", f"v_and_b32 v{vL}, 63, v0", f"v_readfirstlane_b32 s{sW}, v{T[0]}")
    c("i = (wg&7)*32 + (wg>>3): workgroups that share a head's weights tend to share an L2.  h = i>>4, b = (i>>1)&7, j = 2h + (i&1)")
    a(f"s_and_b32 s{sI}, s2, 7", f"s_lshl_b32 s{sI}, s{sI}, 5", f"s_lshr_b32 s{sTmp}, s2, 3", f"s_add_u32 s{sI}, s{sI}, s{sTmp}")
    a(f"s_lshr_b32 s{sH}, s{sI}, 4", f"s_bfe_u32 s{sB}, s{sI}, 0x30001", f"s_and_b32 s{sTmp}, s{sI}, 1")
    a(f"s_lshl_b32 s{sJ}, s{sH}, 1", f"s_add_u32 s{sJ}, s{sJ}, s{sTmp}")
    c("lane l = (g = l>>4, c = l&15) reads 16 B at column c of the row picked by g, the wave and the step")
    a(f"v_lshrrev_b32 v{T[0]}, 4, v{vL}", f"v_and_b32 v{T[1]}, 15, v{vL}", f"v_lshlrev_b32 v{T[2]}, 4, v{T[1]}")
    a(f"v_and_b32 v{T[3]}, 1, v{T[0]}", f"v_lshl_add_u32 v{vKV}, v{T[3]}, {PW[0]}, v{T[2]}", f"v_lshrrev_b32 v{T[3]}, 1, v{T[0]}", f"v_lshl_add_u32 v{vKV}, v{T[3]}, {PW[1]}, v{vKV}")
    a(f"s_and_b32 s{sTmp}, s{sW}, 1", f"s_lshl_b32 s{sTmp}, s{sTmp}, {PW[2]}", f"s_lshr_b32 s{sTmp2}, s{sW}, 1", f"s_lshl_b32 s{sTmp2}, s{sTmp2}, {PW[3]}", f"s_or_b32 s{sTmp}, s{sTmp}, s{sTmp2}")
    a(f"v_add_u32 v{vKV}, s{sTmp}, v{vKV}")
    c("wq rows of step j: 112w + 16(j>>2) + (j&3) + 4g ; x gather for the same rows")
    a(f"s_mul_i32 s{sTmp}, s{sW}, {112*8192}", f"v_lshl_add_u32 v{T[3]}, v{T[0]}, {15 if QROW else 13}, v{T[2]}", f"v_add_u32 v{T[3]}, s{sTmp}, v{T[3]}")
    if QROW: a(f"v_lshrrev_b32 v{T[5]}, 2, v{T[1]}", f"v_lshl_add_u32 v{T[5]}, v{T[5]}, 2, v{T[0]}", f"v_and_b32 v{T[4]}, 3, v{T[1]}", f"v_lshl_add_u32 v{T[5]}, v{T[5]}, 2, v{T[4]}")
    else: a(f"v_lshl_add_u32 v{T[5]}, v{T[1]}, 2, v{T[0]}")
    a(f"v_lshlrev_b32 v{T[4]}, 4, v{vL}", f"s_mul_i32 s{sTmp}, s{sW}, 112", f"v_add_u32 v{T[5]}, s{sTmp}, v{T[5]}", f"v_lshlrev_b32 v{T[5]}, 1, v{T[5]}")
    c("K/V chunk = (32b + j) MiB; the walk through it starts at a workgroup-specific phase")
    a(f"s_lshl_b32 s{sTmp2}, s{sB}, 5", f"s_add_u32 s{sTmp2}, s{sTmp2}, s{sJ}", f"s_lshl_b32 s{sTmp2}, s{sTmp2}, 20", f"s_mov_b32 s{sRot}, 0")
    for k, m in PHS:
        if m & (m-1) == 0: a(f"s_bitcmp1_b32 s{sI}, {m.bit_length()-1}")
        else: a(f"s_and_b32 s{sTmp}, s{sI}, {m}", f"s_bcnt1_i32_b32 s{sTmp}, s{sTmp}", f"s_bitcmp1_b32 s{sTmp}, 0")
        a(f"s_cselect_b32 s{sTmp}, {1 << k}, 0", f"s_xor_b32 s{sRot}, s{sRot}, s{sTmp}")
    a(f"s_mov_b32 s{sK+2}, {1 << 20}", f"s_mov_b32 s{sK+3}, 0x20000", "s_waitcnt lgkmcnt(0)")
    a(f"s_add_u32 s{sK}, s38, s{sTmp2}", f"s_addc_u32 s{sK+1}, s39, 0", f"s_and_b32 s{sK+1}, s{sK+1}, 0xffff")
    iss = [0]
    NS = 2*NST + NX
    def hdst(u):
        if u < 2*NST: return ("a", 4*u)
        if u < NS: return ("v", 256 - 4*(NS - u))
        return ("v", RG + 4*(u % 16))
    def hissue():
        u = iss[0]; iss[0] += 1
        r, d = hdst(u); srdn = sK if u < 256 else sV
        if not u & 1: a(f"s_xor_b32 s{sOff}, s{sRot}, {hex(perm_t((u >> 1) & 127))}")
        g.vm(f"buffer_load_dwordx4 {r}[{d}:{d+3}], v{vKV}, s[{srdn}:{srdn+3}], s{sOff} offen{' offset:256' if u & 1 else ''} nt", f"u{u}")
    for _ in range(K0): hissue()
    def srd(s, lo, off, nrec):
        if off is None: a(f"s_mov_b32 s{s}, s{lo}", f"s_and_b32 s{s+1}, s{lo+1}, 0xffff")
        else: a(f"s_add_u32 s{s}, s{lo}, s{off}", f"s_addc_u32 s{s+1}, s{lo+1}, 0", f"s_and_b32 s{s+1}, s{s+1}, 0xffff")
        a(f"s_mov_b32 s{s+2}, {nrec}", f"s_mov_b32 s{s+3}, 0x20000")
    sMF = 3
    a(f"s_add_u32 s{sMF}, s{sJ}, {FROT}", f"s_and_b32 s{sMF}, s{sMF}, 31")
    a(f"s_min_u32 s{sF}, s{sMF}, 27", f"s_mul_i32 s{sTmp}, s{sB}, 896")
    srd(sX, 36, sTmp, 896)
    g.vm(f"buffer_load_dwordx4 v[{X8}:{X8+3}], v{T[4]}, s[{sX}:{sX+3}], 0 offen nt", "x")
    g.vm(f"buffer_load_ushort v{PH}, v{T[5]}, s[{sX}:{sX+3}], 0 offen nt", "x")
    g.vm(f"buffer_load_ushort v{PH+1}, v{T[5]}, s[{sX}:{sX+3}], 0 offen offset:128 nt", "x")
    a(f"s_lshl_b32 s{sTmp}, s{sH}, 9")
    srd(sWQ, 42, sTmp, 0)
    a(f"s_sub_u32 s{sWQ+2}, {448*8192}, s{sTmp}")
    def bulk():
        c("bulk L2 prefetch of the wo / w2 / w1 lines used by the 32 workgroups of this group, one unit of whole DRAM rows per wave (values unused)")
        a(f"s_and_b32 s96, s{sI}, 31", "s_lshl_b32 s96, s96, 2", f"s_add_u32 s96, s96, s{sW}", f"s_lshr_b32 s97, s{sI}, 5", f"s_mov_b32 s{sW2+3}, 0x20000")
        a("s_cmp_ge_u32 s96, 96", "s_cbranch_scc1 L_bw1", "s_cmp_ge_u32 s96, 64", "s_cbranch_scc1 L_bw2")
        c("wo: 14 blocks of 32 KiB x 4 lines")
        a(f"s_mov_b32 s{sW2}, s44", f"s_and_b32 s{sW2+1}, s45, 0xffff", f"s_mul_i32 s98, s97, {14*32768}", f"s_add_u32 s{sW2+2}, s98, {14*32768 if BPF & 1 else 0}", "s_lshl_b32 s96, s96, 9", "s_add_u32 s98, s98, s96")
        a(f"v_lshrrev_b32 v{T[5]}, 2, v{vL}", f"v_and_b32 v{T[6]}, 3, v{vL}", f"v_lshlrev_b32 v{T[5]}, 15, v{T[5]}", "s_branch L_bgo", "L_bw2:")
        c("w2: 7 blocks x 8 lines")
        a(f"s_lshr_b32 s97, s{sMF}, 2")
        a(f"s_mov_b32 s{sW2}, s52", f"s_and_b32 s{sW2+1}, s53, 0xffff", f"s_mul_i32 s98, s97, {7*32768}", f"s_add_u32 s{sW2+2}, s98, {7*32768 if BPF & 2 else 0}", f"s_min_u32 s{sW2+2}, s{sW2+2}, {1792*896}")
        a("s_sub_u32 s96, s96, 64", "s_lshl_b32 s96, s96, 10", "s_add_u32 s98, s98, s96")
        a(f"v_lshrrev_b32 v{T[5]}, 3, v{vL}", f"v_and_b32 v{T[6]}, 7, v{vL}", f"v_lshlrev_b32 v{T[5]}, 15, v{T[5]}", "s_branch L_bgo", "L_bw1:")
        c("w1: 16 rows x 4 lines")
        a(f"s_lshr_b32 s97, s{sMF}, 2")
        a(f"s_mov_b32 s{sW2}, s48", f"s_and_b32 s{sW2+1}, s49, 0xffff", "s_cmp_eq_u32 s97, 7", f"s_cselect_b32 s{sW2+2}, 0, {448*3584 if BPF & 4 else 0}")
        a("s_sub_u32 s96, s96, 96", f"s_mul_i32 s98, s96, {16*3584}", "s_lshl_b32 s97, s97, 9", "s_add_u32 s98, s98, s97")
        a(f"v_lshrrev_b32 v{T[5]}, 2, v{vL}", f"v_and_b32 v{T[6]}, 3, v{vL}", f"v_mul_u32_u24 v{T[5]}, 3584, v{T[5]}", "L_bgo:")
        a(f"v_lshl_add_u32 v{T[5]}, v{T[6]}, 7, v{T[5]}")
        g.vm(f"buffer_load_dword v71, v{T[5]}, s[{sW2}:{sW2+3}], s98 offen{BPOL}", "pf")
        if CPF:
            c("this kernel's own code: 3 lines per wave")
            a("s_getpc_b64 s[96:97]", "L_pc:", f"s_and_b32 s98, s{sI}, 31", "s_lshl_b32 s98, s98, 2", f"s_add_u32 s98, s98, s{sW}", "s_lshl_b32 s98, s98, 7")
            a(f"v_lshlrev_b32 v{T[5]}, 14, v{vL}", f"v_add_u32 v{T[5]}, s98, v{T[5]}", f"v_min_u32 v{T[5]}, L_end-L_pc, v{T[5]}", "s_mov_b64 exec, 7")
            g.vm(f"global_load_dword v70, v{T[5]}, s[96:97]", "pf")
            a("s_mov_b64 exec, -1")
        if HPF:
            c("the hand-off lines come on die in the same burst: 4 lines of X, 4 of F, 1 header line per wave (values unused)")
            srd(sWS, 60, None, 0x200000)
            a(f"s_lshl_b32 s96, s{sI}, 2", f"s_add_u32 s96, s96, s{sW}", "s_lshl_b32 s97, s96, 9", "s_lshl_b32 s96, s96, 5")
            a(f"v_and_b32 v{T[5]}, 3, v{vL}", f"v_lshlrev_b32 v{T[5]}, 7, v{T[5]}", f"v_add_u32 v{T[5]}, s97, v{T[5]}", f"v_bfe_u32 v{T[6]}, v{vL}, 2, 1", f"v_mul_u32_u24 v{T[6]}, {hex(FOFF - XOFF)}, v{T[6]}")
            a(f"s_add_u32 s96, s96, {HOFF}", f"s_mov_b32 s97, {XOFF}", f"v_add3_u32 v{T[5]}, v{T[5]}, v{T[6]}, s97", f"v_writelane_b32 v{T[5]}, s96, 8", "s_mov_b64 exec, 0x1ff")
            g.vm(f"buffer_load_dword v70, v{T[5]}, s[{sWS}:{sWS+3}], 0 offen{' sc1' if HPF == 2 else ''}", "pf")
            a("s_mov_b64 exec, -1")
    def qload(j):
        dst = WQR + 8*(j % DQ)
        a(f"s_mov_b32 s{sTmp}, {(16*(j >> 2) + (j & 3))*8192 if QROW else j*32768}")
        g.vm(f"buffer_load_dwordx4 v[{dst}:{dst+3}], v{T[3]}, s[{sWQ}:{sWQ+3}], s{sTmp} offen{QPOL}", f"q{j}a")
        g.vm(f"buffer_load_dwordx4 v[{dst+4}:{dst+7}], v{T[3]}, s[{sWQ}:{sWQ+3}], s{sTmp} offen offset:256{QPOL}", f"q{j}b")
    def kstage_upto(n):
        while iss[0] < n: hissue()
    def quota(j): return min(NS, K0 + math.ceil((j+1)*(NS-K0)/28))
    for j in range(DQ):
        qload(j); kstage_upto(quota(j))
        if BPF and BAT == j: bulk()
        if j == 1:
            srd(sV, 40, sTmp2, 1 << 20)
            a(f"s_lshl_b32 s{sTmp}, s{sB}, 7", f"s_load_dword s{sR}, s[60:61], s{sTmp}")
    c("one-hot masks of the MFMA A operand: row i keeps element i&7 of its 8-element group")
    a(f"s_mov_b32 s{sHI}, 0xffff0000", f"s_mov_b32 s{sTM}, 0xffffff00", f"s_mov_b32 s{sC}, {hex(f2u(math.log2(math.e)/16))}")
    a(f"v_and_b32 v{T[6]}, 1, v{vL}", f"v_lshlrev_b32 v{T[6]}, 4, v{T[6]}", f"v_mov_b32 v{T[2]}, 0xffff", f"v_lshlrev_b32 v{T[2]}, v{T[6]}, v{T[2]}", f"v_bfe_u32 v{T[6]}, v{vL}, 1, 2")
    for t in range(4): a(f"v_cmp_eq_u32 vcc, {t}, v{T[6]}", "s_nop 1", f"v_cndmask_b32 v{MK+t}, 0, v{T[2]}, vcc")

    def allred(op, regs, tmp):
        for rot in (8, 4, 2, 1):
            a(f"s_nop {2-len(regs)}")
            for r in regs: a(f"{op}_dpp v{r}, v{r}, v{r} row_ror:{rot} row_mask:0xf bank_mask:0xf")
        for sw in ("v_permlane16_swap_b32", "v_permlane32_swap_b32"):
            for r, t in zip(regs, tmp): a(f"v_mov_b32 v{t}, v{r}")
            a("s_nop 1")
            for r, t in zip(regs, tmp): a(f"{sw} v{t}, v{r}")
            a("s_nop 1")
            for r, t in zip(regs, tmp): a(f"{op} v{r}, v{r}, v{t}")
    def bfr(r): a(f"v_cvt_pk_bf16_f32 v{r}, v{r}, v{r}", f"v_and_b32 v{r}, s{sHI}, v{r}")
    def unpack(dst, src, n):
        for k in range(n): a(f"v_lshlrev_b32 v{dst+2*k}, 16, v{src+k}", f"v_and_b32 v{dst+2*k+1}, s{sHI}, v{src+k}")
    def abuild(dst, src, lane, src2=None):
        for t in range(4): a(f"v_and_b32_dpp v{dst+t}, v{src}, v{MK+t} row_newbcast:{lane} row_mask:0xf bank_mask:{'0xf' if src2 is None else '0x3'}")
        if src2 is not None:
            for t in range(4): a(f"v_and_b32_dpp v{dst+t}, v{src2}, v{MK+t} row_newbcast:{lane} row_mask:0xf bank_mask:0xc")
    def mfma(d, A, B, zero=False): a(f"v_mfma_f32_16x16x32_bf16 v[{d}:{d+3}], v[{A}:{A+3}], v[{B}:{B+3}], {'0' if zero else f'v[{d}:{d+3}]'}")

    c("---- LN(x[b]) with the reference's bf16 rounding points; variance around a pivot element")
    g.wait("x")
    mu, rs, t0, t1 = ACC+8, ACC+9, ACC+10, ACC+11
    unpack(ACC, X8, 4)
    a(f"v_lshlrev_b32 v{PH}, 16, v{PH}", f"v_lshlrev_b32 v{PH+1}, 16, v{PH+1}")
    a(f"v_readlane_b32 s{sTmp}, v{ACC}, 0", f"v_mov_b32 v{mu}, 0", f"v_mov_b32 v{rs}, 0", "s_mov_b32 exec_hi, 0x00ffffff")
    for k in range(8): a(f"v_subrev_f32 v{t0}, s{sTmp}, v{ACC+k}", f"v_add_f32 v{mu}, v{mu}, v{t0}", f"v_fmac_f32 v{rs}, v{t0}, v{t0}")
    a("s_mov_b32 exec_hi, -1")
    allred("v_add_f32", [mu, rs], [t0, t1])
    inv448, eps = hex(f2u(1.0/448)), hex(f2u(1e-5))
    a(f"v_mul_f32 v{mu}, {inv448}, v{mu}", f"v_mul_f32 v{rs}, {inv448}, v{rs}")
    a(f"v_fma_f32 v{rs}, -v{mu}, v{mu}, v{rs}", f"v_add_f32 v{mu}, s{sTmp}, v{mu}", f"v_max_f32 v{rs}, 0, v{rs}")
    bfr(mu); bfr(rs); a(f"v_add_f32 v{rs}, {eps}, v{rs}"); bfr(rs)
    a(f"v_sqrt_f32 v{rs}, v{rs}", "s_nop 0"); bfr(rs); a(f"v_rcp_f32 v{rs}, v{rs}", "s_nop 0")
    for r in (PH, PH+1):
        a(f"v_sub_f32 v{r}, v{r}, v{mu}"); bfr(r); a(f"v_mul_f32 v{r}, v{r}, v{rs}", f"v_cvt_pk_bf16_f32 v{r}, v{r}, v{r}")
    a("s_nop 1")
    c("---- q partial of this wave's 112 rows of wq")
    for j in range(28):
        A = AB + 4*(j & 1); dst = WQR + 8*(j % DQ)
        abuild(A, PH + (j >> 4), j & 15); a("s_nop 0")
        g.wait(f"q{j}a"); mfma(D0, A, dst, j == 0)
        g.wait(f"q{j}b"); mfma(D1, A, dst+4, j == 0)
        if j + DQ < 28: qload(j+DQ); kstage_upto(quota(j+DQ))
        if BPF and BAT == j + DQ: bulk()
    kstage_upto(NS + DH)
    c("---- sum the four partials through LDS, round q to bf16")
    a(f"v_and_b32 v{T[0]}, 15, v{vL}", f"v_lshlrev_b32 v{T[0]}, 5, v{T[0]}", f"v_and_b32 v{T[1]}, 16, v{vL}", f"v_add_u32 v{T[1]}, v{T[0]}, v{T[1]}")
    a(f"s_lshl_b32 s{sTmp}, s{sW}, 10", f"v_add_u32 v{T[1]}, s{sTmp}, v{T[1]}", "s_nop 2")
    a(f"ds_write_b128 v{T[1]}, v[{D0}:{D0+3}]", f"ds_write_b128 v{T[1]}, v[{D1}:{D1+3}] offset:512", "s_waitcnt lgkmcnt(0)", "s_barrier")
    busy = {hdst(u)[1] for u in range(2*NST, iss[0])}
    QG = [r for r in list(range(WQR, 256, 4)) + list(range(RG, RG+64, 4)) if r not in busy][:16]
    assert len(QG) == 16
    for k in range(16): a(f"ds_read_b128 v[{QG[k]}:{QG[k]+3}], v{T[0]} offset:{((k >> 1) & 3)*1024 + (k >> 3)*512 + (k & 1)*16}")
    a(f"s_mul_i32 s{sTmp}, s{sH}, {256*896}"); srd(sWO, 44, sTmp, 256*896)
    a(f"s_lshl_b32 s{sTmp}, s{sF}, 7"); srd(sW1, 48, sTmp, 0); a(f"s_sub_u32 s{sW1+2}, {448*3584}, s{sTmp}")
    a(f"s_mul_i32 s{sTmp}, s{sF}, {64*896}"); srd(sW2, 52, sTmp, 64*896)
    c("workgroups with j >= 28 own no MLP slice: empty descriptors")
    a(f"s_cmp_ge_u32 s{sMF}, 28", f"s_cselect_b32 s{sW1+2}, 0, s{sW1+2}", f"s_cselect_b32 s{sW2+2}, 0, s{sW2+2}")
    if not HPF: srd(sWS, 60, None, 0x200000)
    c("arrival counter of this batch starts from zero (used 40 us later, for the load-window choice only)")
    a(f"s_or_b32 s{sTmp}, s{sJ}, s{sW}", "s_cbranch_scc1 L_noclr", f"s_lshl_b32 s{sTmp}, s{sB}, 12", f"s_add_u32 s{sTmp}, s{sTmp}, {COFF}", f"v_mov_b32 v70, 0", "s_mov_b64 exec, 1")
    if R1: a(f"buffer_store_dword v70, v70, s[{sWS}:{sWS+3}], s{sTmp} offen offset:2048 sc1")
    a(f"buffer_store_dword v70, v70, s[{sWS}:{sWS+3}], s{sTmp} offen sc1", "s_mov_b64 exec, -1", "L_noclr:")
    for hf in range(2):
        a(f"s_waitcnt lgkmcnt({8*(1-hf)})")
        q_ = lambda w, e: QG[(hf*4 + w)*2 + (e >> 2)] + (e & 3)
        pa = lambda x, y: f"v_pk_add_f32 v[{x}:{x+1}], v[{x}:{x+1}], v[{y}:{y+1}]"
        for e in range(0, 8, 2): a(pa(q_(0,e), q_(1,e)), pa(q_(2,e), q_(3,e)))
        for e in range(0, 8, 2): a(pa(q_(0,e), q_(2,e)))
        for e in range(4): a(f"v_cvt_pk_bf16_f32 v{Q+hf*4+e}, v{q_(0,2*e)}, v{q_(0,2*e)+1}")
    a(f"s_add_u32 s{sTag32}, s{sR}, 1")
    c("weight addresses: wo/w2 (2g + (c>>3))*896 + (16w + (c&7))*16 (+128 for the second column pass, out of range for wave 3); w1 (112w + 2g + (c>>3))*3584 + (c&7)*16")
    a(f"v_lshrrev_b32 v{T[0]}, 4, v{vL}", f"v_bfe_u32 v{T[1]}, v{vL}, 3, 1", f"v_lshl_add_u32 v{T[0]}, v{T[0]}, 1, v{T[1]}")
    a(f"v_and_b32 v{T[1]}, 7, v{vL}", f"s_lshl_b32 s{sTmp}, s{sW}, 4", f"v_add_u32 v{T[4]}, s{sTmp}, v{T[1]}", f"v_lshlrev_b32 v{T[4]}, 4, v{T[4]}")
    a(f"s_movk_i32 s{sTmp}, 896", f"v_mad_u32_u24 v{T[2]}, v{T[0]}, s{sTmp}, v{T[4]}")
    a(f"s_cmp_eq_u32 s{sW}, 3", f"s_cselect_b32 s{sTmp}, 0x10000000, 0", f"s_add_u32 s{sTmp}, s{sTmp}, 128", f"v_add_u32 v{T[4]}, s{sTmp}, v{T[2]}")
    a(f"s_mul_i32 s{sTmp}, s{sW}, 112", f"v_add_u32 v{T[0]}, s{sTmp}, v{T[0]}", f"v_lshlrev_b32 v{T[1]}, 4, v{T[1]}", f"s_movk_i32 s{sTmp}, 3584", f"v_mad_u32_u24 v{T[3]}, v{T[0]}, s{sTmp}, v{T[1]}")

    if BPF and BAT < 0: bulk()
    c("---- K pass")
    lanemap = [None]
    def kreduce(n):
        regs = [(ACC+j, [j]*16) for j in range(16)]
        a("s_nop 2")
        def lvl(regs, ctrl, m0, m1, sel):
            out = []
            for (r0, l0), (r1, l1) in zip(regs[0::2], regs[1::2]):
                a(f"v_add_f32_dpp v{r0}, v{r0}, v{r0} {ctrl} row_mask:0xf bank_mask:{m0}")
                out.append((r0, [l0[i] if sel(i) == 0 else l1[i] for i in range(16)]))
            for (r0, l0), (r1, l1) in zip(regs[0::2], regs[1::2]):
                a(f"v_add_f32_dpp v{r0}, v{r1}, v{r1} {ctrl} row_mask:0xf bank_mask:{m1}")
            return out
        regs = lvl(regs, "row_mirror", "0x3", "0xc", lambda i: i >> 3)
        tick()
        regs = lvl(regs, "row_half_mirror", "0x5", "0xa", lambda i: (i >> 2) & 1)
        for qp in ("[1,0,3,2]", "[2,3,0,1]"):
            for r, _ in regs: a(f"v_add_f32_dpp v{r}, v{r}, v{r} quad_perm:{qp} row_mask:0xf bank_mask:0xf")
        a("s_mov_b32 vcc_lo, 0xaaaaaaaa", "s_mov_b32 vcc_hi, 0xaaaaaaaa")
        a(f"v_cndmask_b32 v{regs[0][0]}, v{regs[0][0]}, v{regs[1][0]}, vcc", f"v_cndmask_b32 v{regs[2][0]}, v{regs[2][0]}, v{regs[3][0]}, vcc")
        a("s_mov_b32 vcc_lo, 0xcccccccc", "s_mov_b32 vcc_hi, 0xcccccccc", f"v_cndmask_b32 v{PH+n}, v{regs[0][0]}, v{regs[2][0]}, vcc")
        lanemap[0] = [regs[i & 3][1][i] for i in range(16)]
    wl = []
    def vneed(r): return max([-1] + [u for u in range(2*NST, NS) if hdst(u)[1] == r])
    def smov(v): return f"s_movk_i32 s{sTmp}, {v}" if v < 32768 else f"s_mov_b32 s{sTmp}, {v}"
    for jj in range(7):
        for L in range(2):
            r = W1R + 8*jj + 4*L
            wl.append((smov(3584*(16*jj + 8*L)), f"buffer_load_dwordx4 v[{r}:{r+3}], v{T[3]}, s[{sW1}:{sW1+3}], s{sTmp} offen{WPOL}", vneed(r)))
    for nj, rf, base, sr in ((4, "v", W2R, sW2), (16, "a", 0, sWO)):
        for jj in range(nj):
            for L in range(2):
                for ps in range(2):
                    r = base + (jj*2+ps)*8 + 4*L
                    need = vneed(r) if rf == "v" else (r//4 if r//4 < 2*NST else -1)
                    wl.append((smov(896*(16*jj + 8*L)), f"buffer_load_dwordx4 {rf}[{r}:{r+3}], v{T[2+2*ps]}, s[{sr}:{sr+3}], s{sTmp} offen{WPOL}", need))
    if WOF: wl = wl[30:] + wl[:30]
    def kcons(u):
        acc = ACC + (u >> 1) % 16; hf = u & 1
        g.wait(f"u{u}", nop=False)
        r, d = hdst(u)
        if r == "a":
            for e in range(4): a(f"v_accvgpr_read_b32 v{D0+4*hf+e}, a{d+e}")
            d = D0 + 4*hf
        for e in range(4): a(f"v_dot2_f32_bf16 v{acc}, v{d+e}, v{Q+4*hf+e}, {'0' if e == 0 and hf == 0 else f'v{acc}'}")
        if u % 32 == 31: kreduce(u // 32)
    def dep(u): return DH if u < 256 else (DV if u < 256 + CF else D2)
    st = dict(con=0, wc=0.0, n=0)
    def tick():
        u = iss[0]; depth = dep(u)
        if not (u - 16 < st["con"] or u - 16 < NS): return False
        g.wait(f"u{u-depth}", nop=False)
        if u >= 256 + CF:
            nn, ns = g.count(f"u{u-DV}"), g.count(f"u{u-DS}")
            L = g.label("L_w")
            a(f"s_cmpk_le_u32 s{sSD}, {u}", f"s_cbranch_scc1 {L}")
            if nn is not None: a(f"s_waitcnt vmcnt({nn})")
            if ns is not None and GS < 1: a(f"s_cmpk_le_u32 s{sSS}, {u}", f"s_cbranch_scc0 {L}", f"s_waitcnt vmcnt({ns})")
            a(f"{L}:")
        hissue(); st["n"] += 1
        if st["n"] > WST: st["wc"] += 1.0/WEV
        if wl and st["wc"] >= 1:
            k = next((k for k, w in enumerate(wl) if st["con"] > w[2]), None)
            if k is not None:
                s0, ld, _ = wl.pop(k); a(s0); g.vm(ld, "w"); st["wc"] -= 1
        return True
    def run(cons, end):
        while st["con"] < end:
            depth = dep(iss[0])
            can = tick() if iss[0] - st["con"] <= depth or st["con"] < NS + 16 else False
            n = 0
            while st["con"] < end and n < RCU and iss[0] - st["con"] > depth:
                u = st["con"]; st["con"] += 1; cons(u); n += 1
            assert can or n
    run(kcons, 256)
    inv = [lanemap[0].index(j) for j in range(16)]
    c("---- softmax numerators of this wave's 512 keys: scores rounded to bf16 as in the reference, true max, p = hi + lo in bf16")
    MC, LS = ACC, ACC+1
    for n in range(8): bfr(PH+n)
    a(f"v_max3_f32 v{MC}, v{PH}, v{PH+1}, v{PH+2}", f"v_max3_f32 v{MC}, v{MC}, v{PH+3}, v{PH+4}", f"v_max3_f32 v{MC}, v{MC}, v{PH+5}, v{PH+6}", f"v_max_f32 v{MC}, v{MC}, v{PH+7}")
    allred("v_max_f32", [MC], [T[0]]); tick()
    for n in range(8): a(f"v_sub_f32 v{PH+n}, v{PH+n}, v{MC}")
    for n in range(8): a(f"v_mul_f32 v{PH+n}, s{sC}, v{PH+n}")
    for n in range(8): a(f"v_exp_f32 v{PH+n}, v{PH+n}")
    a(f"v_add_f32 v{LS}, v{PH}, v{PH+1}")
    for n in range(2, 8): a(f"v_add_f32 v{LS}, v{LS}, v{PH+n}")
    for n in range(8):
        a(f"v_cvt_pk_bf16_f32 v{T[0]}, v{PH+n}, v{PH+n}", f"v_and_b32 v{T[1]}, s{sHI}, v{T[0]}", f"v_sub_f32 v{T[1]}, v{PH+n}, v{T[1]}")
        a(f"v_cvt_pk_bf16_f32 v{PL+n}, v{T[1]}, v{T[1]}", f"v_mov_b32 v{PH+n}, v{T[0]}")
    tick(); allred("v_add_f32", [LS], [T[0]])
    OPo, MLo, HBo, STo, APo = 0, 5120, 5248, 7296, 7424
    TAGV, F0, F2, MW, LW, HD = ACC+5, ACC, ACC+12, ACC+2, ACC+3, ACC+6
    FR = (F0, F0+1, F2, F2+1)
    a(f"s_lshl_b32 s{sTmp}, s{sW}, 3", f"v_mov_b32 v{T[0]}, s{sTmp}", f"ds_write_b64 v{T[0]}, v[{MC}:{MC+1}] offset:{MLo}")
    a(f"s_and_b32 s{sTmp}, s{sTag32}, 0xff", f"v_mov_b32 v{TAGV}, s{sTmp}")
    for e in range(8): a(f"v_mov_b32 v{D0+e}, 0")
    TQ = list(range(Q, Q+8))
    def xch_publish():
        c("---- workgroup (max, sum) -> header for the other key half (the max is a bf16 value: the tag bits are free)")
        ML = TQ[0]; tick()
        a(f"v_mov_b32 v{HD}, 0", "s_waitcnt lgkmcnt(0)", "s_barrier")
        a(f"ds_read_b128 v[{ML}:{ML+3}], v{HD} offset:{MLo}", f"ds_read_b128 v[{ML+4}:{ML+7}], v{HD} offset:{MLo+16}", "s_waitcnt lgkmcnt(0)")
        a(f"v_max3_f32 v{MW}, v{ML}, v{ML+2}, v{ML+4}", f"v_max_f32 v{MW}, v{MW}, v{ML+6}")
        for w in range(4): a(f"v_sub_f32 v{FR[w]}, v{ML+2*w}, v{MW}")
        for w in range(4): a(f"v_mul_f32 v{FR[w]}, s{sC}, v{FR[w]}")
        for w in range(4): a(f"v_exp_f32 v{FR[w]}, v{FR[w]}")
        a(f"v_mul_f32 v{LW}, v{FR[0]}, v{ML+1}")
        for w in range(1, 4): a(f"v_fmac_f32 v{LW}, v{FR[w]}, v{ML+2*w+1}")
        a(f"v_and_b32 v{LW}, s{sTM}, v{LW}", f"s_cmp_lg_u32 s{sW}, 0", "s_cbranch_scc1 L_nohdr")
        a(f"v_or_b32 v{TQ[0]}, v{MW}, v{TAGV}", f"v_or_b32 v{TQ[1]}, v{LW}, v{TAGV}", f"v_mov_b32 v{TQ[2]}, s{sTag32}", f"v_mov_b32 v{TQ[3]}, s{sTag32}")
        a(f"s_lshl_b32 s{sTmp}, s{sI}, 7", f"s_add_u32 s{sTmp}, s{sTmp}, {HOFF}", "s_mov_b64 exec, 1")
        a(f"buffer_store_dwordx4 v[{TQ[0]}:{TQ[3]}], v{HD}, s[{sWS}:{sWS+3}], s{sTmp} offen sc1", "s_mov_b64 exec, -1", "L_nohdr:")
    def xch_load(track=True):
        a(f"s_xor_b32 s{sTmp}, s{sI}, 1", f"s_lshl_b32 s{sTmp}, s{sTmp}, 7", f"s_add_u32 s{sTmp}, s{sTmp}, {HOFF}", f"v_mov_b32 v{TQ[0]}, 0")
        x = f"buffer_load_dwordx4 v[{HD}:{HD+3}], v{TQ[0]}, s[{sWS}:{sWS+3}], s{sTmp} offen sc1"
        g.vm(x, "hd") if track else a(x)
    def xch_finish():
        c("---- per-wave factors exp((max_w - max)/16) / sum over both key halves")
        g.wait("hd", nop=False)
        a(f"s_mov_b32 s{sSpin}, 0", "L_xchk:")
        a(f"v_xor_b32 v{TQ[1]}, v{HD}, v{TAGV}", f"v_bitop3_b32 v{TQ[1]}, v{TQ[1]}, v{HD+1}, v{TAGV} bitop3:0xf6", f"v_and_b32 v{TQ[1]}, 0xff, v{TQ[1]}")
        a(f"v_xor_b32 v{TQ[2]}, s{sTag32}, v{HD+2}", f"v_xor_b32 v{TQ[3]}, s{sTag32}, v{HD+3}", f"v_or3_b32 v{TQ[1]}, v{TQ[1]}, v{TQ[2]}, v{TQ[3]}", f"v_cmp_ne_u32 vcc, 0, v{TQ[1]}", "s_cbranch_vccz L_xok")
        a(f"s_add_u32 s{sSpin}, s{sSpin}, 1", f"s_cmp_ge_u32 s{sSpin}, 0x40000", "s_cbranch_scc1 L_xok")
        xch_load(False)
        a("s_waitcnt vmcnt(0)", "s_branch L_xchk", "L_xok:")
        a(f"v_and_b32 v{HD}, s{sTM}, v{HD}", f"v_and_b32 v{HD+1}, s{sTM}, v{HD+1}", f"v_max_f32 v{TQ[1]}, v{HD}, v{MW}")
        a(f"v_sub_f32 v{HD}, v{HD}, v{TQ[1]}", f"v_sub_f32 v{MW}, v{MW}, v{TQ[1]}", f"v_mul_f32 v{HD}, s{sC}, v{HD}", f"v_mul_f32 v{MW}, s{sC}, v{MW}", f"v_exp_f32 v{HD}, v{HD}", f"v_exp_f32 v{MW}, v{MW}", "s_nop 0")
        a(f"v_mul_f32 v{HD}, v{HD}, v{HD+1}", f"v_mul_f32 v{LW}, v{MW}, v{LW}", f"v_add_f32 v{LW}, v{LW}, v{HD}", f"v_rcp_f32 v{LW}, v{LW}", "s_nop 0", f"v_mul_f32 v{MW}, v{MW}, v{LW}")
        for r in FR: a(f"v_mul_f32 v{r}, v{r}, v{MW}")
        tick()
    def rk_issue(k=0):
        c("arrival rank among the 32 workgroups of this batch")
        a(f"s_movk_i32 s{sSD}, 0x7fff", f"s_movk_i32 s{sSS}, 0x7fff")
        a(f"s_cmp_lg_u32 s{sW}, 0", f"s_cbranch_scc1 L_nork1{k}", f"s_lshl_b32 s{sTmp}, s{sB}, 12", f"s_add_u32 s{sTmp}, s{sTmp}, {COFF + 2048*k}", f"s_mov_b32 s{sAT}, 1", f"s_atomic_add s{sAT}, s[60:61], s{sTmp} glc", f"L_nork1{k}:")
    def rk_result(k=0):
        a(f"s_cmp_lg_u32 s{sW}, 0", f"s_cbranch_scc1 L_nork2{k}", "s_waitcnt lgkmcnt(0)", f"v_mov_b32 v{T[0]}, 0", f"v_mov_b32 v{T[1]}, s{sAT}", f"ds_write_b32 v{T[0]}, v{T[1]} offset:{MLo+64+4*k}", f"L_nork2{k}:")
    def rk_read(k=0):
        sig, bi, end = (SIG1, BI1, 256 + RP[0] + D2) if k else (SIG, BI, 256 + 224 + D2)
        c("late arrivals switch to a deeper load window, early ones to a shallower one, some half-steps before the last block (speed only)")
        tick()
        a(f"v_mov_b32 v{T[0]}, 0", "s_waitcnt lgkmcnt(0)", "s_barrier", f"ds_read_b32 v{T[0]}, v{T[0]} offset:{MLo+64+4*k}", "s_waitcnt lgkmcnt(0)")
        a(f"v_readfirstlane_b32 s{sAT}, v{T[0]}", "s_nop 0", f"s_min_u32 s{sAT}, s{sAT}, 31")
        lag = [sig*NormalDist().inv_cdf((r+0.5)/32) + bi for r in range(32)]
        for dst, tab in ((sSD, [min(13, max(0, round(x/GD/8))) for x in lag]), (sSS, [min(13, max(0, round(-x/GS/8))) for x in lag])):
            wds = [sum(tab[8*m+e] << (4*e) for e in range(8)) for m in range(4)]
            a(f"s_mov_b32 s{sTmp}, {hex(wds[0])}")
            for m in range(1, 4): a(f"s_cmp_ge_u32 s{sAT}, {8*m}", f"s_cselect_b32 s{sTmp}, {hex(wds[m])}, s{sTmp}")
            a(f"s_and_b32 s{sTmp2}, s{sAT}, 7", f"s_lshl_b32 s{sTmp2}, s{sTmp2}, 2", f"s_lshr_b32 s{sTmp}, s{sTmp}, s{sTmp2}", f"s_and_b32 s{sTmp}, s{sTmp}, 15", f"s_lshl_b32 s{sTmp}, s{sTmp}, 3", f"s_sub_u32 s{dst}, {end}, s{sTmp}")
    c("---- V pass: rows 0-7 of the tile take p_hi, rows 8-15 p_lo")
    vb = [sB0]
    def vissue(uu):
        d = RG + 4*(uu % 16)
        if not uu & 1: a(f"s_xor_b32 s{sOff}, s{vb[0] if uu < 32 else sB1}, {hex(perm_t((uu >> 1) & 15))}")
        a(f"buffer_load_dwordx4 v[{d}:{d+3}], v{vKV}, s[{sV}:{sV+3}], s{sOff} offen{' offset:256' if uu & 1 else ''} nt")
    def vstep(j, last, depth):
        A = AB + 4*(j & 1)
        abuild(A, PH+3, inv[j], PL+3)
        for hf in range(2):
            u = 2*j + hf
            a(f"s_waitcnt vmcnt({min(depth-1, 31-u) if last else depth-1})")
            if not (last and u + depth >= 32): vissue(u + depth)
            elif hf == 0: a("s_nop 0")
            mfma(D0 + 4*hf, A, RG + 4*(u % 16))
    def vcons(uu):
        u = uu - 256; j = (u >> 1) & 15; A = AB + 4*(j & 1)
        if not u & 1: abuild(A, PH + (u >> 5), inv[j], PL + (u >> 5)); a("s_nop 0"); g.wait(f"u{uu}")
        else: g.wait(f"u{uu}", nop=False)
        mfma(D0 + 4*(u & 1), A, RG + 4*(uu % 16))
    for x, fn in sorted(list(zip(XP, (xch_publish, xch_load, xch_finish))) + list(zip(RP, (rk_issue, rk_result, rk_read))) + (list(zip(R1, (lambda: rk_issue(1), lambda: rk_result(1), lambda: rk_read(1)))) if R1 else []), key=lambda e: e[0]): run(vcons, 256 + x); fn()
    run(vcons, 256 + 32*NP)
    assert not wl, len(wl)
    assert (R1 or RP)[0] + DV + 2 <= CF
    assert iss[0] == 256 + 32*NP + D2 and g.q[-D2:] == [f"u{256+32*NP+k}" for k in range(D2)], g.q
    c("last block: deeper window, so that late workgroups use the bandwidth the early ones leave")
    a(f"s_xor_b32 s{sRot}, s{sRot}, {hex(perm_t(16*NP))}"); vb[0] = sRot
    for uu in range(D2, DE): vissue(uu)
    a(f"v_mov_b32 v{PH+3}, v{PH+7}", f"v_mov_b32 v{PL+3}, v{PL+7}")

    c("---- epilogue addresses, biases and x slice, in the shadow of the last V block")
    aOW, aOR, aPUB, aF0, SM, SIX, aG, XS = ACC+2, ACC+3, ACC+4, 71, ACC+6, ACC+10, ACC+11, ACC+14
    B1V, B2V, aHA, aAW, aAR, aF = Q, Q+2, Q+4, Q+5, Q+6, Q+7
    aG7, TG7, aBP, aBF, TGF, aF1 = PH+4, PH+6, PL+4, PL+5, PL+6, 70
    tg, tc, t2, t3, aT = T[0], T[1], T[2], T[3], T[4]
    a(f"v_lshrrev_b32 v{tg}, 4, v{vL}", f"v_and_b32 v{tc}, 15, v{vL}")
    a(f"v_bfe_u32 v{t2}, v{vL}, 1, 2", f"v_and_b32 v{t3}, 1, v{vL}", f"v_lshl_add_u32 v{t2}, v{t2}, 1, v{t3}", f"v_bfe_u32 v{t3}, v{vL}, 4, 1", f"v_lshl_add_u32 v{t2}, v{t2}, 1, v{t3}")
    a(f"v_mul_u32_u24 v{aOW}, 80, v{t2}", f"v_lshrrev_b32 v{t2}, 5, v{vL}", f"v_bfe_u32 v{t3}, v{vL}, 3, 1", f"v_lshl_add_u32 v{t2}, v{t2}, 1, v{t3}", f"v_lshl_add_u32 v{aOW}, v{t2}, 3, v{aOW}")
    a(f"s_mul_i32 s{sTmp}, s{sW}, 1280", f"v_add_u32 v{aOW}, s{sTmp}, v{aOW}")
    a(f"v_and_b32 v{t2}, 3, v{vL}", f"v_lshl_add_u32 v{t2}, v{t2}, 2, v{tg}", f"v_mul_u32_u24 v{aOR}, 80, v{t2}", f"v_lshl_add_u32 v{aOR}, v{t3}, 5, v{aOR}")
    a(f"v_lshlrev_b32 v{t2}, 2, v{t2}", f"v_add_u32 v{aT}, v{t2}, v{t3}", f"s_mul_i32 s{sTmp}, s{sW}, 112", f"v_add_u32 v{aHA}, s{sTmp}, v{aT}", f"v_lshlrev_b32 v{aHA}, 2, v{aHA}", f"v_add_u32 v{aHA}, {HBo}, v{aHA}")
    a(f"v_lshrrev_b32 v{aAR}, 3, v{aT}", f"v_lshl_add_u32 v{aAR}, v{aT}, 1, v{aAR}", f"v_lshlrev_b32 v{aAR}, 4, v{aAR}", f"s_lshl_b32 s{sTmp}, s{sF}, 6", f"v_add_u32 v{aT}, s{sTmp}, v{aT}", f"v_lshlrev_b32 v{aT}, 1, v{aT}")
    a(f"global_load_ushort v{B1V}, v{aT}, s[50:51] nt", f"global_load_ushort v{B1V+1}, v{aT}, s[50:51] offset:4 nt")
    a(f"v_and_b32 v{t2}, 7, v{vL}", f"v_bfe_u32 v{aAW}, v{vL}, 4, 1", f"v_lshl_add_u32 v{aAW}, v{t2}, 1, v{aAW}", f"v_lshlrev_b32 v{aAW}, 7, v{aAW}", f"v_lshl_add_u32 v{aAW}, v{t3}, 2, v{aAW}", f"v_lshl_add_u32 v{aAW}, v{t2}, 4, v{aAW}")
    a(f"s_lshl_b32 s{sTmp}, s{sW}, 3", f"v_add_u32 v{aAW}, s{sTmp}, v{aAW}")
    a(f"v_lshrrev_b32 v{t2}, 5, v{vL}", f"v_lshlrev_b32 v{aPUB}, 8, v{t2}", f"v_lshl_add_u32 v{aPUB}, v{tc}, 5, v{aPUB}", f"v_and_b32 v{t3}, 16, v{vL}", f"v_add_u32 v{aPUB}, v{aPUB}, v{t3}")
    a(f"s_lshl_b32 s{sTmp}, s{sW}, 9", f"v_add_u32 v{aPUB}, s{sTmp}, v{aPUB}", f"s_cmp_eq_u32 s{sW}, 3", f"s_cselect_b32 s{sTmp2}, 15, 31")
    a(f"v_and_b32 v{t3}, 31, v{vL}", f"v_min_u32 v{t3}, s{sTmp2}, v{t3}", f"v_lshlrev_b32 v{aG}, 4, v{t3}", f"v_lshl_add_u32 v{aG}, v{t2}, 15, v{aG}", f"v_add_u32 v{aG}, s{sTmp}, v{aG}")
    c("this workgroup's own partials are taken from registers: their lanes read out of range (zero) and expect tag 0")
    a(f"v_lshrrev_b32 v{T[5]}, 4, v{t3}", f"v_and_b32 v{T[6]}, 1, v{t3}", f"v_lshl_add_u32 v{T[5]}, v{T[5]}, 1, v{T[6]}", f"v_bfe_u32 v{T[6]}, v{t3}, 1, 3", f"v_lshl_add_u32 v{T[5]}, v{T[5]}, 4, v{T[6]}", f"v_lshlrev_b32 v{aBP}, 2, v{T[5]}")
    a(f"s_cmp_lt_u32 s{sJ}, 16", "s_cselect_b32 vcc_lo, -1, 0", "s_cselect_b32 vcc_hi, 0, -1", f"v_mov_b32 v{T[5]}, 0x10000000")
    a(f"v_cndmask_b32 v{T[5]}, v{aG}, v{T[5]}, vcc", f"v_cndmask_b32 v{T[6]}, v{TAGV}, 0, vcc", f"s_bitcmp1_b32 s{sJ}, 0", "s_cselect_b64 vcc, -1, 0")
    a(f"v_cndmask_b32 v{aG7}, v{T[5]}, v{aG}, vcc", f"v_cndmask_b32 v{aG7+1}, v{aG}, v{T[5]}, vcc", f"v_cndmask_b32 v{TG7}, v{T[6]}, v{TAGV}, vcc", f"v_cndmask_b32 v{TG7+1}, v{TAGV}, v{T[6]}, vcc")
    a(f"s_lshl_b32 s{sTmp}, s{sW}, 8", f"v_lshlrev_b32 v{t3}, 3, v{t3}", f"v_add_u32 v{aF}, s{sTmp}, v{t3}")
    a(f"buffer_load_dwordx2 v[{XS}:{XS+1}], v{aF}, s[{sX}:{sX+3}], 0 offen nt", f"v_lshlrev_b32 v{aF}, 1, v{aF}")
    aO = B2V+1
    a(f"v_and_b32 v{t3}, 3, v{vL}", f"v_lshl_add_u32 v{t3}, v{t3}, 2, v{tg}", f"v_lshlrev_b32 v{aO}, 1, v{t3}", f"s_lshl_b32 s{sTmp}, s{sF}, 5", f"v_add_u32 v{t3}, s{sTmp}, v{aO}")
    a(f"global_load_ushort v{B2V}, v{t3}, s[54:55] nt")
    c("sparse-MFMA one-hot masks and index")
    a(f"v_bfe_u32 v{t2}, v{vL}, 2, 1", f"v_cmp_eq_u32 vcc, 0, v{t2}", f"v_mov_b32 v{t3}, 0xffff", f"v_and_b32 v{SIX}, 3, v{vL}")
    a(f"v_cndmask_b32 v{SM}, 0, v{t3}, vcc", f"v_cndmask_b32 v{SM+1}, v{t3}, 0, vcc", f"v_mul_u32_u24 v{SIX}, 0x5555, v{SIX}", f"v_lshlrev_b32 v{SM+2}, 16, v{SM}", f"v_lshlrev_b32 v{SM+3}, 16, v{SM+1}")
    a(f"s_cmp_eq_u32 s{sW}, 3", f"s_cselect_b32 s{sPX}, 0, 0x00ff00ff", f"s_cselect_b32 s{sEX}, 0xffff, -1", f"s_mov_b32 s{sIN}, {hex(f2u(1.0/128))}", f"s_cselect_b32 s{sIN}, {hex(f2u(1.0/64))}, s{sIN}")
    a(f"s_bfe_u32 s{sRU}, s{sJ}, 0x30001", f"s_lshl_b32 s{sGB}, s{sB}, 16", f"s_lshl_b32 s{sPB}, s{sJ}, 11", f"s_add_u32 s{sPB}, s{sPB}, s{sGB}")
    a(f"s_lshl_b32 s{sPF}, s{sMF}, 11", f"s_add_u32 s{sPF}, s{sPF}, s{sGB}", f"s_add_u32 s{sPF}, s{sPF}, {FOFF}", f"s_add_u32 s{sPB}, s{sPB}, {XOFF}", f"s_lshl_b32 s{sFB}, s{sF}, 6", f"s_add_u32 s{sFB}, s{sFB}, s{sGB}", f"s_add_u32 s{sFB}, s{sFB}, {FOFF}", f"s_add_u32 s{sGB}, s{sGB}, {XOFF}")
    if GN: a(f"s_cmp_ge_u32 s{sMF}, 28", f"s_cselect_b32 s{sGB}, 0x10000000, s{sGB}")
    for k in range(8): a(f"s_add_u32 s{sU+k}, s{sRU}, {k+1}", f"s_and_b32 s{sU+k}, s{sU+k}, 7", f"s_lshl_b32 s{sU+k}, s{sU+k}, 12", f"s_add_u32 s{sU+k}, s{sU+k}, s{sGB}")
    a(f"v_lshrrev_b32 v{T[0]}, 2, v{vL}", f"v_and_b32 v{T[1]}, 3, v{vL}", f"v_lshlrev_b32 v{T[1]}, 4, v{T[1]}", f"v_add_u32 v{T[2]}, 16, v{T[0]}", f"v_min_u32 v{T[2]}, 27, v{T[2]}")
    a(f"v_lshl_add_u32 v{aF0}, v{T[0]}, 11, v{T[1]}", f"v_lshl_add_u32 v{aF1}, v{T[2]}, 11, v{T[1]}", f"v_mov_b32 v{T[3]}, 0x10000000")
    a(f"v_cmp_eq_u32 vcc, s{sMF}, v{T[0]}", f"v_and_b32 v{T[5]}, 1, v{vL}", f"v_bfe_u32 v{T[6]}, v{vL}, 1, 1")
    a(f"v_cndmask_b32 v{aF0}, v{aF0}, v{T[3]}, vcc", f"v_cndmask_b32 v{TGF}, v{TAGV}, 0, vcc")
    a(f"v_cmp_eq_u32 vcc, s{sMF}, v{T[2]}", f"v_lshl_add_u32 v{T[5]}, v{T[5]}, 4, v{T[6]}", f"s_and_b32 s{sTmp}, s{sMF}, 3")
    a(f"v_cndmask_b32 v{aF1}, v{aF1}, v{T[3]}, vcc", f"v_cndmask_b32 v{TGF+1}, v{TAGV}, 0, vcc")
    a(f"s_lshl_b32 s{sTmp}, s{sTmp}, 1", f"s_bfe_u32 s{sTmp2}, s{sMF}, 0x10002", f"s_lshl_b32 s{sTmp2}, s{sTmp2}, 5", f"s_add_u32 s{sTmp}, s{sTmp}, s{sTmp2}")
    sFW = sR
    a(f"v_add_u32 v{aBF}, s{sTmp}, v{T[5]}", f"v_lshrrev_b32 v{T[5]}, 4, v{vL}", f"v_lshl_add_u32 v{aBF}, v{aBF}, 2, v{T[5]}", f"v_lshlrev_b32 v{aBF}, 2, v{aBF}", f"s_lshr_b32 s{sFW}, s{sMF}, 3")
    if XPF:
        c("pull this wave's own hand-off lines on die ahead of time (values unused)")
        a("s_mov_b32 exec_lo, 0x00110011", f"s_and_b32 exec_hi, s{sPX}, 0x00110011")
        a(f"buffer_load_dword v{T[7]}, v{aPUB}, s[{sWS}:{sWS+3}], s{sPB} offen sc1", f"buffer_load_dword v{T[7]}, v{aPUB}, s[{sWS}:{sWS+3}], s{sPF} offen sc1", "s_mov_b64 exec, -1")
    for j in range(16): vstep(j, True, DE)

    c("---- o partial (hi + lo rows) -> LDS -> normalised sum of the four waves, bf16")
    a("s_nop 7")
    for t in range(4): a(f"v_permlane32_swap_b32 v{D0+t}, v{D1+t}")
    for t, r in enumerate((0, 2, 1, 3)): a(f"v_add_f32 v{AB+r}, v{D0+t}, v{D1+t}")
    a(f"ds_write_b64 v{aOW}, v[{AB}:{AB+1}] offset:{OPo}", f"ds_write_b64 v{aOW}, v[{AB+2}:{AB+3}] offset:{OPo+32}", "s_waitcnt lgkmcnt(0)", "s_barrier")
    for w in range(4):
        for hh in range(2): a(f"ds_read_b128 v[{RG+8*w+4*hh}:{RG+8*w+4*hh+3}], v{aOR} offset:{OPo + w*1280 + 16*hh}")
    for e in range(8): a(f"v_mov_b32 v{D0+e}, 0")
    for w in range(4):
        a(f"s_waitcnt lgkmcnt({6-2*w})")
        Fp = (F0, F0, F2, F2)[w]; o = w & 1
        for k in range(4):
            r = RG + 2*k
            if w == 0: a(f"v_pk_mul_f32 v[{r}:{r+1}], v[{r}:{r+1}], v[{Fp}:{Fp+1}] op_sel_hi:[1,0]")
            else: a(f"v_pk_fma_f32 v[{r}:{r+1}], v[{r+8*w}:{r+8*w+1}], v[{Fp}:{Fp+1}], v[{r}:{r+1}] op_sel:[0,{o},0] op_sel_hi:[1,{o},1]")
    S = PL
    for u in range(4): a(f"v_cvt_pk_bf16_f32 v{S+u}, v{RG+2*u}, v{RG+2*u+1}")
    def sbuild(dst, n, ts):
        for t in ts: a(f"v_and_b32_dpp v{dst+t}, v{S + (n >> 2)}, v{SM+t} quad_perm:[{n&3},{n&3},{n&3},{n&3}] row_mask:0xf bank_mask:0xf")
    def smf(d, A, B, br): a(f"v_smfmac_f32_16x16x64_bf16 v[{d}:{d+3}], v[{A}:{A+3}], {br}[{B}:{B+7}], v{SIX}")
    def proj(nj, breg, br):
        sbuild(AB, 0, range(4)); sbuild(AB+4, 1, (0, 1))
        for jj in range(nj):
            A, nA = AB + 4*(jj & 1), AB + 4*((jj+1) & 1)
            smf(D0, A, breg + (jj*2)*8, br)
            if jj + 1 < nj: sbuild(nA, jj+1, (2, 3))
            smf(D1, A, breg + (jj*2+1)*8, br)
            if jj + 2 < nj: sbuild(A, jj+2, (0, 1))
            elif jj + 1 < nj: a("s_nop 0")
    def gissue(r, so, own=False):
        a(f"buffer_load_dwordx4 v[{r}:{r+3}], v{aG7 if own else aG}, s[{sWS}:{sWS+3}], s{so} offen sc1")
        a(f"buffer_load_dwordx4 v[{r+4}:{r+7}], v{aG7+1 if own else aG}, s[{sWS}:{sWS+3}], s{so} offen offset:2048 sc1")
    def publish(so, pre=0):
        for k in range(pre): gissue(RG+8*k, sU+k, k == 7)
        if 2*pre < 8: a(f"s_nop {7-2*pre}")
        for t in range(4): a(f"v_permlane32_swap_b32 v{D0+t}, v{D1+t}")
        for t in range(4): a(f"v_add_f32_dpp v{D0+t}, v{D1+t}, v{D0+t} row_ror:8 row_mask:0xf bank_mask:0xf")
        for t in range(4): a(f"v_bfi_b32 v{AB+t}, s{sTM}, v{D0+t}, v{TAGV}")
        a("s_mov_b32 exec_lo, 0x00ff00ff", f"s_mov_b32 exec_hi, s{sPX}")
        a(f"buffer_store_dwordx4 v[{AB}:{AB+3}], v{aPUB}, s[{sWS}:{sWS+3}], s{so} offen sc1", "s_mov_b64 exec, -1")
    c("---- y partial = o @ wo[head]: wave w owns columns 128w..128w+127, 16 rows x 64 columns per sparse MFMA")
    proj(16, 0, "a")
    publish(sPB, GN)
    a(f"s_cmp_ge_u32 s{sMF}, 28", "s_cbranch_scc1 L_end")
    c("---- hand-off X: sum the 32 partials of this batch (8 slots of 4 producers); lanes 32-63 start from x")
    GA, CK, R2 = D0, T[1], RG+32
    def tagchk(r, ta=TAGV, tb=TAGV):
        a(f"v_xor_b32 v{CK}, v{r}, v{ta}", f"v_xor_b32 v{T[2]}, v{r+4}, v{tb}")
        a(f"v_bitop3_b32 v{CK}, v{CK}, v{r+2}, v{ta} bitop3:0xf6", f"v_bitop3_b32 v{T[2]}, v{T[2]}, v{r+6}, v{tb} bitop3:0xf6")
        a(f"v_bitop3_b32 v{CK}, v{CK}, v{T[2]}, s{sTM} bitop3:0x54", f"v_cmp_ne_u32 vcc, 0, v{CK}")
    pa = lambda x, y, z=None: f"v_pk_add_f32 v[{x}:{x+1}], v[{x if z is None else z}:{(x if z is None else z)+1}], v[{y}:{y+1}]"
    def gacc(r, L, k):
        tagchk(r, TG7, TG7+1) if k == 7 else tagchk(r)
        a(pa(r, r+4), pa(r+2, r+6), f"s_cbranch_vccnz {L}", pa(GA, r), pa(GA+2, r+2))
        if k is not None: a(f"s_bitset0_b32 s{sDone}, {k}")
    for e in range(4): a(f"ds_bpermute_b32 v{GA+e}, v{aBP}, v{AB+e}")
    if PB & 1: c("all four stores leave before any gather load enters the memory pipeline"); a("s_barrier")
    if AW & 1: c("first look only after this wave's own store is acknowledged: fewer reads of lines that are about to be written"); a("s_waitcnt vmcnt(0)")
    for k in range(GN, 8): gissue(RG+8*k, sU+k, k == 7)
    a(f"s_movk_i32 s{sDone}, 0xff", f"s_mov_b32 s{sSpin}, 0", "s_waitcnt lgkmcnt(0)", "s_mov_b32 exec_lo, 0")
    unpack(GA, XS, 2)
    beta, kap = 0.7978845608028654, 0.044715
    a("s_mov_b32 exec_lo, -1", f"v_mov_b32 v{F0}, {hex(f2u(-2*beta*math.log2(math.e)))}", f"v_mov_b32 v{F0+1}, {hex(f2u(-2*beta*kap*math.log2(math.e)))}")
    for k in range(8):
        a(f"s_waitcnt vmcnt({14-2*k + (1 if k < GN else 0)})"); gacc(RG+8*k, f"L_g0_{k}", k); a(f"L_g0_{k}:")
    a(f"s_cmp_eq_u32 s{sDone}, 0", "s_cbranch_scc1 L_gdone")
    for k in range(8):
        a(f"s_bitcmp1_b32 s{sDone}, {k}", f"s_cbranch_scc0 L_g1_{k}"); gissue(RG+8*k, sU+k, k == 7); a(f"L_g1_{k}:")
    a("L_gtop:", "s_waitcnt vmcnt(0)")
    for k in range(8):
        a(f"s_bitcmp1_b32 s{sDone}, {k}", f"s_cbranch_scc0 L_gb_{k}"); gacc(RG+8*k, f"L_gf_{k}", k); a(f"L_gb_{k}:")
    a(f"s_bcnt1_i32_b32 s{sTmp}, s{sDone}", "s_cbranch_scc0 L_gdone")
    if FAST: a(f"s_bitcmp1_b32 s{sDone}, 7", "s_cbranch_scc1 L_gmany", f"s_cmp_eq_u32 s{sTmp}, 1", "s_cbranch_scc1 L_gone", "L_gmany:")
    a(f"s_add_u32 s{sSpin}, s{sSpin}, 1", f"s_cmp_lt_u32 s{sSpin}, 0x40000", "s_cbranch_scc1 L_gtop", "s_branch L_gdone")
    for k in range(8):
        a(f"L_gf_{k}:"); gissue(RG+8*k, sU+k, k == 7); a(f"s_branch L_gb_{k}")
    a("L_gone:")
    a(f"s_ff1_i32_b32 s{sTmp2}, s{sDone}", f"s_add_u32 s{sTmp2}, s{sTmp2}, s{sRU}", f"s_add_u32 s{sTmp2}, s{sTmp2}, 1", f"s_and_b32 s{sTmp2}, s{sTmp2}, 7", f"s_lshl_b32 s{sTmp2}, s{sTmp2}, 12", f"s_add_u32 s{sTmp2}, s{sTmp2}, s{sGB}")
    a("L_gone1:")
    if SX: a(f"s_sleep {SX}")
    gissue(RG, sTmp2)
    a(f"s_add_u32 s{sSpin}, s{sSpin}, 1", f"s_cmp_ge_u32 s{sSpin}, 0x40000", "s_cbranch_scc1 L_gdone", "s_waitcnt vmcnt(0)")
    gacc(RG, "L_gone1", None)
    a("L_gdone:")
    c("---- h slice (fp32) and its mean / centred sum of squares (pivot = first element)")
    S1, S2, H4, XF = R2+10, R2+11, R2+4, R2
    for e in range(4): a(f"v_mov_b32 v{GA+4+e}, v{GA+e}")
    a(f"v_mov_b32 v{S1}, 0", f"v_mov_b32 v{S2}, 0")
    for e in range(4): a(f"v_permlane32_swap_b32 v{GA+4+e}, v{GA+e}")
    a(pa(GA, GA+4), pa(GA+2, GA+6))
    a(f"s_lshl_b32 s{sCnt}, s{sW}, 3", f"v_readlane_b32 s{sTmp2}, v{GA}, 0", f"ds_write_b128 v{aF}, v[{GA}:{GA+3}] offset:{HBo}", f"s_mov_b32 exec_lo, s{sEX}")
    neg = "op_sel_hi:[1,0] neg_lo:[0,1] neg_hi:[0,1]"
    a(f"v_pk_add_f32 v[{H4}:{H4+1}], v[{GA}:{GA+1}], s[{sTmp2}:{sTmp2+1}] {neg}", f"v_pk_add_f32 v[{H4+2}:{H4+3}], v[{GA+2}:{GA+3}], s[{sTmp2}:{sTmp2+1}] {neg}")
    a(f"v_pk_mul_f32 v[{XF}:{XF+1}], v[{H4}:{H4+1}], v[{H4}:{H4+1}]", pa(XF+2, H4+2, H4), f"v_pk_fma_f32 v[{XF}:{XF+1}], v[{H4+2}:{H4+3}], v[{H4+2}:{H4+3}], v[{XF}:{XF+1}]")
    a(f"v_add_f32 v{S1}, v{XF+2}, v{XF+3}", f"v_add_f32 v{S2}, v{XF}, v{XF+1}", "s_mov_b32 exec_lo, -1")
    fill = [f"v_mov_b32 v{T[0]}, s{sCnt}", f"v_mov_b32 v{T[1]}, 0", f"v_mov_b32 v{D0}, 0", f"v_mov_b32 v{D0+1}, 0", f"v_mov_b32 v{D0+2}, 0"]
    for ctl in ("row_ror:8 row_mask:0xf", "row_ror:4 row_mask:0xf", "row_ror:2 row_mask:0xf", "row_ror:1 row_mask:0xf", "row_bcast:15 row_mask:0x2"):
        a(fill.pop(0))
        for r in (S1, S2): a(f"v_add_f32_dpp v{r}, v{r}, v{r} {ctl} bank_mask:0xf")
    a(f"v_mul_f32 v{XF}, s{sIN}, v{S1}", f"v_mov_b32 v{D0+3}, 0", f"v_fma_f32 v{S2}, -v{XF}, v{S1}, v{S2}", f"v_add_f32 v{S1}, s{sTmp2}, v{XF}")
    a("s_mov_b32 exec_lo, 0x10000", "s_mov_b32 exec_hi, 0", f"ds_write_b64 v{T[0]}, v[{S1}:{S1+1}] offset:{STo}", "s_mov_b64 exec, -1", "s_waitcnt lgkmcnt(0)", "s_barrier")
    c("---- combine the four slices (128,128,128,64 columns) into mean and variance of h")
    ST, E, MU, RS = R2, R2+16, T[4], T[6]
    a(f"ds_read_b128 v[{ST}:{ST+3}], v{T[1]} offset:{STo}", f"ds_read_b128 v[{ST+4}:{ST+7}], v{T[1]} offset:{STo+16}")
    a(f"ds_read2_b32 v[{E}:{E+1}], v{aHA} offset0:0 offset1:2", f"ds_read2_b32 v[{E+2}:{E+3}], v{aHA} offset0:64 offset1:66", "s_waitcnt lgkmcnt(2)")
    a(f"v_add_f32 v{MU}, v{ST}, v{ST+2}", f"v_fma_f32 v{T[5]}, v{ST+6}, 0.5, v{ST+4}", f"v_add_f32 v{RS}, v{ST+1}, v{ST+3}", f"v_add_f32 v{MU}, v{MU}, v{T[5]}", f"v_add_f32 v{T[7]}, v{ST+5}, v{ST+7}")
    a(f"v_mul_f32 v{MU}, {hex(f2u(2.0/7))}, v{MU}", f"v_add_f32 v{RS}, v{RS}, v{T[7]}")
    for w in range(4): a(f"v_sub_f32 v{ST+2*w}, v{ST+2*w}, v{MU}")
    a(f"v_mul_f32 v{T[5]}, v{ST+6}, v{ST+6}", f"v_mul_f32 v{T[7]}, v{ST}, v{ST}", f"v_mul_f32 v{RS}, {inv448}, v{RS}")
    a(f"v_fmac_f32 v{T[7]}, v{ST+2}, v{ST+2}", f"v_fmac_f32 v{RS}, {hex(f2u(1.0/7))}, v{T[5]}", f"v_fmac_f32 v{T[7]}, v{ST+4}, v{ST+4}", "s_waitcnt lgkmcnt(0)")
    a(f"v_pk_add_f32 v[{E}:{E+1}], v[{E}:{E+1}], v[{MU}:{MU+1}] {neg}", f"v_fmac_f32 v{RS}, {hex(f2u(2.0/7))}, v{T[7]}")
    c("both layer norms: z1 = (h-mu)/sqrt(var+eps) has mean 0 and variance var/(var+eps), hence")
    c("LN(z1) = z1/sqrt(var/(var+eps) + eps) = (h-mu)/sqrt(var + eps*(var+eps))")
    a(f"v_pk_add_f32 v[{E+2}:{E+3}], v[{E+2}:{E+3}], v[{MU}:{MU+1}] {neg}", f"v_add_f32 v{T[5]}, {eps}, v{RS}", f"v_fmac_f32 v{RS}, {eps}, v{T[5]}", f"v_rsq_f32 v{RS}, v{RS}", "s_nop 0")
    a(f"v_pk_mul_f32 v[{E}:{E+1}], v[{E}:{E+1}], v[{RS}:{RS+1}] op_sel_hi:[1,0]", f"v_pk_mul_f32 v[{E+2}:{E+3}], v[{E+2}:{E+3}], v[{RS}:{RS+1}] op_sel_hi:[1,0]")
    a(f"v_cvt_pk_bf16_f32 v{S}, v{E}, v{E+1}", f"v_cvt_pk_bf16_f32 v{S+1}, v{E+2}, v{E+3}", "s_nop 0")
    c("---- w1 slice: wave w takes rows 112w..112w+111, partials summed through LDS")
    sbuild(AB, 0, range(4))
    for jj in range(7):
        nA = AB + 4*((jj+1) & 1)
        if jj < 6: sbuild(nA, jj+1, (0, 1))
        else: a("s_nop 1")
        smf(D0, AB + 4*(jj & 1), W1R + 8*jj, "v")
        if jj < 6: sbuild(nA, jj+1, (2, 3))
    a(f"v_lshlrev_b32 v{B1V}, 16, v{B1V}", f"v_lshlrev_b32 v{B1V+1}, 16, v{B1V+1}", "s_mov_b32 exec_lo, 0x00ff00ff", "s_mov_b32 exec_hi, 0xff00ff00", "s_nop 3")
    for t in range(4): a(f"ds_write_b32 v{aAW}, v{D0+t} offset:{APo + 32*t}")
    a("s_mov_b64 exec, -1", "s_waitcnt lgkmcnt(0)", "s_barrier")
    for k in range(4): a(f"ds_read_b128 v[{R2+4*k}:{R2+4*k+3}], v{aAR} offset:{APo + 64*(k >> 1) + 16*(k & 1)}")
    for e in range(8): a(f"v_mov_b32 v{D0+e}, 0")
    G2, U2 = T[4], T[6]
    for x in range(2):
        r = R2 + 8*x
        a(f"s_waitcnt lgkmcnt({2-2*x})", pa(r, r+2), pa(r+4, r+6), pa(r, r+4), f"v_add_f32 v{G2+x}, v{r}, v{r+1}")
    c("GELU(tanh form): 0.5 a (1 + tanh u) = a / (1 + exp(-2u)), u = sqrt(2/pi) (a + 0.044715 a^3)")
    a(pa(G2, B1V), f"v_pk_mul_f32 v[{U2}:{U2+1}], v[{G2}:{G2+1}], v[{G2}:{G2+1}]")
    a(f"v_pk_fma_f32 v[{U2}:{U2+1}], v[{U2}:{U2+1}], v[{F0}:{F0+1}], v[{F0}:{F0+1}] op_sel:[0,1,0] op_sel_hi:[1,1,0]", f"v_pk_mul_f32 v[{U2}:{U2+1}], v[{U2}:{U2+1}], v[{G2}:{G2+1}]")
    for x in range(2): a(f"v_exp_f32 v{U2+x}, v{U2+x}")
    a("s_nop 0")
    for x in range(2): a(f"v_add_f32 v{U2+x}, 1.0, v{U2+x}")
    for x in range(2): a(f"v_rcp_f32 v{U2+x}, v{U2+x}")
    a("s_nop 0", f"v_pk_mul_f32 v[{G2}:{G2+1}], v[{G2}:{G2+1}], v[{U2}:{U2+1}]", f"v_cvt_pk_bf16_f32 v{S}, v{G2}, v{G2+1}", "s_nop 1")
    c("---- w2 slice, hand-off F")
    proj(4, W2R, "v")
    publish(sPF)
    if PB & 2: a("s_barrier")
    c("---- the wave that holds columns 16j..16j+15 sums the 28 partials, adds b2 and h, stores the output")
    a(f"s_cmp_lg_u32 s{sW}, s{sFW}", "s_cbranch_scc1 L_end")
    FA, FB, FH, FO = R2, R2+8, R2+9, R2+10
    def fissue():
        a(f"buffer_load_dwordx4 v[{FA}:{FA+3}], v{aF0}, s[{sWS}:{sWS+3}], s{sFB} offen sc1", f"buffer_load_dwordx4 v[{FA+4}:{FA+7}], v{aF1}, s[{sWS}:{sWS+3}], s{sFB} offen sc1")
    if not AW & 2: fissue()
    c("own partial (through LDS), h and b2 are summed while the other partials are in flight")
    a(f"v_lshlrev_b32 v{T[5]}, 4, v{vL}", f"ds_write_b128 v{T[5]}, v[{AB}:{AB+3}] offset:{OPo}", f"ds_read_b32 v{FO}, v{aBF} offset:{OPo}")
    a(f"s_lshl_b32 s{sTmp}, s{sMF}, 5", f"v_add_lshl_u32 v{T[5]}, s{sTmp}, v{aO}, 1", f"ds_read_b32 v{FH}, v{T[5]} offset:{HBo}", f"v_lshlrev_b32 v{FB}, 16, v{B2V}")
    a(f"s_mul_i32 s{sCnt}, s{sB}, 896", f"s_add_u32 s{sCnt}, s{sCnt}, s{sTmp}")
    srd(sX, 56, None, 3584*2)
    a(f"s_mov_b32 s{sSpin}, 0", "s_waitcnt lgkmcnt(0)", f"v_add_f32 v{FB}, v{FB}, v{FO}", f"v_add_f32 v{FB}, v{FB}, v{FH}", "s_waitcnt vmcnt(0)" if AW & 2 else "s_branch L_fchk")
    if S0: a(f"s_sleep {S0}")
    if SF: a("s_branch L_fp0")
    a("L_fpoll:")
    if SF: a(f"s_sleep {SF}", "L_fp0:")
    fissue()
    a(f"s_add_u32 s{sSpin}, s{sSpin}, 1", f"s_cmp_ge_u32 s{sSpin}, 0x40000", "s_cbranch_scc1 L_fdone", "L_fchk:", "s_waitcnt vmcnt(0)")
    tagchk(FA, TGF, TGF+1)
    a("s_mov_b32 exec_hi, 0xffff", pa(FA, FA+4), pa(FA+2, FA+6), "s_mov_b32 exec_hi, -1", "s_cbranch_vccnz L_fpoll", "L_fdone:")
    a(f"v_permlane16_swap_b32 v{FA}, v{FA+1}", f"v_permlane16_swap_b32 v{FA+2}, v{FA+3}", f"v_add_f32 v{FA}, v{FA}, v{FA+1}", f"v_add_f32 v{FA+2}, v{FA+2}, v{FA+3}", "s_nop 1")
    a(f"v_permlane32_swap_b32 v{FA}, v{FA+2}", f"v_add_f32 v{FA}, v{FA}, v{FA+2}")
    for rot in (4, 8): a("s_nop 1", f"v_add_f32_dpp v{FA}, v{FA}, v{FA} row_ror:{rot} row_mask:0xf bank_mask:0xf")
    a(f"v_add_f32 v{FA}, v{FA}, v{FB}", "s_mov_b32 exec_lo, 0x000f000f", f"v_cvt_pk_bf16_f32 v{FA}, v{FA}, v{FA}", "s_mov_b32 exec_hi, 0x000f000f")
    a(f"buffer_store_short v{FA}, v{aO}, s[{sX}:{sX+3}], s{sCnt} offen")
    if stamps:
        a("s_memrealtime s[98:99]", "s_mul_i32 s96, s2, 24", "s_add_u32 s46, s60, 0x20000000", "s_addc_u32 s47, s61, 0", "s_waitcnt lgkmcnt(0)")
        a("v_mov_b32 v2, s96", "v_mov_b32 v12, s100", "v_mov_b32 v13, s101", "v_mov_b32 v14, s98", "v_mov_b32 v15, s99", "global_store_dwordx2 v2, v[12:13], s[46:47]", "global_store_dwordx2 v2, v[14:15], s[46:47] offset:8")
    c("every reader of this batch's epoch word has published by now: advance it")
    a(f"s_cmp_lg_u32 s{sMF}, 0", "s_cbranch_scc1 L_end")
    a(f"s_lshl_b32 s{sTmp}, s{sB}, 7", f"v_mov_b32 v{T[5]}, s{sTag32}", "s_mov_b64 exec, 1", f"buffer_store_dword v{T[5]}, v{aO}, s[{sWS}:{sWS+3}], s{sTmp} offen")
    a("L_end:", "s_endpgm")
    a('.section .rodata,"a"', ".p2align 6", f".amdhsa_kernel {NAME}_kernel")
    for x in ("next_free_vgpr 512", "next_free_sgpr 102", "accum_offset 256", "group_segment_fixed_size 0", "kernarg_size 104", "user_sgpr_count 2",
              "user_sgpr_kernarg_segment_ptr 1", "system_sgpr_workgroup_id_x 1", "float_denorm_mode_32 3"): g.o.append("  .amdhsa_" + x)
    a(".end_amdhsa_kernel")
    return "\n".join(g.o) + "\n"

if __name__ == "__main__":
    kw = dict(x.split("=") for x in sys.argv[2:])
    open(sys.argv[1], "w").write(gen(**{k: eval(v) for k, v in kw.items()}))
```
